```python
import torch

def _softmax(x, axis=-1):
    return torch.softmax(x, dim=axis)

def _gelu(x):
    return torch.nn.functional.gelu(x, approximate='tanh')

def _silu(x):
    return torch.nn.functional.silu(x)

def _sigmoid(x):
    return torch.sigmoid(x)

def _layernorm(x, axis=-1, eps=1e-05):
    m = x.mean(dim=axis, keepdim=True)
    v = x.var(dim=axis, keepdim=True, unbiased=False)
    return (x - m) / torch.sqrt(v + eps)

def _scatter_add(tgt, idx, src, axis=0):
    return tgt.clone().index_add_(axis, idx, src)

def _segment_sum(src, seg, n):
    out = torch.zeros((n,) + src.shape[1:], dtype=src.dtype)
    return out.index_add_(0, seg, src)

def _pad(x, pw):
    flat = tuple((v for pair in reversed(pw) for v in pair))
    return torch.nn.functional.pad(x, flat)
kernel_name = 'adaLN_cond__memory_aug_recurrent_mem_tr__dense_activation_gelu__prompt'

def setup_inputs():

    _w = lambda a: (lambda t: t.to(torch.bfloat16) if t.is_floating_point() else t)(torch.as_tensor(a))

    def _A_setup():
        B, S, Dm = (1, 2048, 640)
        H, Dh = (32, 192)
        M, seg = (8, 32)
        seg = min(seg, S)
        S = S // seg * seg
        return {'x': _w((lambda *s: torch.randn(*s, dtype=torch.bfloat16) * 0.05)(B, S, Dm)), 'mem0': _w((lambda *s: torch.randn(*s, dtype=torch.bfloat16) * 0.8)(B, M, Dm)), 'Wq': _w((lambda *s: torch.randn(*s, dtype=torch.bfloat16) * 1.6)(Dm, H, Dh) * Dm ** (-0.5)), 'Wk': _w((lambda *s: torch.randn(*s, dtype=torch.bfloat16) * 1.6)(Dm, H, Dh) * Dm ** (-0.5)), 'Wv': _w((lambda *s: torch.randn(*s, dtype=torch.bfloat16) * 0.8)(Dm, H, Dh) * Dm ** (-0.5)), 'Wo': _w((lambda *s: torch.randn(*s, dtype=torch.bfloat16) * 0.8)(H, Dh, Dm) * (H * Dh) ** (-0.5)), 'seg_len': seg}
    _A_in = _A_setup()

    def _B_setup():
        B, S, D, F = (1, 2048, 640, 1536)
        return {'x': _w((lambda *s: torch.randn(*s, dtype=torch.bfloat16) * 0.05)(B, S, D)), 'w1': _w((lambda *s: torch.randn(*s, dtype=torch.bfloat16) * 1.6)(D, F) * D ** (-0.5)), 'b1': _w((lambda *s: torch.randn(*s, dtype=torch.bfloat16) * 1.6)(F) * 0.01), 'w2': _w((lambda *s: torch.randn(*s, dtype=torch.bfloat16) * 0.2)(F, D) * F ** (-0.5)), 'b2': _w((lambda *s: torch.randn(*s, dtype=torch.bfloat16) * 0.2)(D) * 0.01)}
    _B_in = _B_setup()
    return {'A_x': _A_in['x'], 'A_mem0': _A_in['mem0'], 'A_Wq': _A_in['Wq'], 'A_Wk': _A_in['Wk'], 'A_Wv': _A_in['Wv'], 'A_Wo': _A_in['Wo'], 'A_seg_len': _A_in['seg_len'], 'B_x': _B_in['x'], 'B_w1': _B_in['w1'], 'B_b1': _B_in['b1'], 'B_w2': _B_in['w2'], 'B_b2': _B_in['b2'], 'c': _w((lambda *s: torch.randn(*s, dtype=torch.bfloat16) * 0.05)(1, 640) * 8.0), 'w_mod': _w((lambda *s: torch.randn(*s, dtype=torch.bfloat16) * 0.05)(640, 6 * 640) * 640 ** (-0.5) * 8.0)}

def reference(A_x, A_mem0, A_Wq, A_Wk, A_Wv, A_Wo, A_seg_len, B_x, B_w1, B_b1, B_w2, B_b2, c, w_mod):

    def _A_ref(x, mem0, Wq, Wk, Wv, Wo, seg_len):
        B, S, Dm = x.shape
        H, Dh = (Wq.shape[1], Wq.shape[2])
        M = mem0.shape[1]
        scale = Dh ** (-0.5)
        n_seg = S // seg_len
        L = M + seg_len
        idx = torch.arange(L)
        mask = (idx[:, None] < M) | (idx[:, None] >= idx[None, :])
        mem = mem0
        outs = []
        for s in range(n_seg):
            xs = x[:, s * seg_len:(s + 1) * seg_len, :].clone()
            h = torch.concatenate([mem, xs], axis=1)
            q = torch.einsum('btd,dhe->bhte', h, Wq)
            k = torch.einsum('btd,dhe->bhte', h, Wk)
            v = torch.einsum('btd,dhe->bhte', h, Wv)
            scores = torch.einsum('bhqe,bhke->bhqk', q, k) * scale
            scores = torch.where(mask[None, None], scores, -1000000000.0)
            p = _softmax(scores, axis=-1)
            o = torch.einsum('bhqk,bhke->bhqe', p, v)
            o = torch.einsum('bhte,hed->btd', o, Wo)
            mem = o[:, :M, :].clone()
            outs.append(o[:, M:, :])
        return torch.concatenate(outs, axis=1)

    def _B_ref(x, w1, b1, w2, b2):
        h = torch.einsum('bsd,df->bsf', x, w1) + b1
        h = _gelu(h)
        return torch.einsum('bsf,fd->bsd', h, w2) + b2
    x = A_x
    mod = (_silu(c) @ w_mod).reshape(c.shape[0], 6, 1, -1)
    sa, ca, ga, sb, cb, gb = (mod[:, 0].clone(), mod[:, 1].clone(), mod[:, 2].clone(), mod[:, 3].clone(), mod[:, 4].clone(), mod[:, 5].clone())
    h = _layernorm(x, axis=-1) * (1 + ca) + sa
    x = x + ga * _A_ref(h, A_mem0, A_Wq, A_Wk, A_Wv, A_Wo, A_seg_len)
    h = _layernorm(x, axis=-1) * (1 + cb) + sb
    x = x + gb * _B_ref(h, B_w1, B_b1, B_w2, B_b2)
    return x
```

```python
class Asm:
    def __init__(self):
        self.lines = []
        self.uid = 0
    def __call__(self, s):
        for l in s.split('\n'):
            l = l.strip()
            if not l: continue
            if l.endswith(':'):
                self.lines.append(l)
            else:
                self.lines.append('    ' + l)
    def label(self, base):
        self.uid += 1
        return f"L_{base}_{self.uid}"
    def c(self, s):
        self.lines.append('    ; ' + s)
    def text(self):
        return '\n'.join(self.lines) + '\n'

def vr(a, n=1):
    return f"v{a}" if n == 1 else f"v[{a}:{a+n-1}]"
def sr(a, n=1):
    return f"s{a}" if n == 1 else f"s[{a}:{a+n-1}]"
def ar(a, n=1):
    return f"a{a}" if n == 1 else f"a[{a}:{a+n-1}]"

def kernel_desc(name, vgpr, sgpr, accum, extra=""):
    return f""".section .rodata,"a"
.p2align 6
.amdhsa_kernel {name}
  .amdhsa_next_free_vgpr {vgpr}
  .amdhsa_next_free_sgpr {sgpr}
  .amdhsa_accum_offset {accum}
  .amdhsa_group_segment_fixed_size 0
  .amdhsa_kernarg_size 136
  .amdhsa_user_sgpr_count 2
  .amdhsa_user_sgpr_kernarg_segment_ptr 1
  .amdhsa_system_sgpr_workgroup_id_x 1
{extra}.end_amdhsa_kernel
"""

def kernel_head(name):
    return f""".text
.globl {name}
.p2align 8
.type {name},@function
{name}:
"""
```

```python
import math, struct
from asmlib import *
from layout import *
def f2u(f): return struct.unpack('<I', struct.pack('<f', f))[0]
WS = "s[4:7]"; SA = "s[8:11]"; SB = "s[12:15]"; SC = "s[24:27]"
LOG2E = math.log2(math.e)

class A(Asm):
    def nop(self, n):
        while n > 0:
            k = min(n, 16); self(f"s_nop {k-1}"); n -= k
    def srd(self, dst, karg, size):
        self(f"s_load_dwordx2 s[{dst}:{dst+1}], s[0:1], {karg}\ns_mov_b32 s{dst+2}, {size}\ns_mov_b32 s{dst+3}, 0x20000")
    def xlane(self, op, v, t):
        self(f"""
        v_mov_b32 v{t}, v{v}
        s_nop 1
        v_permlane32_swap_b32 v{t}, v{v}
        {op} v{v}, v{v}, v{t}
        v_mov_b32 v{t}, v{v}
        s_nop 1
        v_permlane16_swap_b32 v{t}, v{v}
        {op} v{v}, v{v}, v{t}
        """)
    def rowsum16(self, v):
        for r in (8, 4, 2, 1):
            self(f"s_nop 1\nv_add_f32_dpp v{v}, v{v}, v{v} row_ror:{r} row_mask:0xf bank_mask:0xf")

LDS_PRE = 8192 + 16384
def gen_pre(name):
    a = A()
    a(f"""
    s_cmp_ge_u32 s2, 256
    s_cbranch_scc1 LP_end
    """)
    a.srd(4, KA['ws'], WS_SIZE); a.srd(8, KA['wmod'], 640*7680); a.srd(12, KA['c'], 1280)
    a(f"""
    s_load_dwordx2 s[28:29], s[0:1], {KA['w1']}
    s_load_dwordx2 s[30:31], s[0:1], {KA['w2']}
    s_load_dwordx2 s[32:33], s[0:1], {KA['mem0']}
    v_lshrrev_b32 v1, 6, v0
    v_and_b32 v2, 63, v0
    v_readfirstlane_b32 s16, v1
    s_mov_b32 s34, 10240
    s_mov_b32 s35, 0x20000
    s_waitcnt lgkmcnt(0)
    ; ---- mod partial loads: cg = j%60, kq = j/60 (j<240; others read out of range -> zeros, never stored)
    s_mul_i32 s17, s2, 1093
    s_lshr_b32 s17, s17, 16
    s_mul_i32 s18, s17, 60
    s_sub_u32 s18, s2, s18
    v_lshrrev_b32 v3, 3, v0
    s_mul_i32 s19, s17, 160
    v_add_u32 v3, s19, v3
    v_mul_u32_u24 v4, 7680, v3
    v_and_b32 v5, 7, v0
    v_lshl_add_u32 v4, v5, 4, v4
    s_lshl_b32 s20, s18, 7
    v_lshlrev_b32 v3, 1, v3
    """)
    for i in range(5):
        a(f"buffer_load_dwordx4 v[{16+4*i}:{19+4*i}], v4, {SA}, s20 offen")
        a(f"buffer_load_ushort v{36+i}, v3, {SB}, 0 offen offset:{i*64}")
        if i < 4: a(f"s_add_u32 s20, s20, {32*7680}")
    a(f"""
    s_lshl_b32 s21, s2, 2
    s_add_u32 s21, s21, s16
    s_cmp_lt_u32 s21, 480
    s_cbranch_scc0 LP_w2
    s_mul_i32 s22, s21, 2731
    s_lshr_b32 s22, s22, 16
    s_mul_i32 s23, s22, 24
    s_sub_u32 s23, s21, s23
    s_mov_b32 s24, s28
    s_mov_b32 s25, s29
    s_mov_b32 s36, 3072
    s_mul_i32 s37, s23, {4*20*1024}
    s_lshl_b32 s38, s22, 10
    s_add_u32 s37, s37, s38
    s_add_u32 s37, s37, {WS_W1F}
    s_mov_b32 s38, {20*1024}
    s_mov_b32 s39, 1024
    s_mov_b32 s40, 512
    s_branch LP_wj
    LP_w2:
    s_sub_u32 s21, s21, 480
    s_mul_i32 s22, s21, 6554
    s_lshr_b32 s22, s22, 16
    s_mul_i32 s23, s22, 10
    s_sub_u32 s23, s21, s23
    s_mov_b32 s24, s30
    s_mov_b32 s25, s31
    s_mov_b32 s36, 1280
    s_mul_i32 s37, s23, {4*48*1024}
    s_lshl_b32 s38, s22, 10
    s_add_u32 s37, s37, s38
    s_add_u32 s37, s37, {WS_W2F}
    s_mov_b32 s38, {48*1024}
    s_mov_b32 s39, 512
    s_mov_b32 s40, 2048
    LP_wj:
    s_mov_b32 s26, {640*3072}
    s_mov_b32 s27, 0x20000
    v_lshrrev_b32 v6, 3, v2
    s_lshl_b32 s41, s22, 5
    v_add_u32 v6, s41, v6
    v_mul_lo_u32 v6, v6, s36
    v_lshl_add_u32 v6, v5, 4, v6
    s_lshl_b32 s41, s23, 7
    s_lshl_b32 s42, s36, 3
    """)
    for i in range(4):
        a(f"buffer_load_dwordx4 v[{44+4*i}:{47+4*i}], v6, {SC}, s41 offen")
        if i < 3: a("s_add_u32 s41, s41, s42")
    def fill(val, lo, hi):
        lp = a.label('fill')
        a(f"""
        v_mov_b32 v8, {val}
        v_mov_b32 v9, {val}
        v_mov_b32 v10, {val}
        v_mov_b32 v11, {val}
        s_lshl_b32 s43, s2, 12
        s_add_u32 s43, s43, {lo}
        s_cmp_ge_u32 s43, {hi}
        s_cbranch_scc1 {lp}_x
        {lp}:
        buffer_store_dwordx4 v[8:11], v7, {WS}, s43 offen
        s_add_u32 s43, s43, {256*4096}
        s_cmp_lt_u32 s43, {hi}
        s_cbranch_scc1 {lp}
        {lp}_x:
        s_nop 1
        """)
        assert (hi - lo) % 4096 == 0
    a("v_lshlrev_b32 v7, 4, v0")
    fill(0, WS_FLAG, FLAG_END)
    fill(0, WS_NG, WS_L1R)
    fill(-1, WS_L1R, WS_MR)
    fill(-1, WS_MR + MSLOT, WS_PR)
    fill(-1, WS_G, WS_G + 63*GSLOT)
    fill(-1, WS_O, WS_HID)
    a(f"""
    s_sub_u32 s43, s2, 240
    s_cmp_ge_u32 s43, 8
    s_cbranch_scc1 LP_nom
    s_mul_i32 s43, s43, 10240
    s_add_u32 s43, s43, {WS_MR}
    v_bfe_u32 v8, v0, 2, 2
    v_and_b32 v9, 1, v0
    v_lshl_add_u32 v8, v8, 1, v9
    v_mul_u32_u24 v8, 1280, v8
    v_lshrrev_b32 v9, 4, v0
    v_lshl_add_u32 v8, v9, 5, v8
    v_bfe_u32 v9, v0, 1, 1
    v_lshl_add_u32 v8, v9, 4, v8
    buffer_load_dwordx4 v[60:63], v8, s[32:35], 0 offen
    buffer_load_dwordx4 v[64:67], v8, s[32:35], 0 offen offset:512
    buffer_load_dwordx4 v[68:71], v8, s[32:35], 0 offen offset:1024
    s_waitcnt vmcnt(0)
    """)
    for i in range(60, 72): a(f"v_min_u32 v{i}, -2, v{i}")
    a(f"""
    buffer_store_dwordx4 v[60:63], v7, {WS}, s43 offen
    s_add_u32 s43, s43, 4096
    buffer_store_dwordx4 v[64:67], v7, {WS}, s43 offen
    s_add_u32 s43, s43, 4096
    s_cmp_ge_u32 s16, 2
    s_cbranch_scc1 LP_nom
    buffer_store_dwordx4 v[68:71], v7, {WS}, s43 offen
    LP_nom:
    s_waitcnt vmcnt(0)
    s_cmp_ge_u32 s2, 240
    s_cbranch_scc1 LP_end
    """)
    a(f"""
    s_lshl_b32 s43, s16, 12
    s_add_u32 s43, s43, 8192
    v_lshlrev_b32 v8, 4, v2
    v_add_u32 v9, s43, v8
    """)
    for i in range(4): a(f"ds_write_b128 v9, v[{44+4*i}:{47+4*i}] offset:{i*1024}")
    a(f"""
    v_lshrrev_b32 v10, 4, v2
    v_mul_lo_u32 v10, v10, s39
    v_bfe_u32 v11, v2, 2, 2
    v_lshl_add_u32 v10, v11, 7, v10
    v_and_b32 v11, 3, v2
    v_lshl_add_u32 v10, v11, 3, v10
    v_add_u32 v10, s43, v10
    v_add_u32 v11, s40, v10
    """)
    for n in range(4):
        a(f"ds_read_b64_tr_b16 v[{60+4*n}:{61+4*n}], v10 offset:{n*32}")
        a(f"ds_read_b64_tr_b16 v[{62+4*n}:{63+4*n}], v11 offset:{n*32}")
    a("s_waitcnt lgkmcnt(0)")
    for n in range(4):
        a(f"buffer_store_dwordx4 v[{60+4*n}:{63+4*n}], v8, {WS}, s37 offen")
        if n < 3: a("s_add_u32 s37, s37, s38")
    for i in range(5):
        c = 36 + i
        a(f"""
        v_lshlrev_b32 v{c}, 16, v{c}
        v_mul_f32 v12, {hex(f2u(-LOG2E))}, v{c}
        v_exp_f32 v12, v12
        s_nop 0
        v_add_f32 v12, 1.0, v12
        v_rcp_f32 v12, v12
        s_nop 0
        v_mul_f32 v{c}, v{c}, v12
        v_cvt_pk_bf16_f32 v{c}, v{c}, v{c}
        v_lshlrev_b32 v{c}, 16, v{c}
        """)
        for j in range(4):
            w = 16 + 4*i + j
            a(f"v_lshlrev_b32 v12, 16, v{w}\nv_and_b32 v13, 0xffff0000, v{w}")
            if i == 0: a(f"v_mul_f32 v{76+2*j}, v12, v{c}\nv_mul_f32 v{77+2*j}, v13, v{c}")
            else: a(f"v_fmac_f32 v{76+2*j}, v12, v{c}\nv_fmac_f32 v{77+2*j}, v13, v{c}")
    a(f"""
    v_lshlrev_b32 v12, 5, v0
    ds_write_b128 v12, v[76:79]
    ds_write_b128 v12, v[80:83] offset:16
    s_waitcnt lgkmcnt(0)
    s_barrier
    s_cmp_lg_u32 s16, 0
    s_cbranch_scc1 LP_fin
    v_lshlrev_b32 v12, 2, v0
    """)
    for i in range(32): a(f"ds_read_b32 v{16+i}, v12 offset:{i*256}")
    a("s_waitcnt lgkmcnt(0)")
    for st in (16, 8, 4, 2, 1):
        for i in range(st): a(f"v_add_f32 v{16+i}, v{16+i}, v{16+st+i}")
    a(f"""
    s_mul_i32 s43, s17, {3840*4}
    s_lshl_b32 s44, s18, 8
    s_add_u32 s43, s43, s44
    s_add_u32 s43, s43, {WS_MODP}
    buffer_store_dword v16, v12, {WS}, s43 offen
    LP_fin:
    s_waitcnt vmcnt(0)
    LP_end:
    s_endpgm
    """)
    return kernel_head(name) + a.text(), kernel_desc(name, 88, 64, 88)

LDS_LN1 = 5120
def gen_ln1(name):
    a = A()
    a("s_cmp_ge_u32 s2, 256\ns_cbranch_scc1 LL_end")
    a.srd(4, KA['ws'], WS_SIZE); a.srd(8, KA['x'], 2048*1280)
    a(f"""
    v_lshrrev_b32 v1, 6, v0
    v_and_b32 v2, 63, v0
    v_readfirstlane_b32 s16, v1
    v_lshlrev_b32 v3, 4, v0
    v_mov_b32 v4, 0x40000000
    v_cmp_gt_u32 vcc, 320, v0
    s_lshl_b32 s17, s2, 3
    s_add_u32 s17, s17, s16
    v_cndmask_b32 v5, v4, v3, vcc
    v_cmp_gt_u32 vcc, 40, v2
    v_lshlrev_b32 v6, 5, v2
    s_mul_i32 s18, s17, 1280
    v_cndmask_b32 v6, v4, v6, vcc
    s_waitcnt lgkmcnt(0)
    buffer_load_dwordx4 v[8:11], v6, {SA}, s18 offen
    buffer_load_dwordx4 v[12:15], v6, {SA}, s18 offen offset:16
    s_mov_b32 s19, {WS_MODP}
    """)
    def modsum(base, soff):
        for q in range(4):
            a(f"s_add_u32 s20, s{soff}, {q*3840*4}\nbuffer_load_dwordx4 v[{base+4*q}:{base+4*q+3}], v5, {WS}, s20 offen")
        a("s_waitcnt vmcnt(0)")
        for i in (0, 2):
            a(f"""
            v_pk_add_f32 v[{base+i}:{base+i+1}], v[{base+i}:{base+i+1}], v[{base+4+i}:{base+5+i}]
            v_pk_add_f32 v[{base+8+i}:{base+9+i}], v[{base+8+i}:{base+9+i}], v[{base+12+i}:{base+13+i}]
            v_pk_add_f32 v[{base+i}:{base+i+1}], v[{base+i}:{base+i+1}], v[{base+8+i}:{base+9+i}]
            v_cvt_pk_bf16_f32 v{base+i}, v{base+i}, v{base+i+1}
            v_and_b32 v{base+i+1}, 0xffff0000, v{base+i}
            v_lshlrev_b32 v{base+i}, 16, v{base+i}
            """)
    modsum(16, 19)
    a(f"""
    s_cmp_ge_u32 s16, 5
    s_cbranch_scc1 LL_nw
    ds_write_b128 v3, v[16:19]
    LL_nw:
    s_cmp_ge_u32 s2, 2
    s_cbranch_scc1 LL_nf
    s_add_u32 s21, s2, 1
    s_mul_i32 s21, s21, 5120
    s_add_u32 s19, s21, {WS_MODP}
    """)
    modsum(32, 19)
    a(f"""
    s_add_u32 s21, s21, {WS_MOD}
    buffer_store_dwordx4 v[32:35], v5, {WS}, s21 offen
    LL_nf:
    """)
    a("s_waitcnt lgkmcnt(0)\ns_barrier")
    a("v_min_u32 v7, 39, v2\nv_lshlrev_b32 v7, 6, v7")
    for i in range(4): a(f"ds_read_b128 v[{48+4*i}:{51+4*i}], v7 offset:{i*16}")
    for i in range(4): a(f"ds_read_b128 v[{64+4*i}:{67+4*i}], v7 offset:{2560+i*16}")
    for i in range(8):
        a(f"v_lshlrev_b32 v{16+2*i}, 16, v{8+i}\nv_and_b32 v{17+2*i}, 0xffff0000, v{8+i}")
    a("v_pk_add_f32 v[32:33], v[16:17], v[18:19]")
    for i in range(20, 32, 2): a(f"v_pk_add_f32 v[32:33], v[32:33], v[{i}:{i+1}]")
    a("v_add_f32 v32, v32, v33")
    a.rowsum16(32); a.xlane("v_add_f32", 32, 33)
    a(f"v_mul_f32 v32, {hex(f2u(1/640))}, v32")
    for i in range(16, 32, 2): a(f"v_pk_add_f32 v[{i}:{i+1}], v[{i}:{i+1}], v[32:33] op_sel_hi:[1,0] neg_lo:[0,1] neg_hi:[0,1]")
    a("v_pk_mul_f32 v[34:35], v[16:17], v[16:17]")
    for i in range(18, 32, 2): a(f"v_pk_fma_f32 v[34:35], v[{i}:{i+1}], v[{i}:{i+1}], v[34:35]")
    a("v_add_f32 v34, v34, v35\nv_cndmask_b32 v34, 0, v34, vcc")
    a.rowsum16(34); a.xlane("v_add_f32", 34, 35)
    a(f"""
    v_mov_b32 v35, {hex(f2u(1e-5))}
    v_fmac_f32 v35, {hex(f2u(1/640))}, v34
    v_rsq_f32 v34, v35
    s_waitcnt lgkmcnt(0)
    """)
    for i in range(0, 16, 2):
        a(f"""
        v_pk_add_f32 v[{64+i}:{65+i}], v[{64+i}:{65+i}], 1.0 op_sel_hi:[1,0]
        v_pk_mul_f32 v[{16+i}:{17+i}], v[{16+i}:{17+i}], v[34:35] op_sel_hi:[1,0]
        v_pk_fma_f32 v[{16+i}:{17+i}], v[{16+i}:{17+i}], v[{64+i}:{65+i}], v[{48+i}:{49+i}]
        """)
    order = [0, 4, 1, 5, 2, 6, 3, 7]
    for j, d in enumerate(order): a(f"v_cvt_pk_bf16_f32 v{8+j}, v{16+2*d}, v{17+2*d}")
    a(f"""
    v_lshlrev_b32 v6, 9, v2
    v_cndmask_b32 v6, v4, v6, vcc
    s_lshr_b32 s19, s17, 4
    s_mul_i32 s19, s19, 20480
    s_and_b32 s20, s17, 15
    s_lshl_b32 s20, s20, 4
    s_add_u32 s19, s19, s20
    s_add_u32 s19, s19, {WS_H}
    buffer_store_dwordx4 v[8:11], v6, {WS}, s19 offen
    buffer_store_dwordx4 v[12:15], v6, {WS}, s19 offen offset:256
    s_waitcnt vmcnt(0)
    LL_end:
    s_endpgm
    """)
    return kernel_head(name) + a.text(), kernel_desc(name, 80, 64, 80)

LDS_M1 = 81920 + 5120
def gen_mlp1(name):
    a = A()
    X = 16
    ACC = 96
    XF = 144
    T = 176
    a("s_cmp_ge_u32 s2, 256\ns_cbranch_scc1 LA_end")
    a.srd(4, KA['ws'], WS_SIZE); a.srd(8, KA['b1'], 3072)
    a(f"""
    v_lshrrev_b32 v1, 6, v0
    v_and_b32 v2, 63, v0
    v_readfirstlane_b32 s16, v1
    v_lshlrev_b32 v3, 4, v2
    v_lshlrev_b32 v4, 4, v0
    s_lshr_b32 s17, s2, 3
    s_and_b32 s18, s2, 7
    s_lshl_b32 s19, s17, 2
    s_add_u32 s19, s19, s16
    s_mul_i32 s20, s19, 20480
    s_add_u32 s20, s20, {WS_X1}
    s_lshl_b32 s21, s18, 2
    s_add_u32 s21, s21, s16
    s_mul_i32 s21, s21, 3
    s_mul_i32 s22, s21, 20480
    s_add_u32 s22, s22, {WS_W1F}
    s_mov_b32 s23, {WS_MOD + 3*2560}
    s_add_u32 s28, s23, 4096
    s_waitcnt lgkmcnt(0)
    buffer_load_dwordx4 v[8:11], v4, {WS}, s23 offen
    buffer_load_dwordx4 v[12:15], v3, {WS}, s28 offen
    """)
    for k in range(20):
        a(f"buffer_load_dwordx4 v[{X+4*k}:{X+4*k+3}], v3, {WS}, s20 offen offset:{(k%4)*1024}")
        if k % 4 == 3: a("s_add_u32 s20, s20, 4096")
    a("s_add_u32 s29, s22, 20480\ns_add_u32 s30, s29, 20480")
    def ldB(k):
        for n, s in enumerate((22, 29, 30)):
            r = 12*k + 4*n
            a(f"buffer_load_dwordx4 a[{r}:{r+3}], v3, {WS}, s{s} offen offset:{(k%4)*1024}")
        if k % 4 == 3: a("s_add_u32 s22, s22, 4096\ns_add_u32 s29, s29, 4096\ns_add_u32 s30, s30, 4096")
    for k in range(13): ldB(k)
    a(f"""
    s_waitcnt vmcnt(59)
    v_add_u32 v5, 81920, v4
    v_add_u32 v6, {81920+4096}, v3
    ds_write_b128 v5, v[8:11]
    ds_write_b128 v6, v[12:15]
    s_waitcnt vmcnt(39)
    """)
    for k in range(13, 20): ldB(k)
    a(f"""
    v_lshrrev_b32 v7, 4, v2
    v_lshlrev_b32 v8, 3, v7
    s_lshl_b32 s31, s21, 5
    """)
    for n in range(3): a(f"buffer_load_dwordx2 v[{10+2*n}:{11+2*n}], v8, {SA}, s31 offen offset:{n*32}")
    a(f"v_mov_b32 v{T}, 0\nv_mov_b32 v{T+1}, 0")
    for i in range(80):
        a(f"""
        v_lshlrev_b32 v{T+2}, 16, v{X+i}
        v_and_b32 v{T+3}, 0xffff0000, v{X+i}
        v_pk_add_f32 v[{T}:{T+1}], v[{T}:{T+1}], v[{T+2}:{T+3}]
        """)
    a(f"v_add_f32 v{T}, v{T}, v{T+1}")
    a.xlane("v_add_f32", T, T+1)
    a(f"v_mul_f32 v{T}, {hex(f2u(1/640))}, v{T}\nv_mov_b32 v{T+4}, 0\nv_mov_b32 v{T+5}, 0")
    for i in range(80):
        a(f"""
        v_lshlrev_b32 v{T+2}, 16, v{X+i}
        v_and_b32 v{T+3}, 0xffff0000, v{X+i}
        v_pk_add_f32 v[{T+2}:{T+3}], v[{T+2}:{T+3}], v[{T}:{T+1}] op_sel_hi:[1,0] neg_lo:[0,1] neg_hi:[0,1]
        v_pk_fma_f32 v[{T+4}:{T+5}], v[{T+2}:{T+3}], v[{T+2}:{T+3}], v[{T+4}:{T+5}]
        """)
    a(f"v_add_f32 v{T+4}, v{T+4}, v{T+5}")
    a.xlane("v_add_f32", T+4, T+5)
    a(f"""
    v_mov_b32 v{T+5}, {hex(f2u(1e-5))}
    v_fmac_f32 v{T+5}, {hex(f2u(1/640))}, v{T+4}
    v_rsq_f32 v{T+4}, v{T+5}
    s_waitcnt lgkmcnt(0)
    s_barrier
    v_lshlrev_b32 v9, 5, v7
    v_add_u32 v9, 81920, v9
    s_mul_i32 s31, s16, 20480
    v_add_u32 v5, s31, v3
    """)
    P = T + 8
    def rdP(k):
        p = P + 16*(k % 2)
        a(f"""
        ds_read_b128 v[{p}:{p+3}], v9 offset:{k*128}
        ds_read_b128 v[{p+4}:{p+7}], v9 offset:{k*128+16}
        ds_read_b128 v[{p+8}:{p+11}], v9 offset:{2560+k*128}
        ds_read_b128 v[{p+12}:{p+15}], v9 offset:{2560+k*128+16}
        """)
    rdP(0)
    for k in range(20):
        if k < 19: rdP(k+1)
        a(f"s_waitcnt lgkmcnt({4 if k < 19 else 0})")
        p = P + 16*(k % 2)
        for j in range(4):
            x = X + 4*k + j
            a(f"""
            v_lshlrev_b32 v{T+2}, 16, v{x}
            v_and_b32 v{T+3}, 0xffff0000, v{x}
            v_pk_add_f32 v[{T+2}:{T+3}], v[{T+2}:{T+3}], v[{T}:{T+1}] op_sel_hi:[1,0] neg_lo:[0,1] neg_hi:[0,1]
            v_pk_mul_f32 v[{T+2}:{T+3}], v[{T+2}:{T+3}], v[{T+4}:{T+5}] op_sel_hi:[1,0]
            v_pk_add_f32 v[{p+2*j}:{p+2*j+1}], v[{p+2*j}:{p+2*j+1}], v[{T+2}:{T+3}]
            v_pk_fma_f32 v[{T+2}:{T+3}], v[{T+2}:{T+3}], v[{p+8+2*j}:{p+9+2*j}], v[{p+2*j}:{p+2*j+1}]
            v_cvt_pk_bf16_f32 v{x}, v{T+2}, v{T+3}
            """)
    for k in range(20): a(f"ds_write_b128 v5, v[{X+4*k}:{X+4*k+3}] offset:{k*1024}")
    a("v_add_u32 v6, 40960, v3\ns_waitcnt lgkmcnt(0)\ns_barrier")
    def rdA(k):
        for tt in range(4):
            r = XF + 16*(k % 2) + 4*tt
            a(f"ds_read_b128 v[{r}:{r+3}], v{3 if tt < 2 else 6} offset:{(tt%2)*20480 + k*1024}")
    rdA(0)
    a("s_waitcnt vmcnt(0)")
    for k in range(20):
        if k < 19: rdA(k+1)
        a(f"s_waitcnt lgkmcnt({4 if k < 19 else 0})")
        for n in range(3):
            for tt in range(4):
                d = ACC + 16*n + 4*tt; r = XF + 16*(k % 2) + 4*tt; b = 12*k + 4*n
                a(f"v_mfma_f32_16x16x32_bf16 v[{d}:{d+3}], a[{b}:{b+3}], v[{r}:{r+3}], " + (f"v[{d}:{d+3}]" if k else "0"))
    K1 = 2*math.sqrt(2/math.pi)*LOG2E
    a(f"""
    s_mov_b32 s32, {hex(f2u(-K1*0.044715))}
    s_mov_b32 s33, s32
    v_mov_b32 v{T+6}, {hex(f2u(-K1))}
    v_mov_b32 v{T+7}, v{T+6}
    s_mul_i32 s20, s17, {4*49152}
    s_add_u32 s20, s20, {WS_HID}
    """)
    for n in range(3):
        a(f"""
        v_lshlrev_b32 v{P}, 16, v{10+2*n}
        v_and_b32 v{P+1}, 0xffff0000, v{10+2*n}
        v_lshlrev_b32 v{P+2}, 16, v{11+2*n}
        v_and_b32 v{P+3}, 0xffff0000, v{11+2*n}
        s_add_u32 s34, s21, {n}
        s_lshr_b32 s35, s34, 1
        s_lshl_b32 s35, s35, 10
        s_and_b32 s34, s34, 1
        s_lshl_b32 s34, s34, 3
        s_add_u32 s35, s35, s34
        s_add_u32 s35, s35, s20
        """)
        for tt in range(4):
            d = ACC + 16*n + 4*tt
            for h in (0, 2):
                a(f"""
                v_pk_add_f32 v[{d+h}:{d+h+1}], v[{d+h}:{d+h+1}], v[{P+h}:{P+h+1}]
                v_pk_mul_f32 v[{T}:{T+1}], v[{d+h}:{d+h+1}], v[{d+h}:{d+h+1}]
                v_pk_fma_f32 v[{T}:{T+1}], v[{T}:{T+1}], s[32:33], v[{T+6}:{T+7}]
                v_pk_mul_f32 v[{T}:{T+1}], v[{T}:{T+1}], v[{d+h}:{d+h+1}]
                v_exp_f32 v{T}, v{T}
                v_exp_f32 v{T+1}, v{T+1}
                s_nop 0
                v_pk_add_f32 v[{T}:{T+1}], v[{T}:{T+1}], 1.0 op_sel_hi:[1,0]
                v_rcp_f32 v{T}, v{T}
                v_rcp_f32 v{T+1}, v{T+1}
                s_nop 0
                v_pk_mul_f32 v[{d+h}:{d+h+1}], v[{d+h}:{d+h+1}], v[{T}:{T+1}]
                """)
            a(f"""
            v_cvt_pk_bf16_f32 v{d}, v{d}, v{d+1}
            v_cvt_pk_bf16_f32 v{d+1}, v{d+2}, v{d+3}
            buffer_store_dwordx2 v[{d}:{d+1}], v3, {WS}, s35 offen
            """)
            if tt < 3: a("s_add_u32 s35, s35, 49152")
    a("s_waitcnt vmcnt(0)\nLA_end:\ns_endpgm")
    return kernel_head(name) + a.text(), kernel_desc(name, 496, 64, 256)

LDS_M2 = 81920
def gen_mlp2(name):
    a = A()
    ACC = 16
    NB = 6
    a("s_cmp_ge_u32 s2, 256\ns_cbranch_scc1 LB_end")
    a.srd(4, KA['ws'], WS_SIZE); a.srd(8, KA['b2'], 1280); a.srd(12, KA['out'], 2048*1280)
    a(f"""
    v_lshrrev_b32 v1, 6, v0
    v_and_b32 v2, 63, v0
    v_readfirstlane_b32 s16, v1
    v_lshlrev_b32 v3, 4, v2
    s_lshr_b32 s17, s2, 3
    s_and_b32 s18, s2, 7
    s_mul_i32 s19, s16, 12288
    s_mul_i32 s20, s17, {4*49152}
    s_add_u32 s20, s20, s19
    s_add_u32 s28, s20, {WS_HID}
    s_mul_i32 s20, s18, {5*49152}
    s_add_u32 s20, s20, s19
    s_add_u32 s32, s20, {WS_W2F}
    """)
    for i in range(1, 4): a(f"s_add_u32 s{28+i}, s{27+i}, 49152")
    for i in range(1, 5): a(f"s_add_u32 s{32+i}, s{31+i}, 49152")
    a("s_waitcnt lgkmcnt(0)")
    def ld(k):
        for j in range(9):
            r = 36*(k % NB) + 4*j
            a(f"buffer_load_dwordx4 a[{r}:{r+3}], v3, {WS}, s{28+j} offen offset:{(k%4)*1024}")
        if k % 4 == 3:
            for j in range(9): a(f"s_add_u32 s{28+j}, s{28+j}, 4096")
    for k in range(NB): ld(k)
    for i in range(5):
        b = 96 + 4*i
        a(f"""
        v_add_u32 v4, {256*i}, v0
        v_mul_u32_u24 v5, 3277, v4
        v_lshrrev_b32 v5, 16, v5
        v_mul_u32_u24 v6, 20, v5
        v_sub_u32 v6, v4, v6
        v_lshrrev_b32 v7, 4, v5
        v_and_b32 v8, 15, v5
        v_mul_u32_u24 v9, 5120, v7
        v_lshl_add_u32 v9, v6, 8, v9
        v_lshl_add_u32 v{b}, v8, 4, v9
        s_mul_i32 s20, s18, 20
        v_add_u32 v6, s20, v6
        v_lshlrev_b32 v{b+3}, 3, v6
        s_lshl_b32 s20, s17, 6
        v_add_u32 v9, s20, v5
        v_mul_u32_u24 v9, 1280, v9
        v_add_u32 v{b+2}, v9, v{b+3}
        v_mul_u32_u24 v9, 20480, v7
        v_lshl_add_u32 v9, v8, 4, v9
        v_lshrrev_b32 v10, 1, v6
        v_lshl_add_u32 v9, v10, 8, v9
        v_and_b32 v10, 1, v6
        v_lshl_add_u32 v{b+1}, v10, 3, v9
        """)
    for k in range(12):
        rem = min(NB - 1, 11 - k)
        a(f"s_waitcnt vmcnt({9*rem})")
        r0 = 36*(k % NB)
        for tt in range(4):
            for n in range(5):
                d = ACC + 20*tt + 4*n
                a(f"v_mfma_f32_16x16x32_bf16 v[{d}:{d+3}], a[{r0+16+4*n}:{r0+19+4*n}], a[{r0+4*tt}:{r0+4*tt+3}], " + (f"v[{d}:{d+3}]" if k else "0"))
        if k + NB < 12: ld(k + NB)
    a(f"""
    s_mul_i32 s20, s17, {4*20480}
    s_add_u32 s20, s20, {WS_X1}
    s_mov_b32 s21, {WS_MOD + 5*2560}
    """)
    for i in range(5):
        b = 96 + 4*i; e = 116 + 8*i
        a(f"""
        buffer_load_dwordx2 v[{e}:{e+1}], v{b+1}, {WS}, s20 offen
        buffer_load_dwordx2 v[{e+2}:{e+3}], v{b+3}, {SA}, 0 offen
        v_lshlrev_b32 v4, 1, v{b+3}
        buffer_load_dwordx4 v[{e+4}:{e+7}], v4, {WS}, s21 offen
        """)
    a("s_mul_i32 s22, s16, 20480\nv_add_u32 v5, s22, v3")
    for j in range(20): a(f"ds_write_b128 v5, v[{ACC+4*j}:{ACC+4*j+3}] offset:{j*1024}")
    a("s_waitcnt lgkmcnt(0)\ns_barrier")
    for i in range(5):
        for w in range(4):
            r = ACC + 16*i + 4*w
            a(f"ds_read_b128 v[{r}:{r+3}], v{96+4*i} offset:{w*20480}")
        if i == 2: a("s_waitcnt lgkmcnt(4)")
    a("s_waitcnt vmcnt(0) lgkmcnt(0)")
    for i in range(5):
        r = ACC + 16*i; e = 116 + 8*i
        for h in (0, 2):
            a(f"""
            v_pk_add_f32 v[{r+h}:{r+h+1}], v[{r+h}:{r+h+1}], v[{r+4+h}:{r+5+h}]
            v_pk_add_f32 v[{r+8+h}:{r+9+h}], v[{r+8+h}:{r+9+h}], v[{r+12+h}:{r+13+h}]
            v_lshlrev_b32 v4, 16, v{e+2+h//2}
            v_and_b32 v5, 0xffff0000, v{e+2+h//2}
            v_pk_add_f32 v[{r+h}:{r+h+1}], v[{r+h}:{r+h+1}], v[{r+8+h}:{r+9+h}]
            v_lshlrev_b32 v6, 16, v{e+h//2}
            v_and_b32 v7, 0xffff0000, v{e+h//2}
            v_pk_add_f32 v[{r+h}:{r+h+1}], v[{r+h}:{r+h+1}], v[4:5]
            v_pk_fma_f32 v[{r+h}:{r+h+1}], v[{r+h}:{r+h+1}], v[{e+4+h}:{e+5+h}], v[6:7]
            """)
        a(f"""
        v_cvt_pk_bf16_f32 v{r}, v{r}, v{r+1}
        v_cvt_pk_bf16_f32 v{r+1}, v{r+2}, v{r+3}
        buffer_store_dwordx2 v[{r}:{r+1}], v{96+4*i+2}, {SB}, 0 offen
        """)
    a("s_waitcnt vmcnt(0)\nLB_end:\ns_endpgm")
    return kernel_head(name) + a.text(), kernel_desc(name, 160 + 216, 64, 160)
```

```python
import math, struct
from asmlib import *
from layout import *

def f2u(f): return struct.unpack('<I', struct.pack('<f', f))[0]
CSC = f2u(192 ** -0.5 * math.log2(math.e))
NEGBIG = f2u(-1e9 / (192 ** -0.5))
BIG = 1 << 20

S_WAVE, S_X, S_C, S_MODE, S_S = 16, 17, 18, 19, 20
S_CNT, S_LIM = 37, 38
WS = "s[4:7]"; SA = "s[8:11]"; SB = "s[12:15]"

class Cfg:
    dbg = 0
    trace = 0
    fake_xcc = 0
    tokpath = 1
    nomfma = 0
    slQW = 4; slQC = 10; slQD = 8; slO = 1; slQ3 = 5
    n1 = 6; nA = 16; wA = 0
    depthG = 2; depthL1 = 3; depthM = 3; depthN = 3
    nG = 1; posG = 2; early = 0; lgN = 8; chkN = 5; dG = 0
    nL1 = 1; padL1 = 0
    nM = 1; dM = 14; pace = 0; nowr = 0; nold = 0; light = 0; g2M = 25; g2L = 0; all12 = 1; dN1 = 16

def gen_main(cfg, name):
    a = Asm()
    slow = []
    ool = []

    def nop(n):
        while n > 0:
            k = min(n, 16); a(f"s_nop {k-1}"); n -= k

    def lstore(instrs):
        if isinstance(instrs, str): instrs = [instrs]
        ls, lb = a.label('slow'), a.label('back')
        a(f"s_cmp_lg_u32 s{S_MODE}, 0\ns_cbranch_scc1 {ls}")
        for i in instrs: a(i)
        a(lb + ":")
        slow.append((ls, lb, [i + " sc1" for i in instrs]))

    def timeout(done):
        a(f"s_sub_u32 s{S_CNT}, s{S_CNT}, 1\ns_cbranch_scc1 {done}")

    def after_wait():
        a(f"s_cmp_lt_i32 s{S_CNT}, 0\ns_cselect_b32 s{S_LIM}, 4, s{S_LIM}")

    def scout(vs, voff, soff, imm=0):
        lp, dn = a.label('sc'), a.label('scd')
        a(f"""
        v_mov_b32 v{vs}, -1
        s_mov_b64 exec, 1
        s_mov_b32 s{S_CNT}, s{S_LIM}
        {lp}:
        buffer_load_dword v{vs}, v{voff}, {WS}, s{soff} offen offset:{imm} sc1
        """)
        timeout(dn)
        a(f"""
        s_waitcnt vmcnt(1)
        v_cmp_eq_u32 vcc, -1, v{vs}
        s_cbranch_vccnz {lp}
        {dn}:
        s_mov_b64 exec, -1
        """)

    def nscout(vs, voff, sneed, sexec):
        lp, dn = a.label('ns'), a.label('nsd')
        a(f"""
        v_mov_b32 v{vs}, 0
        s_mov_b64 exec, s[{sexec}:{sexec+1}]
        s_mov_b32 s{S_CNT}, s{S_LIM}
        {lp}:
        buffer_load_dword v{vs}, v{voff}, {WS}, 0 offen sc1
        """)
        timeout(dn)
        a(f"""
        s_waitcnt vmcnt({cfg.depthN-1})
        v_cmp_gt_u32 vcc, s{sneed}, v{vs}
        s_cbranch_vccnz {lp}
        {dn}:
        s_mov_b64 exec, -1
        """)

    def lds_wait(vaddr, off, nflags, vtmp, sneed, extra=None, sleep=0):
        lp, dn, st = a.label('lw'), a.label('lwd'), a.label('lws')
        a(f"s_mov_b32 s{S_CNT}, s{S_LIM}")
        if sleep: a(f"s_branch {st}\n{lp}:\ns_sleep {sleep}\n{st}:")
        else: a(f"{lp}:")
        if nflags == 1: a(f"ds_read_b32 v{vtmp}, v{vaddr} offset:{off}")
        elif nflags == 2: a(f"ds_read_b64 v[{vtmp}:{vtmp+1}], v{vaddr} offset:{off}")
        else: a(f"ds_read_b128 v[{vtmp}:{vtmp+3}], v{vaddr} offset:{off}")
        ne = extra() if extra else 0
        timeout(dn)
        a(f"s_waitcnt lgkmcnt({ne})")
        if nflags == 2:
            a(f"v_min_u32 v{vtmp}, v{vtmp}, v{vtmp+1}")
        if nflags == 4:
            a(f"v_min3_u32 v{vtmp}, v{vtmp}, v{vtmp+1}, v{vtmp+2}\nv_min_u32 v{vtmp}, v{vtmp}, v{vtmp+3}")
        a(f"v_cmp_gt_u32 vcc, s{sneed}, v{vtmp}\ns_cbranch_vccnz {lp}\n{dn}:")

    def gather(loads, vchk, compute=None, depth=2, shadow=None, young=0):
        rt, lp, ex, dn = a.label('gr'), a.label('g'), a.label('gx'), a.label('gd')
        n = len(loads)
        def issue(o):
            for (d, vo, so, im) in loads:
                o(f"buffer_load_dwordx4 v[{d}:{d+3}], v{vo}, {WS}, s{so} offen offset:{im} sc1")
        def chk(o, i):
            d = loads[i][0]
            if i == 0:
                o(f"v_max3_u32 v{vchk}, v{d}, v{d+1}, v{d+2}\nv_max_u32 v{vchk}, v{vchk}, v{d+3}")
            else:
                o(f"v_max3_u32 v{vchk}, v{vchk}, v{d}, v{d+1}\nv_max3_u32 v{vchk}, v{vchk}, v{d+2}, v{d+3}")
        issue(a)
        if shadow: shadow()
        for i in range(n):
            a(f"s_waitcnt vmcnt({n-1-i+young})")
            chk(a, i)
            if compute: compute(a, i)
        a(f"v_cmp_eq_u32 vcc, -1, v{vchk}\ns_cbranch_vccnz {rt}\n{dn}:")
        o = Asm(); o.uid = a.uid + 1000
        o(f"{rt}:\ns_mov_b32 s{S_CNT}, s{S_LIM}\n{lp}:\ns_mov_b64 exec, vcc")
        issue(o)
        o(f"s_sub_u32 s{S_CNT}, s{S_CNT}, 1\ns_cbranch_scc1 {ex}\ns_waitcnt vmcnt({n*(depth-1)})")
        for i in range(n): chk(o, i)
        o(f"v_cmp_eq_u32 vcc, -1, v{vchk}\ns_cbranch_vccnz {lp}\n{ex}:\ns_mov_b64 exec, -1")
        o(f"s_cmp_lt_i32 s{S_CNT}, 0\ns_cselect_b32 s{S_LIM}, 4, s{S_LIM}")
        if compute:
            for i in range(n): compute(o, i)
            o("s_nop 1")
        o(f"s_branch {dn}")
        ool.append(o)

    def gather2(loads, vchk, compute=None, shadow=None, pad=0):
        lp, dn = a.label('g2'), a.label('g2d')
        n = len(loads)
        def issue():
            for (d, vo, so, im) in loads:
                a(f"buffer_load_dwordx4 v[{d}:{d+3}], v{vo}, {WS}, s{so} offen offset:{im} sc1")
        issue()
        if shadow: shadow()
        nop(pad)
        a(f"s_mov_b32 s{S_CNT}, s{S_LIM}\n{lp}:")
        issue()
        timeout(dn)
        for i in range(n):
            d = loads[i][0]
            a(f"s_waitcnt vmcnt({2*n-1-i})")
            if i == 0: a(f"v_max3_u32 v{vchk}, v{d}, v{d+1}, v{d+2}\nv_max_u32 v{vchk}, v{vchk}, v{d+3}")
            else: a(f"v_max3_u32 v{vchk}, v{vchk}, v{d}, v{d+1}\nv_max3_u32 v{vchk}, v{vchk}, v{d+2}, v{d+3}")
            if compute: compute(a, i)
        a(f"v_cmp_eq_u32 vcc, -1, v{vchk}\ns_cbranch_vccnz {lp}\n{dn}:")

    def gather_blind(loads, vchk, compute, depth, pad=0):
        lp, ex = a.label('gb'), a.label('gbx')
        n = len(loads)
        for (d, vo, so, im) in loads:
            for j in range(4): a(f"v_mov_b32 v{d+j}, -1")
        a(f"s_mov_b32 s{S_CNT}, s{S_LIM}\ns_mov_b64 vcc, -1\n{lp}:\ns_mov_b64 exec, vcc")
        for (d, vo, so, im) in loads:
            a(f"buffer_load_dwordx4 v[{d}:{d+3}], v{vo}, {WS}, s{so} offen offset:{im} sc1")
        a(f"s_sub_u32 s{S_CNT}, s{S_CNT}, 1\ns_cbranch_scc1 {ex}")
        if pad: nop(pad)
        a(f"s_waitcnt vmcnt({min(63, n*(depth-1))})")
        for i in range(n):
            d = loads[i][0]
            if i == 0: a(f"v_max3_u32 v{vchk}, v{d}, v{d+1}, v{d+2}\nv_max_u32 v{vchk}, v{vchk}, v{d+3}")
            else: a(f"v_max3_u32 v{vchk}, v{vchk}, v{d}, v{d+1}\nv_max3_u32 v{vchk}, v{vchk}, v{d+2}, v{d+3}")
        a(f"v_cmp_eq_u32 vcc, -1, v{vchk}\ns_cbranch_vccnz {lp}\n{ex}:\ns_mov_b64 exec, -1")
        for i in range(n): compute(a, i)
        a("s_nop 1")

    def wait_flags(vtmp, voff, sneed):
        lp, dn = a.label('f'), a.label('fd')
        a(f"""
        s_mov_b32 s{S_CNT}, s{S_LIM}
        {lp}:
        buffer_load_dword v{vtmp}, v{voff}, {WS}, 0 offen sc1
        s_waitcnt vmcnt(0)
        v_cmp_gt_u32 vcc, s{sneed}, v{vtmp}
        s_cbranch_vccz {dn}
        """)
        timeout(dn)
        a(f"s_sleep 1\ns_branch {lp}\n{dn}:")
        after_wait()

    def srd(dst, karg, size):
        a(f"""
        s_load_dwordx2 s[{dst}:{dst+1}], s[0:1], {karg}
        s_mov_b32 s{dst+2}, {size}
        s_mov_b32 s{dst+3}, 0x20000
        s_waitcnt lgkmcnt(0)
        """)

    def mfma32(d, x, y, c, a=a): a(f"v_mfma_f32_16x16x32_bf16 v[{d}:{d+3}], v[{x}:{x+3}], v[{y}:{y+3}], " + (f"v[{c}:{c+3}]" if c is not None else "0"))
    def mfma16(d, x, y, c, a=a): a(f"v_mfma_f32_16x16x16_bf16 v[{d}:{d+3}], v[{x}:{x+1}], v[{y}:{y+1}], " + (f"v[{c}:{c+3}]" if c is not None else "0"))
    def cvt(d, x, y): a(f"v_cvt_pk_bf16_f32 v{d}, v{x}, v{y}")
    def san(d): a(f"v_min_u32 v{d}, -2, v{d}")

    def lanes():
        a("""
        v_lshrrev_b32 v1, 4, v0
        v_and_b32 v2, 15, v0
        v_and_b32 v3, 7, v0
        v_bfe_u32 v4, v0, 3, 1
        v_lshlrev_b32 v5, 4, v0
        """)

    def build_sel(vall, vA=None, vLo=None, vHi=None, t0=6, t1=7):
        a(f"""
        v_and_b32 v{t0}, 1, v0
        v_lshlrev_b32 v{t0}, 4, v{t0}
        v_mov_b32 v{t1}, 0x3f80
        v_lshlrev_b32 v{t0}, v{t0}, v{t1}
        v_lshrrev_b32 v{t1}, 1, v3
        """)
        for j in range(4):
            a(f"v_cmp_eq_u32 vcc, {j}, v{t1}\ns_nop 1\nv_cndmask_b32 v{vall+j}, 0, v{t0}, vcc")
        if vA is not None:
            a(f"v_and_b32 v{t0}, 1, v1\nv_cmp_eq_u32 vcc, v{t0}, v4\ns_nop 1")
            for j in range(4): a(f"v_cndmask_b32 v{vA+j}, 0, v{vall+j}, vcc")
        if vLo is not None:
            a(f"v_cmp_gt_u32 vcc, 2, v1\ns_nop 1")
            for j in range(4): a(f"v_cndmask_b32 v{vLo+j}, 0, v{vA+j}, vcc")
            a(f"v_cmp_le_u32 vcc, 2, v1\ns_nop 1")
            for j in range(4): a(f"v_cndmask_b32 v{vHi+j}, 0, v{vA+j}, vcc")

    def build_selm(vM, t0=6, t1=7):
        a(f"""
        v_and_b32 v{t0}, 1, v0
        v_lshlrev_b32 v{t0}, 4, v{t0}
        v_mov_b32 v{t1}, 0x3f80
        v_lshlrev_b32 v{t0}, v{t0}, v{t1}
        v_bfe_u32 v{t1}, v0, 1, 3
        """)
        for j in range(4):
            a(f"v_cmp_eq_u32 vcc, {2*j}, v{t1}\ns_nop 1\nv_cndmask_b32 v{vM+j}, 0, v{t0}, vcc")

    def xlane(op, v, t):
        a(f"""
        v_mov_b32 v{t}, v{v}
        s_nop 1
        v_permlane32_swap_b32 v{t}, v{v}
        {op} v{v}, v{v}, v{t}
        v_mov_b32 v{t}, v{v}
        s_nop 1
        v_permlane16_swap_b32 v{t}, v{v}
        {op} v{v}, v{v}, v{t}
        """)

    def read_mode():
        a(f"""
        v_mov_b32 v6, {LDS_MISC}
        ds_read_b32 v6, v6 offset:8
        s_waitcnt lgkmcnt(0)
        v_readfirstlane_b32 s{S_MODE}, v6
        """)

    def poll_counters():
        lp, dn = a.label('pc'), a.label('pcd')
        a(f"""
        v_and_b32 v6, 7, v0
        v_lshlrev_b32 v6, 4, v6
        s_mov_b32 s{S_CNT}, s{S_LIM}
        {lp}:
        global_load_dword v7, v6, s[22:23] sc1
        s_waitcnt vmcnt(0)
        """)
        for x in range(8): a(f"v_readlane_b32 s{24+x}, v7, {x}")
        a("s_add_u32 s21, s24, s25")
        for x in range(2, 8): a(f"s_add_u32 s21, s21, s{24+x}")
        a(f"s_cmp_ge_u32 s21, 256\ns_cbranch_scc1 {dn}")
        timeout(dn)
        a(f"s_sleep 2\ns_branch {lp}\n{dn}:")

    def mode_wave():
        poll_counters()
        a("s_mov_b32 s21, 0")
        for x in range(8):
            a(f"s_cmp_lg_u32 s{24+x}, 32\ns_cselect_b32 s21, 1, s21")
        a(f"""
        v_mov_b32 v6, {LDS_MISC}
        v_mov_b32 v7, s21
        ds_write_b32 v6, v7 offset:8
        s_waitcnt lgkmcnt(0)
        """)

    def stamp(e):
        if cfg.trace: a(f"s_memrealtime s[{70+2*e}:{71+2*e}]")
    def stampc(e):
        if cfg.trace: a(f"s_memtime s[{70+2*e}:{71+2*e}]")
    def stamp_commit(evs, vbase):
        if cfg.trace:
            a(f"s_waitcnt lgkmcnt(0)\ns_mov_b32 m0, s{S_S}\ns_nop 0")
            for e in evs: a(f"v_writelane_b32 v{vbase+e}, s{70+2*e}, m0")
    def stamp_dump(evs, vbase, slot0):
        if cfg.trace:
            a(f"""
            s_lshl_b32 s21, s{S_X}, 5
            s_add_u32 s21, s21, s{S_C}
            s_lshl_b32 s21, s21, 13
            s_add_u32 s21, s21, {WS_DBG + (1<<20)}
            v_lshlrev_b32 v6, 2, v0
            """)
            for e in evs:
                a(f"s_add_u32 s24, s21, {(slot0+e)*256}\nbuffer_store_dword v{vbase+e}, v6, {WS}, s24 offen")
            a("s_waitcnt vmcnt(0)")

    a(f"""
    s_cmp_ge_u32 s2, 256
    s_cbranch_scc1 LM_end
    s_load_dwordx2 s[4:5], s[0:1], {KA['ws']}
    s_load_dwordx2 s[22:23], s[0:1], {KA['dbg']}
    s_getreg_b32 s{S_X}, hwreg(HW_REG_XCC_ID, 0, 4)
    v_lshrrev_b32 v1, 6, v0
    s_mov_b32 s6, {WS_SIZE}
    v_readfirstlane_b32 s{S_WAVE}, v1
    v_and_b32 v0, 63, v0
    s_mov_b32 s7, 0x20000
    s_and_b32 s{S_X}, s{S_X}, 7
    s_mov_b32 s{S_LIM}, {BIG}
    s_mov_b32 s{S_MODE}, 0
    """)
    if cfg.fake_xcc:
        a(f"s_mul_i32 s{S_X}, s2, 7\ns_lshr_b32 s{S_X}, s{S_X}, 8")
    a(f"""
    s_waitcnt lgkmcnt(0)
    s_cmp_lg_u32 s{S_WAVE}, 0
    s_cbranch_scc1 LM_notick
    v_mov_b32 v2, 1
    s_lshl_b32 s21, s{S_X}, 4
    v_mov_b32 v3, s21
    s_mov_b64 exec, 1
    global_atomic_add v4, v3, v2, s[22:23] sc0 sc1
    s_waitcnt vmcnt(0)
    v_readfirstlane_b32 s{S_C}, v4
    s_mov_b64 exec, -1
    s_cmp_lt_u32 s{S_C}, 32
    s_cbranch_scc1 LM_haverole
    v_mov_b32 v3, 128
    s_mov_b64 exec, 1
    global_atomic_add v4, v3, v2, s[22:23] sc0 sc1
    s_waitcnt vmcnt(0)
    v_readfirstlane_b32 s32, v4
    s_mov_b64 exec, -1
    """)
    poll_counters()
    a(f"s_mov_b32 s{S_X}, 0\ns_mov_b32 s{S_C}, 0")
    for x in range(8):
        nx = a.label('nx')
        a(f"""
        s_min_u32 s21, s{24+x}, 32
        s_sub_u32 s33, 32, s21
        s_cmp_ge_u32 s32, s33
        s_cbranch_scc1 {nx}
        s_mov_b32 s{S_X}, {x}
        s_add_u32 s{S_C}, s21, s32
        s_branch LM_haverole
        {nx}:
        s_sub_u32 s32, s32, s33
        """)
    a(f"""
    LM_haverole:
    v_mov_b32 v5, {LDS_MISC}
    v_mov_b32 v6, s{S_X}
    v_mov_b32 v7, s{S_C}
    ds_write_b64 v5, v[6:7]
    v_mov_b32 v6, 0
    v_lshl_add_u32 v5, v0, 2, v5
    s_mov_b32 exec_hi, 0
    ds_write_b32 v5, v6 offset:16
    s_mov_b64 exec, -1
    s_waitcnt lgkmcnt(0)
    LM_notick:
    s_barrier
    v_mov_b32 v5, {LDS_MISC}
    ds_read_b64 v[6:7], v5
    s_waitcnt lgkmcnt(0)
    v_readfirstlane_b32 s{S_X}, v6
    v_readfirstlane_b32 s{S_C}, v7
    s_nop 1
    s_and_b32 s{S_X}, s{S_X}, 7
    s_and_b32 s{S_C}, s{S_C}, 31
    """)
    lanes()
    a(f"""
    s_cmp_lt_u32 s{S_C}, 20
    s_cbranch_scc1 LM_VO
    """)

    VW = 96; VA = 56; ACC = 40; VIDX = 39; VG = 24
    V_MG, V_ML, V_TOK, V_CHK, V_SC, V_OUT, V_OUT2, V_DMA = 8, 9, 10, 11, 12, 13, 14, 15
    V_MISC, V_MGL = 38, 37
    F_HO, F_MST, F_L1D, F_GST, F_MW, F_Y, F_TD, F_D2, F_D3, F_GIS = 16, 20, 24, 28, 32, 48, 64, 80, 84, 88
    def w_setup():
        a(f"""
        s_lshl_b32 s21, s{S_WAVE}, 10
        v_add_u32 v{V_MG}, s21, v5
        v_add_u32 v{V_ML}, {LDS_M}, v5
        v_mov_b32 v{VIDX}, 0x4444
        v_mov_b32 v6, 0xeeee
        v_and_b32 v7, 2, v0
        v_cmp_ne_u32 vcc, 0, v7
        s_mul_i32 s21, s{S_WAVE}, 10240
        s_nop 0
        v_cndmask_b32 v{VIDX}, v{VIDX}, v6, vcc
        v_mov_b32 v{V_MISC}, {LDS_MISC}
        v_add_u32 v{V_DMA}, s21, v5
        s_mul_i32 s40, s{S_X}, 10240
        s_add_u32 s40, s40, {WS_MR}
        """)
    def dma_tokens(sseg):
        a(f"""
        s_mul_i32 s24, s{sseg}, 40960
        s_add_u32 s24, s24, {WS_H}
        s_and_b32 s25, s{sseg}, 1
        s_mul_i32 s25, s25, 40960
        s_mul_i32 s26, s{S_WAVE}, 10240
        s_add_u32 s25, s25, s26
        """)
        for blk in range(3):
            a(f"s_add_u32 m0, s25, {LDS_TOK + blk*4096}")
            if blk: a("s_add_u32 s24, s24, 4096")
            else: a("s_nop 0")
            for i in range(4 if blk < 2 else 2):
                a(f"buffer_load_dwordx4 v{V_DMA}, {WS}, s24 offen offset:{i*1024} lds")
    def dma_tokens_all(sseg, lo=0, hi=40960):
        lp = a.label('dma')
        a(f"""
        s_mul_i32 s28, s{sseg}, 40960
        s_add_u32 s28, s28, {WS_H + lo}
        s_and_b32 s29, s{sseg}, 1
        s_mul_i32 s29, s29, 40960
        s_add_u32 s30, s29, {LDS_TOK + hi}
        s_add_u32 s29, s29, {LDS_TOK + lo}
        {lp}:
        s_mov_b32 m0, s29
        s_add_u32 s29, s29, 4096
        """)
        for i in range(4):
            a(f"buffer_load_dwordx4 v5, {WS}, s28 offen offset:{i*1024} lds")
        a(f"""
        s_add_u32 s28, s28, 4096
        s_cmp_lt_u32 s29, s30
        s_cbranch_scc1 {lp}
        """)
    def m_addr():
        a(f"""
        s_and_b32 s21, s{S_S}, 3
        s_mul_i32 s21, s21, {MSLOT}
        s_add_u32 s24, s21, s40
        s_add_u32 s25, s24, 4096
        s_add_u32 s26, s24, 8192
        """)
        for i in range(8): a(f"v_mov_b32 v{ACC+i}, 0")
    def smf(k):
        for t in range(2):
            w = VW + 80*t + 8*k
            a(f"v_smfmac_f32_16x16x64_bf16 v[{ACC+4*t}:{ACC+4*t+3}], v[{VA+4*k}:{VA+4*k+3}], v[{w}:{w+7}], v{VIDX}")
    def halfsum():
        for t in range(2):
            a(f"v_pk_add_f32 v[{ACC+4*t}:{ACC+4*t+1}], v[{ACC+4*t}:{ACC+4*t+1}], v[{ACC+4*t+2}:{ACC+4*t+3}]")
    def token_pass(w_is_A, pause_at=None, pause=None):
        def rd(k):
            for tt in range(2):
                s = VA + 4*((2*k+tt) % 10)
                a(f"ds_read_b128 v[{s}:{s+3}], v{V_TOK} offset:{tt*20480 + k*1024}")
        for k in range(4): rd(k)
        for k in range(20):
            if k == pause_at: pause()
            if k + 4 < 20:
                rd(k+4); a("s_waitcnt lgkmcnt(8)")
            else:
                a(f"s_waitcnt lgkmcnt({2*(19-k)})")
            for tt in range(2):
                s = VA + 4*((2*k+tt) % 10)
                for t in range(2):
                    w = VW + 80*t + 4*k
                    d = ACC + 8*t + 4*tt
                    if cfg.nomfma and k: continue
                    if w_is_A: mfma32(d, w, s, d if k else None)
                    else: mfma32(d, s, w, d if k else None)
        nop(8)
    def tok_base():
        a(f"""
        s_add_u32 s21, s{S_S}, 1
        s_and_b32 s27, s21, 1
        s_mul_i32 s24, s27, 40960
        v_add_u32 v{V_TOK}, s24, v5
        """)

    a(f"""
    s_sub_u32 s21, s{S_C}, 20
    s_mul_i32 s24, s21, 11
    s_lshr_b32 s24, s24, 5
    s_mul_i32 s25, s24, 3
    s_sub_u32 s42, s21, s25
    s_lshl_b32 s41, s{S_X}, 2
    s_add_u32 s41, s41, s24
    """)
    a(f"""
    v_lshrrev_b32 v8, 3, v0
    s_mul_i32 s21, s{S_WAVE}, 80
    v_add_u32 v8, s21, v8
    s_mov_b32 s21, 12288
    v_mul_lo_u32 v8, v8, s21
    s_mul_i32 s24, s41, 384
    s_lshl_b32 s25, s42, 7
    s_add_u32 s24, s24, s25
    v_lshl_add_u32 v8, v3, 4, v8
    v_add_u32 v8, s24, v8
    """)
    a(f"""
    v_lshrrev_b32 v6, 1, v1
    v_lshlrev_b32 v9, 4, v6
    v_and_b32 v6, 1, v1
    v_lshl_add_u32 v9, v6, 2, v9
    v_bfe_u32 v6, v0, 2, 1
    v_add_u32 v9, v9, v6
    v_lshl_add_u32 v9, v4, 3, v9
    v_lshlrev_b32 v9, 7, v9
    v_and_b32 v6, 3, v0
    v_lshl_add_u32 v9, v6, 3, v9
    s_lshl_b32 s21, s{S_WAVE}, 5
    v_add_u32 v9, s21, v9
    v_add_u32 v10, 40960, v9
    """)
    for mat, key in enumerate(('Wq', 'Wk')):
        srd(8, KA[key], 640*12288)
        lp = a.label('stg'); sk = a.label('stgs')
        a(f"""
        s_mul_i32 s24, s{S_WAVE}, 10240
        s_mov_b32 s25, 0
        {lp}:
        s_mov_b32 m0, s24
        s_add_u32 s24, s24, 1024
        buffer_load_dwordx4 v8, {SA}, s25 offen lds
        s_add_u32 s25, s25, 98304
        s_cmp_lt_u32 s25, {98304*10}
        s_cbranch_scc1 {lp}
        s_waitcnt vmcnt(0)
        s_barrier
        s_cmp_ge_u32 s{S_WAVE}, 4
        s_cbranch_scc1 {sk}
        """)
        for k in range(20):
            for d in range(2):
                r = VW + 80*mat + 4*k + 2*d
                a(f"ds_read_b64_tr_b16 v[{r}:{r+1}], v{9 if k < 10 else 10} offset:{(k % 10)*4096 + d*256}")
        a(f"s_waitcnt lgkmcnt(0)\n{sk}:\ns_barrier")
    a(f"""
    s_cmp_eq_u32 s{S_WAVE}, 4
    s_cbranch_scc1 LQ_C0
    s_cmp_eq_u32 s{S_WAVE}, 5
    s_cbranch_scc1 LQ_C1
    s_cmp_eq_u32 s{S_WAVE}, 6
    s_cbranch_scc1 LQ_C2
    s_cmp_eq_u32 s{S_WAVE}, 7
    s_cbranch_scc1 LQ_C3
    """)
    w_setup()
    a(f"""
    s_mov_b32 s28, 0
    """)
    dma_tokens(28)
    a("s_mov_b32 s28, 1")
    dma_tokens(28)
    a(f"""
    v_mul_u32_u24 v{V_OUT}, 384, v1
    v_lshl_add_u32 v{V_OUT}, v2, 4, v{V_OUT}
    s_mul_i32 s21, s{S_WAVE}, 1536
    s_add_u32 s21, s21, {LDS_QKM}
    v_add_u32 v{V_OUT}, s21, v{V_OUT}
    s_lshr_b32 s21, s{S_WAVE}, 1
    s_lshl_b32 s21, s21, 11
    s_and_b32 s24, s{S_WAVE}, 1
    s_lshl_b32 s24, s24, 3
    s_add_u32 s21, s21, s24
    s_add_u32 s21, s21, {LDS_QX}
    v_add_u32 v{V_OUT2}, s21, v5
    v_lshrrev_b32 v6, 1, v0
    v_lshlrev_b32 v6, 3, v6
    v_and_b32 v7, 1, v0
    v_add_u32 v6, v6, v7
    s_lshl_b32 s21, s{S_WAVE}, 1
    v_add_u32 v6, s21, v6
    s_lshl_b32 s21, s{S_X}, 5
    s_add_u32 s21, s21, s{S_C}
    s_lshl_b32 s21, s21, 7
    s_add_u32 s21, s21, {WS_NL}
    v_lshlrev_b32 v6, 2, v6
    v_add_u32 v36, s21, v6
    s_cmp_lt_u32 s{S_WAVE}, 2
    s_cselect_b32 s44, 63, 15
    s_mov_b32 s45, 0
    s_waitcnt vmcnt(0)
    s_barrier
    s_mov_b32 s{S_S}, -1
    s_branch LQ_Wtok
    LQ_Wloop:
    """)
    a("s_setprio 2")
    m_addr()
    stamp(4)
    for w in range(1, 4):
        a(f"s_cmp_eq_u32 s{S_WAVE}, {w}\ns_cbranch_scc1 LQ_W{w}")
    for w in range(4):
        own = [w, w+4] + ([w+8] if w < 2 else [])
        a(f"LQ_W{w}:")
        if cfg.nM: nscout(V_SC, 36, S_S, 44)
        else: scout(V_SC, V_MG, 24)
        stamp(3)
        if cfg.g2M: gather2([(VA+4*k, V_MG, 24+i, 0) for i, k in enumerate(own)], V_CHK, pad=cfg.g2M)
        else: gather([(VA+4*k, V_MG, 24+i, 0) for i, k in enumerate(own)], V_CHK, depth=cfg.depthM)
        for k in own: a(f"ds_write_b128 v{V_ML}, v[{VA+4*k}:{VA+4*k+3}] offset:{k*1024}")
        for k in own[:-1]: smf(k)
        a("s_waitcnt lgkmcnt(0)")
        stamp(0)
        a("s_barrier")
        if cfg.trace: a("s_waitcnt lgkmcnt(0)")
        oth = [k for k in range(10) if k not in own]
        for k in oth: a(f"ds_read_b128 v[{VA+4*k}:{VA+4*k+3}], v{V_ML} offset:{k*1024}")
        smf(own[-1])
        for i, k in enumerate(oth):
            a(f"s_waitcnt lgkmcnt({len(oth)-1-i})")
            smf(k)
        if w < 3: a("s_nop 5\ns_branch LQ_Wjoin")
        else: a("s_nop 6")
    a("LQ_Wjoin:")
    halfsum()
    cvt(ACC+8, ACC, ACC+1); cvt(ACC+9, ACC, ACC+1); cvt(ACC+10, ACC+4, ACC+5); cvt(ACC+11, ACC+4, ACC+5)
    a(f"""
    ds_write_b128 v{V_OUT}, v[{ACC+8}:{ACC+11}]
    s_waitcnt lgkmcnt(0)
    s_barrier
    s_setprio 0
    s_waitcnt vmcnt(0)
    """)
    after_wait()
    stamp_commit([0, 1, 2, 3, 4], 16)
    a(f"""
    s_sleep {cfg.slQW}
    LQ_Wtok:
    s_cmp_eq_u32 s{S_S}, 63
    s_cbranch_scc1 LQ_Wend
    """)
    tok_base()
    stampc(1)
    if cfg.trace: a("s_waitcnt lgkmcnt(0)")
    token_pass(True)
    stampc(2)
    a(f"s_lshl_b32 s27, s27, 13\nv_add_u32 v6, s27, v{V_OUT2}")
    for t in range(2):
        for tt in range(2):
            d = ACC + 8*t + 4*tt
            cvt(d, d, d+1); cvt(d+1, d+2, d+3)
            a(f"ds_write_b64 v6, v[{d}:{d+1}] offset:{t*4096 + tt*1024}")
    a(f"""
    s_waitcnt vmcnt(0) lgkmcnt(0)
    s_add_u32 s{S_S}, s{S_S}, 1
    s_branch LQ_Wloop
    LQ_Wend:
    """)
    if cfg.trace:
        a(f"s_cmp_lg_u32 s{S_WAVE}, 0\ns_cbranch_scc1 LM_end")
        stamp_dump([0, 3, 4], 16, 0); stamp_dump([1, 2], 16, 8)
    a("s_endpgm")

    KX, QM, KM, S0, S1, SM = 16, 32, 40, 48, 52, 56
    V_TR, V_A1, V_A2, V_QXR = 8, 9, 10, 11
    def trbase(v):
        a(f"""
        v_and_b32 v6, 3, v0
        v_mul_u32_u24 v{v}, 384, v6
        v_lshrrev_b32 v6, 2, v0
        v_lshl_add_u32 v{v}, v6, 4, v{v}
        v_add_u32 v{v}, {LDS_QKM}, v{v}
        """)
    a("LQ_C0:\ns_setprio 3")
    trbase(V_TR)
    a(f"""
    v_bfe_u32 v12, v0, 2, 2
    v_and_b32 v6, 1, v0
    v_lshl_add_u32 v12, v12, 1, v6
    v_bfe_u32 v13, v0, 1, 1
    v_lshlrev_b32 v{V_A2}, 4, v12
    s_and_b32 s21, s41, 1
    s_lshl_b32 s21, s21, 7
    v_add_u32 v{V_A2}, s21, v{V_A2}
    v_and_b32 v6, 1, v1
    v_lshl_add_u32 v{V_A1}, v6, 3, v{V_A2}
    v_lshl_add_u32 v{V_A2}, v1, 2, v{V_A2}
    v_lshrrev_b32 v6, 1, v1
    v_lshl_add_u32 v{V_A1}, v6, 8, v{V_A1}
    s_cmp_eq_u32 s42, 2
    s_cselect_b32 s24, 9, 10
    s_lshl_b32 s25, s42, 9
    s_cmp_eq_u32 s42, 2
    s_cselect_b32 s25, 2048, s25
    v_lshlrev_b32 v6, s24, v13
    v_add_u32 v{V_A1}, v{V_A1}, v6
    v_add_u32 v{V_A1}, s25, v{V_A1}
    s_lshl_b32 s25, s42, 8
    s_add_u32 s25, s25, 3072
    v_add_u32 v{V_A2}, s25, v{V_A2}
    s_lshl_b32 s43, s{S_X}, 13
    s_bfe_u32 s21, s41, 0x10001
    s_lshl_b32 s21, s21, 12
    s_add_u32 s43, s43, s21
    s_add_u32 s43, s43, {WS_L1R}
    v_cmp_eq_u32 s[44:45], 1, v13
    v_mov_b32 v60, -1
    v_mov_b32 v61, -1
    s_lshl_b32 s21, s{S_X}, 12
    s_sub_u32 s24, s{S_C}, 20
    s_lshl_b32 s24, s24, 2
    s_add_u32 s21, s21, s24
    s_add_u32 s21, s21, {WS_NL}
    v_lshlrev_b32 v14, 7, v0
    v_add_u32 v14, s21, v14
    v_mov_b32 v6, 0x40000000
    v_cmp_gt_u32 vcc, 20, v0
    s_nop 1
    v_cndmask_b32 v14, v6, v14, vcc
    s_barrier
    """)
    read_mode()
    a(f"""
    s_mov_b32 s{S_S}, 0
    LQ_C0loop:
    s_and_b32 s21, s{S_S}, 1
    s_lshl_b32 s21, s21, 13
    s_add_u32 s21, s21, {LDS_QX + 4096}
    v_add_u32 v{V_QXR}, s21, v5
    s_and_b32 s21, s{S_S}, 3
    s_mul_i32 s24, s21, {L1SLOT}
    s_add_u32 s24, s24, s43
    s_xor_b32 s21, s21, 2
    s_mul_i32 s25, s21, {L1SLOT}
    s_add_u32 s25, s25, s43
    s_add_u32 s21, s{S_S}, 1
    v_mov_b32 v15, s21
    s_barrier
    """)
    for tt in range(2):
        for p in range(2):
            r = KX + 8*tt + 4*p
            a(f"ds_read_b128 v[{r}:{r+3}], v{V_QXR} offset:{p*2048 + tt*1024}")
    a("s_waitcnt vmcnt(0) lgkmcnt(0)")
    if cfg.nL1 == 2:
        nop(cfg.dN1*4)
        lstore(f"buffer_store_dword v15, v14, {WS}, 0 offen")
    a("s_barrier")
    stamp(1)
    if cfg.trace: a("s_waitcnt lgkmcnt(0)")
    for w in range(4): a(f"ds_read_b64_tr_b16 v[{QM+2*w}:{QM+2*w+1}], v{V_TR} offset:{w*1536}")
    for w in range(4): a(f"ds_read_b64_tr_b16 v[{KM+2*w}:{KM+2*w+1}], v{V_TR} offset:{w*1536+8}")
    if cfg.nL1 == 1: lstore(f"buffer_store_dword v15, v14, {WS}, 0 offen")
    a(f"s_waitcnt lgkmcnt(6)")
    mfma32(S0, KX, QM, None); mfma32(S1, KX+8, QM, None)
    a(f"s_waitcnt lgkmcnt(4)")
    mfma32(S0, KX+4, QM+4, S0); mfma32(S1, KX+12, QM+4, S1)
    a(f"s_waitcnt lgkmcnt(2)")
    mfma32(SM, KM, QM, None)
    a("s_waitcnt lgkmcnt(0)")
    mfma32(SM, KM+4, QM+4, SM)
    nop(4)
    cvt(S0, S0, S0+1); cvt(S0+1, S0+2, S0+3); cvt(S1, S1, S1+1); cvt(S1+1, S1+2, S1+3)
    cvt(SM, SM, SM+1)
    for i in range(2): a(f"v_cndmask_b32 v{S0+i}, v{S0+i}, v{S1+i}, s[44:45]")
    san(S0); san(S0+1); san(SM)
    lstore([f"buffer_store_dwordx2 v[{S0}:{S0+1}], v{V_A1}, {WS}, s24 offen",
            f"buffer_store_dword v{SM}, v{V_A2}, {WS}, s24 offen"])
    stamp(2)
    lstore([f"buffer_store_dwordx2 v[60:61], v{V_A1}, {WS}, s25 offen",
            f"buffer_store_dword v60, v{V_A2}, {WS}, s25 offen"])
    stamp_commit([1, 2], 64)
    a(f"""
    s_add_u32 s27, s{S_S}, 2
    s_cmp_gt_u32 s27, 63
    s_cbranch_scc1 LQ_C0nd
    s_sleep {cfg.slQD}
    """)
    if not cfg.nold: dma_tokens_all(27)
    a("LQ_C0nd:")
    if cfg.trace:
        a("s_waitcnt vmcnt(0)")
        stamp(6)
        stamp_commit([6], 64)
    a(f"""
    s_add_u32 s{S_S}, s{S_S}, 1
    s_cmp_lt_u32 s{S_S}, 63
    s_cbranch_scc1 LQ_C0loop
    s_waitcnt vmcnt(0)
    """)
    stamp_dump([1, 2, 6], 64, 0)
    a("s_endpgm")

    QX_, KX_, KM_, T = 16, 32, 48, 56
    a("LQ_C1:")
    if not cfg.tokpath: a("s_barrier\ns_endpgm")
    trbase(V_TR)
    a(f"""
    s_mul_i32 s43, s41, 3
    s_add_u32 s43, s43, s42
    s_lshl_b32 s44, s43, 7
    s_add_u32 s44, s44, {FL1}
    s_mul_i32 s43, s43, 5120
    s_add_u32 s43, s43, {WS_T1R}
    v_mov_b32 v9, 0
    v_lshlrev_b32 v12, 3, v0
    s_barrier
    """)
    read_mode()
    a(f"""
    s_mov_b32 s{S_S}, 0
    LQ_C1loop:
    s_and_b32 s21, s{S_S}, 1
    s_lshl_b32 s21, s21, 13
    s_add_u32 s21, s21, {LDS_QX}
    v_add_u32 v{V_QXR}, s21, v5
    s_and_b32 s21, s{S_S}, 3
    s_mul_i32 s24, s21, {T1SLOT}
    s_add_u32 s24, s24, s43
    s_add_u32 s25, s24, 4096
    s_add_u32 s26, s{S_S}, 1
    v_mov_b32 v10, s26
    s_barrier
    s_barrier
    s_sleep {cfg.slQC}
    """)
    for tt in range(2):
        for p in range(2):
            a(f"ds_read_b128 v[{QX_+8*tt+4*p}:{QX_+8*tt+4*p+3}], v{V_QXR} offset:{p*2048 + tt*1024}")
            a(f"ds_read_b128 v[{KX_+8*tt+4*p}:{KX_+8*tt+4*p+3}], v{V_QXR} offset:{4096 + p*2048 + tt*1024}")
    for w in range(4): a(f"ds_read_b64_tr_b16 v[{KM_+2*w}:{KM_+2*w+1}], v{V_TR} offset:{w*1536+8}")
    a("s_waitcnt lgkmcnt(0)")
    tl = [(KX_, QX_), (KM_, QX_), (KX_, QX_+8), (KX_+8, QX_+8), (KM_, QX_+8)]
    for p in range(2):
        for i, (A_, B_) in enumerate(tl):
            mfma32(T+4*i, A_+4*p, B_+4*p, T+4*i if p else None)
    nop(8)
    lstore([(f"buffer_store_dwordx2 v[{T+4*i}:{T+4*i+1}], v12, {WS}, " if i in (1, 4) else f"buffer_store_dwordx4 v[{T+4*i}:{T+4*i+3}], v5, {WS}, ")
            + (f"s24 offen offset:{i*1024}" if i < 4 else "s25 offen") for i in range(5)])
    a("s_waitcnt vmcnt(0)\ns_mov_b64 exec, 1")
    lstore(f"buffer_store_dword v10, v9, {WS}, s44 offen")
    a(f"""
    s_mov_b64 exec, -1
    s_add_u32 s{S_S}, s{S_S}, 1
    s_cmp_lt_u32 s{S_S}, 64
    s_cbranch_scc1 LQ_C1loop
    s_waitcnt vmcnt(0)
    s_endpgm
    """)

    X0 = 16
    a("LQ_C2:")
    if not cfg.tokpath: a("s_barrier\ns_endpgm")
    a(f"""
    s_cmp_eq_u32 s42, 2
    s_cbranch_scc1 LQ_exit1
    s_mul_i32 s43, s41, {3*5120}
    s_add_u32 s43, s43, {WS_T1R}
    s_mul_i32 s21, s41, {3*128}
    s_add_u32 s21, s21, {FL1}
    v_min_u32 v8, 2, v0
    v_lshlrev_b32 v8, 7, v8
    v_add_u32 v8, s21, v8
    s_lshl_b32 s44, s41, 1
    s_add_u32 s44, s44, s42
    s_lshl_b32 s45, s44, 7
    s_add_u32 s45, s45, {FL2}
    s_mul_i32 s44, s44, 1536
    s_add_u32 s44, s44, {WS_PR}
    s_lshl_b32 s46, s42, 11
    s_mul_i32 s47, s42, 3072
    s_add_u32 s48, s47, 1024
    v_lshlrev_b32 v9, 3, v0
    v_mov_b32 v10, 0
    v_lshlrev_b32 v6, 2, v1
    s_lshl_b32 s21, s42, 4
    v_add_u32 v7, s21, v2
    """)
    for i in range(8):
        a(f"v_add_u32 v11, {16*(i>>2) + (i&3)}, v6\nv_cmp_le_u32 s[{50+2*i}:{51+2*i}], v11, v7")
    a(f"""
    v_mov_b32 v12, {NEGBIG}
    v_lshlrev_b32 v14, 2, v0
    s_mov_b32 s66, {CSC}
    s_mov_b32 s67, {CSC}
    s_barrier
    """)
    read_mode()
    a(f"""
    s_barrier
    s_barrier
    s_mov_b32 s{S_S}, 1
    LQ_C2loop:
    s_cmp_gt_u32 s{S_S}, 63
    s_cbranch_scc1 LQ_C2nb
    s_barrier
    s_barrier
    s_sleep {cfg.slQC}
    LQ_C2nb:
    s_sub_u32 s21, s{S_S}, 1
    s_and_b32 s21, s21, 3
    s_mul_i32 s24, s21, {T1SLOT}
    s_add_u32 s24, s24, s43
    s_mul_i32 s30, s21, {PSLOT}
    s_add_u32 s30, s30, s44
    v_mov_b32 v13, s{S_S}
    """)
    wait_flags(11, 8, S_S)
    for pp in range(3):
        for j, so in enumerate((46, 47, 48)):
            r = X0 + 12*pp + 4*j
            a(f"s_add_u32 s25, s24, s{so}")
            if j < 2: a(f"buffer_load_dwordx4 v[{r}:{r+3}], v5, {WS}, s25 offen sc1")
            else: a(f"buffer_load_dwordx2 v[{r}:{r+1}], v9, {WS}, s25 offen sc1")
        if pp < 2: a("s_add_u32 s24, s24, 5120")
    a("s_waitcnt vmcnt(3)")
    for i in range(0, 10, 2): a(f"v_pk_add_f32 v[{X0+i}:{X0+i+1}], v[{X0+i}:{X0+i+1}], v[{X0+12+i}:{X0+13+i}]")
    a("s_waitcnt vmcnt(0)")
    for i in range(0, 10, 2): a(f"v_pk_add_f32 v[{X0+i}:{X0+i+1}], v[{X0+i}:{X0+i+1}], v[{X0+24+i}:{X0+25+i}]")
    for i in range(8): a(f"v_cndmask_b32 v{X0+i}, v12, v{X0+i}, s[{50+2*i}:{51+2*i}]")
    def softmax_max(X, mx, t, sc):
        a(f"v_max3_f32 v{mx}, v{X}, v{X+1}, v{X+2}")
        for i in range(3, 9, 2): a(f"v_max3_f32 v{mx}, v{mx}, v{X+i}, v{X+i+1}")
        a(f"v_max_f32 v{mx}, v{mx}, v{X+9}")
        xlane("v_max_f32", mx, t)
        a(f"v_mul_f32 v{mx}, s{sc}, v{mx}")
    def pkarg(x, mx, sc):
        a(f"v_pk_fma_f32 v[{x}:{x+1}], v[{x}:{x+1}], s[{sc}:{sc+1}], v[{mx}:{mx+1}] op_sel_hi:[1,1,0] neg_lo:[0,0,1] neg_hi:[0,0,1]")
    softmax_max(X0, 52, 53, 66)
    for i in range(0, 10, 2): pkarg(X0+i, 52, 66)
    for i in range(10): a(f"v_exp_f32 v{X0+i}, v{X0+i}")
    a(f"v_pk_add_f32 v[52:53], v[{X0}:{X0+1}], v[{X0+2}:{X0+3}]")
    for i in range(4, 10, 2): a(f"v_pk_add_f32 v[52:53], v[52:53], v[{X0+i}:{X0+i+1}]")
    a("v_add_f32 v52, v52, v53")
    xlane("v_add_f32", 52, 53)
    a("v_rcp_f32 v52, v52\ns_nop 0")
    for i in range(0, 10, 2): a(f"v_pk_mul_f32 v[{X0+i}:{X0+i+1}], v[{X0+i}:{X0+i+1}], v[52:53] op_sel_hi:[1,0]")
    for i in range(5): cvt(X0+12+i, X0+2*i, X0+2*i+1)
    lstore([f"buffer_store_dwordx4 v[{X0+12}:{X0+15}], v5, {WS}, s30 offen",
            f"buffer_store_dword v{X0+16}, v14, {WS}, s30 offen offset:1024"])
    a("s_waitcnt vmcnt(0)\ns_mov_b64 exec, 1")
    lstore(f"buffer_store_dword v13, v10, {WS}, s45 offen")
    a(f"""
    s_mov_b64 exec, -1
    s_add_u32 s{S_S}, s{S_S}, 1
    s_cmp_lt_u32 s{S_S}, 65
    s_cbranch_scc1 LQ_C2loop
    s_waitcnt vmcnt(0)
    s_endpgm
    LQ_exit1:
    s_barrier
    s_endpgm
    """)

    a("LQ_C3:")
    mode_wave()
    a(f"""
    s_sub_u32 s21, s{S_C}, 20
    s_cmp_ge_u32 s21, 10
    s_cbranch_scc1 LM_end
    s_lshl_b32 s43, s21, 12
    s_add_u32 s43, s43, {WS_H + 2*40960}
    v_lshlrev_b32 v8, 6, v0
    buffer_load_dword v9, v8, {WS}, s43 offen
    s_mul_i32 s24, s{S_X}, 10
    s_add_u32 s24, s24, s21
    s_lshl_b32 s44, s24, 12
    s_add_u32 s44, s44, {WS_O}
    s_lshr_b32 s45, s24, 2
    s_and_b32 s46, s24, 3
    """)
    build_sel(16, 20)
    srd(8, KA['x'], 2048*1280)
    a(f"""
    v_and_b32 v6, 3, v2
    v_lshlrev_b32 v10, 3, v6
    v_and_b32 v6, 1, v1
    v_lshl_add_u32 v10, v6, 2, v10
    s_lshl_b32 s21, s45, 5
    v_add_u32 v10, s21, v10
    v_lshlrev_b32 v11, 2, v10
    s_mov_b32 s24, {WS_MOD + 2*640*4}
    buffer_load_dwordx4 v[24:27], v11, {WS}, s24 offen
    v_lshrrev_b32 v6, 1, v1
    v_lshlrev_b32 v6, 2, v6
    v_lshrrev_b32 v7, 2, v2
    v_add_u32 v6, v6, v7
    s_lshl_b32 s21, s46, 3
    v_add_u32 v6, s21, v6
    v_and_b32 v7, 15, v6
    v_lshlrev_b32 v15, 4, v7
    v_and_b32 v7, 3, v2
    v_lshl_add_u32 v15, v7, 8, v15
    v_and_b32 v7, 1, v1
    v_lshl_add_u32 v15, v7, 3, v15
    s_lshr_b32 s21, s46, 1
    s_mul_i32 s21, s21, 20480
    s_lshl_b32 s24, s45, 10
    s_add_u32 s21, s21, s24
    v_add_u32 v15, s21, v15
    v_mul_u32_u24 v6, 1280, v6
    v_lshl_add_u32 v10, v10, 1, v6
    v_mov_b32 v28, -1
    v_mov_b32 v29, -1
    v_mov_b32 v30, -1
    v_mov_b32 v31, -1
    s_waitcnt vmcnt(0)
    s_barrier
    s_mov_b32 s{S_S}, 0
    LQ_C3loop:
    s_cmp_gt_u32 s{S_S}, 63
    s_cbranch_scc1 LQ_C3nb
    s_barrier
    s_barrier
    s_sleep {cfg.slQ3}
    s_cmp_gt_u32 s{S_S}, 60
    s_cbranch_scc1 LQ_C3nb
    s_add_u32 s43, s43, 40960
    buffer_load_dword v9, v8, {WS}, s43 offen
    LQ_C3nb:
    """)
    if cfg.tokpath:
        a(f"""
        s_cmp_lt_u32 s{S_S}, 3
        s_cbranch_scc1 LQ_C3skip
        s_sub_u32 s26, s{S_S}, 3
        s_and_b32 s21, s26, 7
        s_mul_i32 s28, s21, {OSLOT}
        s_add_u32 s28, s28, s44
        s_mul_i32 s29, s26, {32*1280}
        s_add_u32 s30, s29, {WS_X1}
        buffer_load_dwordx2 v[12:13], v10, {SA}, s29 offen
        s_add_u32 s21, s26, 7
        s_and_b32 s21, s21, 7
        s_mul_i32 s31, s21, {OSLOT}
        s_add_u32 s31, s31, s44
        """)
        for i in range(4): a(f"buffer_store_dwordx4 v[28:31], v5, {WS}, s31 offen offset:{1024*i} sc1")
        def comp3(o, i): mfma32(48, 20, 32+4*i, 48 if i else None, o)
        gather([(32+4*i, 5, 28, 1024*i) for i in range(4)], 14, comp3, depth=1)
        a("""
        s_nop 1
        v_lshlrev_b32 v52, 16, v12
        v_and_b32 v53, 0xffff0000, v12
        v_lshlrev_b32 v54, 16, v13
        v_and_b32 v55, 0xffff0000, v13
        """)
        for i in range(4): a(f"v_fma_f32 v{52+i}, v{48+i}, v{24+i}, v{52+i}")
        cvt(52, 52, 53); cvt(53, 54, 55)
        a(f"buffer_store_dwordx2 v[52:53], v15, {WS}, s30 offen\nLQ_C3skip:")
    a(f"""
    s_waitcnt vmcnt(0)
    """)
    _t = cfg.trace; cfg.trace = cfg.trace or cfg.light
    stamp(0)
    stamp_commit([0], 60)
    a(f"""
    s_add_u32 s{S_S}, s{S_S}, 1
    s_cmp_lt_u32 s{S_S}, {67 if cfg.tokpath else 61}
    s_cbranch_scc1 LQ_C3loop
    """)
    stamp_dump([0], 60, 5)
    cfg.trace = _t
    a("s_endpgm")

    a(f"""
    LM_VO:
    s_cmp_eq_u32 s{S_WAVE}, 4
    s_cbranch_scc1 LV_C01
    s_cmp_eq_u32 s{S_WAVE}, 5
    s_cbranch_scc1 LV_C01
    s_cmp_eq_u32 s{S_WAVE}, 6
    s_cbranch_scc1 LV_C2
    s_cmp_eq_u32 s{S_WAVE}, 7
    s_cbranch_scc1 LV_C3
    """)
    BP, AP, AC, TMP = 8, 56, 80, 88
    srd(8, KA['Wo'], 32*192*1280)
    srd(12, KA['Wv'], 640*12288)
    a(f"""
    s_lshl_b32 s41, s{S_X}, 2
    s_add_u32 s41, s41, s{S_WAVE}
    s_mul_i32 s42, s{S_WAVE}, 24576
    v_lshrrev_b32 v6, 2, v0
    v_mul_u32_u24 v92, 1280, v6
    v_and_b32 v7, 3, v0
    v_lshl_add_u32 v92, v7, 4, v92
    s_mul_i32 s21, s41, 245760
    s_lshl_b32 s24, s{S_C}, 6
    s_add_u32 s21, s21, s24
    v_add_u32 v92, s21, v92
    s_add_u32 s24, s42, 12288
    s_mov_b32 s25, 0
    LV_wo:
    s_mov_b32 m0, s24
    s_add_u32 s24, s24, 1024
    buffer_load_dwordx4 v92, {SA}, s25 offen lds
    s_add_u32 s25, s25, {16*1280}
    s_cmp_lt_u32 s25, {192*1280}
    s_cbranch_scc1 LV_wo
    v_bfe_u32 v6, v0, 5, 1
    v_lshlrev_b32 v93, 4, v6
    v_bfe_u32 v6, v0, 4, 1
    v_lshl_add_u32 v93, v6, 2, v93
    v_bfe_u32 v6, v0, 2, 1
    v_add_u32 v93, v93, v6
    v_lshl_add_u32 v93, v4, 3, v93
    s_mov_b32 s21, 12288
    v_mul_lo_u32 v93, v93, s21
    v_xor_b32 v6, v7, v1
    v_lshl_add_u32 v93, v6, 4, v93
    v_lshrrev_b32 v6, 2, v2
    v_xor_b32 v6, v6, v1
    v_lshlrev_b32 v6, 4, v6
    v_lshl_add_u32 v4, v2, 6, v6
    v_mov_b32 v3, v4
    s_mul_i32 s21, s41, 384
    v_add_u32 v93, s21, v93
    v_bfe_u32 v6, v0, 2, 2
    v_lshl_add_u32 v94, v1, 3, v6
    v_lshlrev_b32 v94, 6, v94
    v_lshl_add_u32 v94, v7, 4, v94
    s_add_u32 s21, s42, 12288
    v_add_u32 v94, s21, v94
    """)
    def issue_unit(su):
        a(f"""
        s_lshr_b32 s24, s{su}, 1
        s_add_u32 s24, s24, s{S_C}
        s_sub_u32 s25, s24, 20
        s_cmp_ge_u32 s24, 20
        s_cselect_b32 s24, s25, s24
        s_cmp_ge_u32 s{su}, 40
        s_cselect_b32 s24, 20, s24
        s_lshl_b32 s24, s24, 4
        s_and_b32 s25, s{su}, 1
        s_add_u32 s24, s24, s25
        s_mul_i32 s24, s24, 24576
        s_and_b32 s25, s{su}, 3
        s_mul_i32 s25, s25, 6144
        s_add_u32 s25, s25, s42
        """)
        for e in range(6):
            a(f"s_add_u32 m0, s25, {e*1024 - e*64}\ns_nop 0")
            a(f"buffer_load_dwordx4 v93, {SB}, s24 offen offset:{e*64} lds")
    a("s_mov_b32 s28, 0\nLV_pre:")
    issue_unit(28)
    a("s_add_u32 s28, s28, 1\ns_cmp_lt_u32 s28, 2\ns_cbranch_scc1 LV_pre\ns_waitcnt vmcnt(12)")
    for t in range(2):
        for e in range(6):
            for d in range(2):
                r = BP + 24*t + 4*e + 2*d
                a(f"ds_read_b64_tr_b16 v[{r}:{r+1}], v94 offset:{e*2048 + d*256 + t*8}")
    a("s_waitcnt lgkmcnt(0)")
    a("s_mov_b32 s29, -1\nLV_unit:")
    issue_unit(28)
    a(f"""
    s_add_u32 s28, s28, 1
    s_cmp_lt_i32 s29, 0
    s_cbranch_scc1 LV_unext
    s_and_b32 s25, s29, 3
    s_mul_i32 s25, s25, 6144
    s_add_u32 s25, s25, s42
    v_add_u32 v95, s25, v3
    s_waitcnt vmcnt(18)
    """)
    for e in range(6): a(f"ds_read_b128 v[{AP+4*e}:{AP+4*e+3}], v95 offset:{e*1024}")
    for e in range(6):
        a(f"s_waitcnt lgkmcnt({5-e})")
        for t in range(2): mfma32(AC+4*t, AP+4*e, BP+24*t+4*e, AC+4*t if e else None)
    a(f"""
    s_lshl_b32 s26, s{S_C}, 1
    s_add_u32 s26, s26, s29
    s_sub_u32 s27, s26, 40
    s_cmp_ge_u32 s26, 40
    s_cselect_b32 s26, s27, s26
    s_lshl_b32 s26, s26, 1
    """)
    nop(4)
    for t in range(2):
        cvt(TMP+2*t, AC+4*t, AC+4*t+1); cvt(TMP+2*t+1, AC+4*t+2, AC+4*t+3)
    a(f"""
    s_set_gpr_idx_on s26, gpr_idx(DST)
    s_nop 0
    v_mov_b32 v{VW}, v{TMP}
    v_mov_b32 v{VW+1}, v{TMP+1}
    v_mov_b32 v{VW+80}, v{TMP+2}
    v_mov_b32 v{VW+81}, v{TMP+3}
    s_set_gpr_idx_off
    LV_unext:
    s_add_u32 s29, s29, 1
    s_cmp_lt_i32 s29, 40
    s_cbranch_scc1 LV_unit
    s_waitcnt vmcnt(0)
    s_barrier
    """)
    lanes()
    w_setup()
    a("s_mov_b32 s28, 0")
    dma_tokens(28)
    a("s_mov_b32 s28, 1")
    dma_tokens(28)
    a(f"""
    s_lshl_b32 s21, s{S_WAVE}, 9
    s_add_u32 s21, s21, {LDS_Y}
    v_lshlrev_b32 v6, 3, v0
    v_add_u32 v{V_OUT}, s21, v6
    s_lshl_b32 s21, s{S_WAVE}, 11
    s_add_u32 s21, s21, {LDS_U}
    v_add_u32 v{V_OUT2}, s21, v5
    v_add_u32 v{V_MGL}, {LDS_M}, v{V_MG}
    s_lshl_b32 s21, s{S_WAVE}, 2
    s_add_u32 s21, s21, {LDS_MISC}
    v_mov_b32 v36, s21
    s_waitcnt vmcnt(0)
    s_barrier
    s_mov_b32 s{S_S}, -1
    s_branch LV_Wtok
    LV_Wloop:
    s_add_u32 s27, s{S_S}, 1
    v_mov_b32 v7, s27
    """)
    m_addr()
    stamp(0)
    lds_wait(V_MISC, F_MST, 1, 16, S_S, sleep=1)
    stamp(1)
    a(f"s_cmp_ge_u32 s{S_WAVE}, 2\ns_cbranch_scc1 LV_W2")
    gather([(VG, V_MG, 24, 0), (VG+4, V_MG, 25, 0), (VG+8, V_MG, 26, 0)], V_CHK, depth=1)
    a(f"ds_write_b128 v{V_MGL}, v[{VG+8}:{VG+11}] offset:8192\ns_branch LV_W3\nLV_W2:")
    gather([(VG, V_MG, 24, 0), (VG+4, V_MG, 25, 0)], V_CHK, depth=1)
    a(f"""
    LV_W3:
    ds_write_b128 v{V_MGL}, v[{VG}:{VG+3}]
    ds_write_b128 v{V_MGL}, v[{VG+4}:{VG+7}] offset:4096
    ds_write_b32 v36, v7 offset:{F_MW}
    """)
    stamp(2)
    lds_wait(V_MISC, F_MW, 4, 16, 27)
    stamp(3)
    if cfg.trace: a("s_waitcnt lgkmcnt(0)")
    for k in range(10): a(f"ds_read_b128 v[{VA+4*k}:{VA+4*k+3}], v{V_ML} offset:{k*1024}")
    for k in range(10):
        a(f"s_waitcnt lgkmcnt({9-k})")
        smf(k)
    a(f"s_and_b32 s21, s{S_S}, 3\ns_lshl_b32 s21, s21, 11\nv_add_u32 v6, s21, v{V_OUT}")
    nop(6)
    halfsum()
    cvt(ACC, ACC, ACC+1); cvt(ACC+1, ACC+4, ACC+5)
    a(f"""
    ds_write_b64 v6, v[{ACC}:{ACC+1}]
    ds_write_b32 v36, v7 offset:{F_Y}
    s_cmp_eq_u32 s{S_S}, 63
    s_cbranch_scc1 LV_Wend
    """)
    stamp_commit([0, 1, 2, 3], 20)
    lds_wait(V_MISC, F_D2, 2, 16, S_S, sleep=1)
    a("LV_Wtok:")
    tok_base()
    token_pass(False, cfg.n1, lambda: lds_wait(V_MISC, F_GST, 1, 16, 21, sleep=1))
    a(f"s_add_u32 s24, s21, 1\nv_mov_b32 v7, s24\nds_write_b32 v36, v7 offset:{F_TD}")
    a(f"s_and_b32 s21, s21, 3\ns_lshl_b32 s21, s21, 13\nv_add_u32 v6, s21, v{V_OUT2}")
    for t in range(2):
        d = ACC + 8*t
        cvt(d, d, d+1); cvt(d+1, d+2, d+3); cvt(d+2, d+4, d+5); cvt(d+3, d+6, d+7)
        a(f"ds_write_b128 v6, v[{d}:{d+3}] offset:{t*1024}")
    a(f"""
    s_waitcnt lgkmcnt(0)
    """)
    after_wait()
    a(f"""
    s_add_u32 s{S_S}, s{S_S}, 1
    s_branch LV_Wloop
    LV_Wend:
    s_waitcnt vmcnt(0) lgkmcnt(0)
    """)
    if cfg.trace:
        a(f"s_cmp_lg_u32 s{S_WAVE}, 0\ns_cbranch_scc1 LM_end")
        stamp_dump([0, 1, 2, 3], 20, 16)
    a("s_endpgm")

    SELM, SELA, SLO, SHI = 16, 20, 24, 28
    LD = 32
    D_ = 48
    PT, PMA, PMB = 60, 64, 66
    UF, YF = 68, 84
    ONES = 88
    OA = 92
    KEEP, SEND = 108, 112
    HO = 116
    LS = 128
    LG = 132
    MX = 14
    V_L3, V_UR, V_YR, V_GS, V_MS, V_HO, V_FL = 8, 9, 10, 120, 121, 122, 123
    a("LV_C01:\ns_setprio 3")
    build_sel(SELM, SELA, SLO, SHI)
    build_selm(SELM)
    a(f"""
    s_sub_u32 s41, s{S_WAVE}, 4
    v_cmp_eq_u32 vcc, 3, v1
    v_mov_b32 v6, 0x40000000
    s_nop 0
    v_cndmask_b32 v{V_L3}, v5, v6, vcc
    s_lshl_b32 s43, s{S_X}, 13
    s_lshl_b32 s21, s41, 12
    s_add_u32 s43, s43, s21
    s_add_u32 s43, s43, {WS_L1R}
    v_cmp_eq_u32 s[44:45], 1, v4
    v_cmp_eq_u32 s[64:65], 0, v4
    s_mov_b32 s66, {CSC}
    s_mov_b32 s67, {CSC}
    v_mov_b32 v{ONES}, 0x3f803f80
    v_mov_b32 v{ONES+1}, 0x3f803f80
    v_mov_b32 v{ONES+2}, 0x3f803f80
    v_mov_b32 v{ONES+3}, 0x3f803f80
    v_mov_b32 v{PMA+1}, 0
    v_mov_b32 v{PMB}, 0
    v_lshl_add_u32 v6, v1, 3, v3
    v_lshlrev_b32 v{V_GS}, 4, v6
    v_lshl_add_u32 v{V_GS}, v4, 3, v{V_GS}
    v_lshrrev_b32 v6, 1, v1
    v_lshlrev_b32 v{V_MS}, 4, v6
    v_bfe_u32 v6, v0, 1, 2
    v_lshl_add_u32 v{V_MS}, v6, 2, v{V_MS}
    v_lshl_add_u32 v{V_MS}, v4, 1, v{V_MS}
    v_and_b32 v6, 1, v0
    v_add_u32 v{V_MS}, v{V_MS}, v6
    v_lshlrev_b32 v{V_MS}, 4, v{V_MS}
    v_and_b32 v6, 1, v1
    v_lshl_add_u32 v{V_MS}, v6, 3, v{V_MS}
    v_add_u32 v{V_HO}, {LDS_HO}, v5
    v_mov_b32 v{V_FL}, {LDS_MISC}
    s_lshr_b32 s21, s{S_C}, 1
    s_lshl_b32 s46, s21, 14
    s_and_b32 s21, s{S_C}, 1
    s_lshl_b32 s21, s21, 12
    s_add_u32 s46, s46, s21
    s_add_u32 s46, s46, {WS_G}
    s_lshl_b32 s47, s{S_X}, 9
    s_mul_i32 s48, s{S_X}, 10240
    s_lshl_b32 s21, s{S_C}, 9
    s_add_u32 s48, s48, s21
    s_add_u32 s48, s48, {WS_MR}
    v_mov_b32 v124, -1
    v_mov_b32 v125, -1
    s_lshl_b32 s21, s{S_X}, 12
    s_add_u32 s21, s21, {WS_NL}
    s_lshl_b32 s24, s{S_C}, 7
    s_add_u32 s24, s24, s21
    s_mul_i32 s25, s41, {0 if cfg.all12 else 24}
    s_add_u32 s24, s24, s25
    v_lshlrev_b32 v6, 2, v0
    v_add_u32 v148, s24, v6
    s_mov_b64 s[68:69], {0xfff if cfg.all12 else 63}
    s_lshl_b32 s24, s{S_C}, 2
    s_add_u32 s24, s24, s21
    s_add_u32 s24, s24, {20*128}
    v_lshlrev_b32 v149, 7, v0
    v_add_u32 v149, s24, v149
    v_mov_b32 v7, 0x40000000
    v_cmp_gt_u32 vcc, 12, v0
    s_mul_i32 s24, s{S_X}, 20
    s_add_u32 s24, s24, s{S_C}
    v_cndmask_b32 v149, v7, v149, vcc
    s_lshr_b32 s51, s24, 6
    s_lshl_b32 s51, s51, 14
    s_and_b32 s24, s24, 63
    s_lshl_b32 s24, s24, 7
    s_add_u32 s51, s51, s24
    s_add_u32 s51, s51, {WS_NG}
    v_mul_u32_u24 v6, 20, v3
    v_add_u32 v6, s{S_C}, v6
    v_lshrrev_b32 v150, 6, v6
    v_lshlrev_b32 v150, 14, v150
    v_and_b32 v6, 63, v6
    v_lshl_add_u32 v150, v6, 7, v150
    v_lshl_add_u32 v150, v4, 13, v150
    s_add_u32 s24, s{S_X}, {WS_NG}
    v_add_u32 v150, s24, v150
    v_cmp_gt_u32 vcc, 16, v0
    s_nop 1
    v_cndmask_b32 v150, v7, v150, vcc
    s_barrier
    s_barrier
    s_mov_b32 s50, 0
    s_cmp_eq_u32 s41, 0
    s_cbranch_scc1 LV_nocal
    s_lshl_b32 s21, s{S_X}, 5
    s_add_u32 s21, s21, s{S_C}
    s_lshr_b32 s24, s21, 6
    s_lshl_b32 s24, s24, 14
    s_and_b32 s21, s21, 63
    s_lshl_b32 s21, s21, 7
    s_add_u32 s24, s24, s21
    s_add_u32 s24, s24, {WS_CAL}
    s_add_u32 s25, s24, 8192
    v_mov_b32 v6, 0
    buffer_store_dword v6, v6, {WS}, s24 offen sc1
    buffer_store_dword v6, v6, {WS}, s25 offen sc1
    s_waitcnt vmcnt(0)
    s_memtime s[52:53]
    s_waitcnt lgkmcnt(0)
    buffer_load_dword v7, v6, {WS}, s24 offen sc1
    s_waitcnt vmcnt(0)
    s_memtime s[54:55]
    s_waitcnt lgkmcnt(0)
    buffer_load_dword v7, v6, {WS}, s25 offen sc1
    s_waitcnt vmcnt(0)
    s_memtime s[56:57]
    s_waitcnt lgkmcnt(0)
    s_sub_u32 s56, s56, s54
    s_sub_u32 s54, s54, s52
    s_cmp_lt_u32 s56, s54
    s_cselect_b32 s50, 8192, 0
    LV_nocal:
    """)
    read_mode()
    a(f"""
    s_add_u32 s51, s51, s50
    s_mov_b32 s{S_S}, 0
    s_cmp_lg_u32 s41, 0
    s_cbranch_scc1 LV_Cloop1
    """)
    for cw in range(2):
        a(f"""
        LV_Cloop{cw}:
        s_and_b32 s21, s{S_S}, 3
        s_mul_i32 s24, s21, {L1SLOT}
        s_add_u32 s24, s24, s43
        s_lshl_b32 s25, s21, 13
        s_add_u32 s25, s25, {LDS_U + cw*4096}
        v_add_u32 v{V_UR}, s25, v5
        s_lshl_b32 s25, s21, 11
        s_add_u32 s25, s25, {LDS_Y + cw*1024}
        v_lshlrev_b32 v6, 3, v0
        v_add_u32 v{V_YR}, s25, v6
        s_add_u32 s27, s{S_S}, 1
        v_mov_b32 v126, s27
        s_mul_i32 s32, s{S_S}, {GSLOT}
        s_add_u32 s32, s32, s46
        """)
        if cw == 0:
            a("s_add_u32 s32, s32, s47\ns_add_u32 s33, s32, 8192")
        else:
            a(f"""
            s_lshr_b32 s21, s32, 8
            s_and_b32 s21, s21, 8192
            s_xor_b32 s21, s21, s50
            s_add_u32 s34, s32, s21
            s_and_b32 s21, s27, 3
            s_mul_i32 s35, s21, {MSLOT}
            s_add_u32 s35, s35, s48
            s_xor_b32 s21, s21, 2
            s_mul_i32 s36, s21, {MSLOT}
            s_add_u32 s36, s36, s48
            s_and_b32 s21, s{S_S}, 1
            s_mul_i32 s58, s21, 49152
            s_add_u32 s59, s58, s51
            s_mul_i32 s62, s27, 0x01010101
            s_mov_b32 s63, s62
            """)
        lds_wait(V_FL, F_MW, 4, HO, 27, sleep=1)
        a("s_waitcnt vmcnt(0)")
        if cw == 1: a("s_mov_b64 s[60:61], 0")
        if cfg.nL1: nscout(11, 148, 27, 68)
        else: scout(11, 5, 24)
        nop(cfg.padL1)
        stamp(4)
        def rduy():
            for j in range(4): a(f"ds_read_b128 v[{UF+4*j}:{UF+4*j+3}], v{V_UR} offset:{j*1024}")
            for j in range(2): a(f"ds_read_b64 v[{YF+2*j}:{YF+2*j+1}], v{V_YR} offset:{j*512}")
            return 0
        def shadow1():
            if cw == 0: a(f"ds_write_b32 v{V_FL}, v126 offset:{F_L1D}")
            lds_wait(V_FL, F_Y, 4, HO, 27, extra=rduy)
            if cw == 1 and cfg.nG and cfg.posG == -1: a(f"buffer_store_byte v126, v150, {WS}, s58 offen sc1")
            stamp(3)
        def comp1(o, i):
            if i == 0: mfma32(D_+8, SELM, LD+12, None, o)
            if i == 1: mfma32(D_, SELA, LD, None, o)
            if i == 2: mfma32(D_+4, SELA, LD+4, None, o)
            if i == 3: mfma32(D_, SLO, LD+8, D_, o); mfma32(D_+4, SHI, LD+8, D_+4, o)
        l1loads = [(LD+12, V_L3, 24, 3072), (LD, 5, 24, 0), (LD+4, 5, 24, 1024), (LD+8, 5, 24, 2048)]
        if cfg.g2L: gather2(l1loads, 12, comp1, shadow=shadow1, pad=cfg.g2L-1)
        else: gather(l1loads, 12, comp1, shadow=shadow1, depth=cfg.depthL1, young=int(cw == 1 and cfg.nG and cfg.posG == -1))
        stamp(0)
        def notice(pos):
            if cw == 1 and cfg.nG and cfg.posG == pos:
                a(f"buffer_store_byte v126, v150, {WS}, s58 offen sc1")
        def spoll(pos):
            if cw == 1 and cfg.nG and (cfg.early >> pos) & 1:
                a("s_load_dwordx2 s[60:61], s[4:5], s59 glc")
        notice(0)
        nop(5)
        softmax_max(D_, MX, MX+1, 66)
        notice(1)
        ex = lambda i: a(f"v_exp_f32 v{D_+i}, v{D_+i}")
        pkarg(D_+8, MX, 66)
        pkarg(D_, MX, 66)
        ex(8); ex(9)
        pkarg(D_+2, MX, 66)
        cvt(PMA, D_+8, D_+9); cvt(PMB+1, D_+8, D_+9)
        pkarg(D_+4, MX, 66); pkarg(D_+6, MX, 66)
        mfma16(LS, ONES, PMA, None)
        ex(0); ex(1)
        mfma16(OA, YF, PMA, None)
        notice(2)
        ex(2); ex(3)
        mfma16(OA+4, YF, PMB, None)
        ex(4); ex(5)
        mfma16(OA+8, YF+2, PMA, None)
        ex(6); ex(7)
        mfma16(OA+12, YF+2, PMB, None)
        notice(3)
        spoll(0)
        for i in range(4): cvt(PT+i, D_+2*i, D_+2*i+1)
        a("s_nop 1")
        mfma32(LS, ONES, PT, LS)
        for j in range(4): mfma32(OA+4*j, UF+4*j, PT, OA+4*j)
        notice(4)
        spoll(1)
        a(f"s_nop 3\nv_rcp_f32 v{LS}, v{LS}\ns_mov_b64 exec, s[64:65]")
        pm = lambda d, x: a(f"v_pk_mul_f32 v[{d}:{d+1}], v[{x}:{x+1}], v[{LS}:{LS+1}] op_sel_hi:[1,0]")
        pm(KEEP, OA); pm(KEEP+2, OA+2); pm(SEND, OA+4); pm(SEND+2, OA+6)
        a("s_mov_b64 exec, s[44:45]")
        pm(SEND, OA+8); pm(SEND+2, OA+10); pm(KEEP, OA+12); pm(KEEP+2, OA+14)
        a("s_mov_b64 exec, -1")
        for i in range(4): a(f"v_add_f32_dpp v{KEEP+i}, v{SEND+i}, v{KEEP+i} row_ror:8 row_mask:0xf bank_mask:0xf")
        if cw == 0:
            def rdho():
                a(f"ds_read_b128 v[{HO}:{HO+3}], v{V_HO}")
                return 0
            lds_wait(V_FL, F_HO, 1, 15, 27, extra=rdho)
            for i in range(0, 4, 2): a(f"v_pk_add_f32 v[{KEEP+i}:{KEEP+i+1}], v[{KEEP+i}:{KEEP+i+1}], v[{HO+i}:{HO+i+1}]")
            cvt(KEEP, KEEP, KEEP+1); cvt(KEEP+1, KEEP+2, KEEP+3); san(KEEP); san(KEEP+1)
            a(f"""
            buffer_store_dwordx2 v[{KEEP}:{KEEP+1}], v{V_GS}, {WS}, s32 offen sc1
            buffer_store_dwordx2 v[{KEEP}:{KEEP+1}], v{V_GS}, {WS}, s33 offen sc1
            ds_write_b32 v{V_FL}, v126 offset:{F_GST}
            """)
            stamp(1)
        else:
            a(f"""
            ds_write_b128 v{V_HO}, v[{KEEP}:{KEEP+3}]
            ds_write_b32 v{V_FL}, v126 offset:{F_HO}
            """)
            if cfg.nG:
                a(f"""
                s_mov_b32 s{S_CNT}, s{S_LIM}
                LV_np:
                s_load_dwordx2 s[60:61], s[4:5], s59 glc
                s_sub_u32 s{S_CNT}, s{S_CNT}, 1
                s_cbranch_scc1 LV_npd
                s_waitcnt lgkmcnt({cfg.lgN})
                """)
                for _ in range(cfg.chkN):
                    a("s_cmp_eq_u64 s[60:61], s[62:63]\ns_cbranch_scc1 LV_npd\ns_nop 1")
                a("""
                s_cmp_eq_u64 s[60:61], s[62:63]
                s_cbranch_scc0 LV_np
                LV_npd:
                """)
            else:
                lds_wait(V_FL, F_GST, 1, 15, 27)
            nop(cfg.dG*4)
            stamp(2)
            def comp2(o, i): mfma32(D_, SELA, LG+4*i, D_ if i else None, o)
            def shadow2():
                a(f"ds_write_b32 v{V_FL}, v126 offset:{F_GIS}")
                if cfg.nM:
                    nop(cfg.dM*4)
                    lstore(f"buffer_store_dword v126, v149, {WS}, 0 offen")
            gather([(LG+4*i, 5, 34, 1024*i) for i in range(4)], 12, comp2, depth=cfg.depthG, shadow=shadow2, young=cfg.nM)
            nop(6)
            cvt(D_, D_, D_+1); cvt(D_+1, D_+2, D_+3); san(D_); san(D_+1)
            lstore(f"buffer_store_dwordx2 v[{D_}:{D_+1}], v{V_MS}, {WS}, s35 offen")
            a(f"ds_write_b32 v{V_FL}, v126 offset:{F_MST}")
            stamp(1)
            lstore(f"buffer_store_dwordx2 v[124:125], v{V_MS}, {WS}, s36 offen")
            if cfg.dbg:
                a(f"""
                s_cmp_lg_u32 s{S_X}, 0
                s_cbranch_scc1 LV_Cnd
                s_mul_i32 s21, s27, 10240
                s_lshl_b32 s25, s{S_C}, 9
                s_add_u32 s21, s21, s25
                s_add_u32 s21, s21, {WS_DBG}
                buffer_store_dwordx2 v[{D_}:{D_+1}], v{V_MS}, {WS}, s21 offen
                LV_Cnd:
                """)
        stamp(5)
        if cfg.trace: a("s_memtime s[82:83]")
        after_wait()
        stamp_commit([0, 1, 2, 3, 4, 5, 6], 160)
        a(f"""
        s_add_u32 s{S_S}, s{S_S}, 1
        s_cmp_lt_u32 s{S_S}, 63
        s_cbranch_scc1 LV_Cloop{cw}
        s_waitcnt vmcnt(0) lgkmcnt(0)
        """)
        stamp_dump([0, 1, 2, 3, 4, 5, 6], 160, 8*cw)
        a("s_endpgm")

    PTK, PMM, UU, YY, OO = 16, 48, 80, 112, 120
    a("LV_C2:")
    a(f"""
    s_lshl_b32 s21, s{S_X}, 10
    s_add_u32 s21, s21, {FL2}
    v_lshlrev_b32 v8, 7, v3
    v_add_u32 v8, s21, v8
    s_mul_i32 s43, s{S_X}, {8*1536}
    s_add_u32 s43, s43, {WS_PR}
    v_lshlrev_b32 v9, 2, v0
    v_lshlrev_b32 v10, 12, v4
    v_lshl_add_u32 v6, v3, 2, v1
    v_lshl_add_u32 v10, v6, 4, v10
    s_lshl_b32 s44, s{S_C}, 14
    s_lshl_b32 s21, s{S_X}, 9
    s_add_u32 s44, s44, s21
    s_add_u32 s44, s44, {WS_O}
    v_mov_b32 v7, {LDS_MISC}
    """)
    for j in range(8): a(f"v_mov_b32 v{PMM+4*j+1}, 0\nv_mov_b32 v{PMM+4*j+2}, 0")
    a(f"""
    s_barrier
    s_barrier
    s_mov_b32 s{S_S}, 0
    LV_C2loop:
    s_add_u32 s27, s{S_S}, 1
    v_mov_b32 v15, s27
    s_cmp_lt_u32 s{S_S}, {2 if cfg.tokpath else 100}
    s_cbranch_scc0 LV_C2a
    ds_write_b32 v7, v15 offset:{F_D2}
    s_branch LV_C2c
    LV_C2a:
    s_sub_u32 s26, s{S_S}, 2
    s_add_u32 s30, s26, 1
    s_and_b32 s21, s26, 3
    s_mul_i32 s24, s21, {PSLOT}
    s_add_u32 s24, s24, s43
    s_lshl_b32 s25, s21, 13
    s_add_u32 s25, s25, {LDS_U}
    v_add_u32 v11, s25, v5
    s_lshl_b32 s25, s21, 11
    s_add_u32 s25, s25, {LDS_Y}
    v_lshlrev_b32 v6, 3, v0
    v_add_u32 v12, s25, v6
    s_and_b32 s21, s26, 7
    s_mul_i32 s28, s21, {OSLOT}
    s_add_u32 s28, s28, s44
    s_add_u32 s29, s28, 8192
    s_min_u32 s31, s27, 64
    s_min_u32 s32, s27, 63
    """)
    lds_wait(7, F_Y, 4, 136, 30, sleep=1)
    for j in range(8): a(f"ds_read_b128 v[{UU+4*j}:{UU+4*j+3}], v11 offset:{j*1024}")
    for j in range(4): a(f"ds_read_b64 v[{YY+2*j}:{YY+2*j+1}], v12 offset:{j*512}")
    a("s_waitcnt lgkmcnt(0)")
    lds_wait(7, F_MW, 4, 136, 31, sleep=1)
    wait_flags(13, 8, 30)
    for j in range(8):
        o = (j % 2)*1536
        a(f"buffer_load_dwordx4 v[{PTK+4*j}:{PTK+4*j+3}], v5, {WS}, s24 offen offset:{o} sc1")
        a(f"buffer_load_dword v{PMM+4*j}, v9, {WS}, s24 offen offset:{o+1024} sc1")
        if j % 2 == 1 and j < 7: a("s_add_u32 s24, s24, 3072")
    for h in range(4):
        a(f"s_waitcnt vmcnt({12-4*h})")
        for tau in range(2): a(f"v_mov_b32 v{PMM+8*h+4*tau+3}, v{PMM+8*h+4*tau}")
        if h == 3: a(f"ds_write_b32 v7, v15 offset:{F_D2}")
        for tau in range(2):
            for t in range(2):
                d = OO + 8*tau + 4*t
                mfma32(d, UU+8*h+4*t, PTK+8*h+4*tau, d if h else None)
        for tau in range(2):
            for t in range(2):
                d = OO + 8*tau + 4*t
                mfma16(d, YY+2*h, PMM+8*h+4*tau+2*t, d)
    nop(8)
    for tau in range(2):
        d = OO + 8*tau
        cvt(d, d, d+1); cvt(d+1, d+2, d+3); cvt(d+2, d+4, d+5); cvt(d+3, d+6, d+7)
        for i in range(4): san(d+i)
    lds_wait(7, F_GIS, 1, 13, 32, sleep=cfg.slO)
    a(f"""
    buffer_store_dwordx4 v[{OO}:{OO+3}], v10, {WS}, s28 offen sc1
    buffer_store_dwordx4 v[{OO+8}:{OO+11}], v10, {WS}, s29 offen sc1
    LV_C2c:
    s_add_u32 s{S_S}, s{S_S}, 1
    s_cmp_lt_u32 s{S_S}, 66
    s_cbranch_scc1 LV_C2loop
    s_waitcnt vmcnt(0) lgkmcnt(0)
    s_endpgm
    """)

    a("LV_C3:")
    mode_wave()
    a(f"""
    v_mov_b32 v7, {LDS_MISC}
    s_and_b32 s21, s{S_C}, 1
    s_mul_i32 s21, s21, 20480
    v_add_u32 v9, s21, v5
    s_sub_u32 s21, 20480, s21
    v_add_u32 v11, s21, v5
    s_barrier
    s_barrier
    s_mov_b32 s{S_S}, 0
    LV_C3loop:
    s_add_u32 s27, s{S_S}, 1
    v_mov_b32 v15, s27
    """)
    a(f"""
    s_add_u32 s26, s{S_S}, 2
    s_cmp_gt_u32 s26, 63
    s_cbranch_scc1 LV_C3b
    """)
    a(f"""
    s_mul_i32 s28, s26, 40960
    s_add_u32 s28, s28, {WS_H}
    s_and_b32 s29, s26, 1
    s_mul_i32 s29, s29, 40960
    s_add_u32 s29, s29, {LDS_TOK}
    v_add_u32 v8, s29, v9
    v_add_u32 v10, s29, v11
    """)
    def tld(i):
        if cfg.nold: return
        a(f"buffer_load_dwordx4 v[{32+4*i}:{35+4*i}], v{9 if i < 20 else 11}, {WS}, s28 offen offset:{(i%4)*1024}")
        if i % 4 == 3: a("s_add_u32 s28, s28, 4096" if i != 19 else "s_sub_u32 s28, s28, 16384")
        if cfg.pace: nop(cfg.pace)
    def twr(i):
        a(f"ds_write_b128 v{8 if i < 20 else 10}, v[{32+4*i}:{35+4*i}] offset:{(i%20)*1024}")
    lds_wait(7, F_MW, 4, 16, 27, sleep=1)
    for i in range(cfg.nA): tld(i)
    if cfg.wA:
        for i in range(cfg.wA):
            a(f"s_waitcnt vmcnt({cfg.nA-1-i})")
            twr(i)
    if cfg.trace: a("s_waitcnt vmcnt(0)")
    stamp(2)
    if cfg.nA < 40:
        lds_wait(7, F_L1D, 1, 16, 27, sleep=1)
        for i in range(cfg.nA, 40): tld(i)
    a("s_waitcnt vmcnt(0)")
    stamp(3)
    lds_wait(7, F_GST, 1, 16, 27, sleep=1)
    for i in range(cfg.wA, 40):
        if not cfg.nowr: twr(i)
    a("LV_C3b:")
    stamp(0)
    a(f"""
    s_waitcnt vmcnt(0)
    ds_write_b32 v7, v15 offset:{F_D3}
    """)
    stamp(1)
    stamp_commit([0, 1, 2, 3], 20)
    after_wait()
    a(f"""
    s_add_u32 s{S_S}, s{S_S}, 1
    s_cmp_lt_u32 s{S_S}, 63
    s_cbranch_scc1 LV_C3loop
    s_waitcnt vmcnt(0) lgkmcnt(0)
    """)
    stamp_dump([0, 1, 2, 3], 20, 20)
    a(f"""
    LM_end:
    s_endpgm
    """)
    for ls, lb, ins in slow:
        a(ls + ":")
        for i in ins: a(i)
        a(f"s_branch {lb}")
    for o in ool: a.lines += o.lines
    return kernel_head(name) + a.text(), kernel_desc(name, 256, 100, 256)
```

```python
def al(x, a): return (x + a - 1) // a * a

WS_MODP = 0
WS_MOD  = 65536
WS_FLAG = 81920
FL1 = WS_FLAG
FL2 = FL1 + 32*3*128
FL3 = FL2 + 32*2*128
FLAG_END = FL3 + 20*8*128
WS_CAL  = al(FLAG_END, 16384)
WS_NG   = WS_CAL + 65536
WS_NL   = WS_NG + 6*16384
WS_L1R  = WS_NL + 32768
L1SLOT = 8*2*4096
WS_MR   = WS_L1R + 4*L1SLOT
MSLOT = 8*10240
WS_PR   = WS_MR + 4*MSLOT
PSLOT = 32*2*1536
WS_T1R  = WS_PR + 4*PSLOT
T1SLOT = 32*3*5120
WS_H    = al(WS_T1R + 4*T1SLOT, 1 << 21)
WS_X1   = WS_H + 64*40960
WS_G    = al(WS_X1 + 2048*1280, 1 << 21)
GSLOT = 163840
WS_O    = al(WS_G + 63*GSLOT, 1 << 21)
OSLOT = 327680
WS_HID  = WS_O + 8*OSLOT
WS_W1F  = WS_HID + 2048*1536*2
WS_W2F  = WS_W1F + 96*20*1024
WS_DBG  = al(WS_W2F + 40*48*1024, 1 << 21)
WS_SIZE = 1 << 28

KA = dict(x=0, mem0=8, Wq=16, Wk=24, Wv=32, Wo=40, seg=48, Bx=56, w1=64, b1=72, w2=80, b2=88,
          c=96, wmod=104, out=112, dbg=120, ws=128)

LDS_TOK = 0
LDS_M   = 81920
LDS_QKM = 92160
LDS_QX  = 98304
LDS_U   = 92160
LDS_Y   = LDS_U + 32768
LDS_HO  = LDS_Y + 8192
LDS_MISC = LDS_HO + 1024
LDS_MAIN = LDS_MISC + 256
if __name__ == '__main__':
    for k, v in list(globals().items()):
        if isinstance(v, int): print(k, v, hex(v))
```

```python
import sys
sys.path.insert(0, 'dev')
from layout import *
import gen_main, gen_aux
NAME = 'adaLN_cond__memory_aug_recurrent_mem_tr__dense_activation_gelu__prompt'
def gen(cfg):
    ref = open(f'cdna_kernels/{NAME}.s.ref').read().splitlines()
    head = [l for l in ref if l.startswith(';') and 'launch' not in l.replace('launch list', '').replace("later launches", "") and 'grid=ceil' not in l]
    ks = [('pre_kernel', gen_aux.gen_pre, 256, gen_aux.LDS_PRE), ('ln1_kernel', gen_aux.gen_ln1, 512, gen_aux.LDS_LN1),
          (NAME + '_kernel', lambda n: gen_main.gen_main(cfg, n), 512, LDS_MAIN),
          ('mlp1_kernel', gen_aux.gen_mlp1, 256, gen_aux.LDS_M1), ('mlp2_kernel', gen_aux.gen_mlp2, 256, gen_aux.LDS_M2)]
    out = '\n'.join(head) + '\n'
    for n, g, b, lds in ks: out += f"; @launch kernel={n} grid=(256,1,1) block=({b},1,1) lds={lds}\n"
    out += '.amdgcn_target "amdgcn-amd-amdhsa--gfx950"\n'
    descs = ''
    for n, g, b, lds in ks:
        body, desc = g(n)
        out += body; descs += desc
    return out + descs
if __name__ == '__main__':
    cfg = gen_main.Cfg()
    path = f'cdna_kernels/{NAME}.s'
    for kv in sys.argv[1:]:
        k, v = kv.split('=')
        if k == 'o': path = v
        else:
            assert hasattr(cfg, k), k; setattr(cfg, k, int(v))
    open(path, 'w').write(gen(cfg))
```

```python
import math, struct
from asmlib import *
from layout import *
def f2u(f): return struct.unpack('<I', struct.pack('<f', f))[0]
WS = "s[4:7]"; SA = "s[8:11]"; SB = "s[12:15]"; SC = "s[24:27]"
LOG2E = math.log2(math.e)
TRACE = 0

class A(Asm):
    def nop(self, n):
        while n > 0:
            k = min(n, 16); self(f"s_nop {k-1}"); n -= k
    def srd(self, dst, karg, size):
        self(f"s_load_dwordx2 s[{dst}:{dst+1}], s[0:1], {karg}\ns_mov_b32 s{dst+2}, {size}\ns_mov_b32 s{dst+3}, 0x20000")
    def xlane(self, op, v, t):
        self(f"""
        v_mov_b32 v{t}, v{v}
        s_nop 1
        v_permlane32_swap_b32 v{t}, v{v}
        {op} v{v}, v{v}, v{t}
        v_mov_b32 v{t}, v{v}
        s_nop 1
        v_permlane16_swap_b32 v{t}, v{v}
        {op} v{v}, v{v}, v{t}
        """)
    def st(self, i):
        if TRACE: self(f"s_memrealtime s[{70+2*i}:{71+2*i}]")
    def stdump(self, n, base):
        if not TRACE: return
        self(f"s_waitcnt lgkmcnt(0)\ns_lshl_b32 s60, s2, 2\ns_add_u32 s60, s60, s16\ns_lshl_b32 s60, s60, 6\ns_add_u32 s60, s60, {WS_DBG + base}\nv_mov_b32 v4, 0")
        for i in range(n): self(f"v_mov_b32 v5, s{70+2*i}\nbuffer_store_dword v5, v4, {WS}, s60 offen offset:{4*i}")
        self("s_waitcnt vmcnt(0)")
    def rowsum16(self, v):
        for r in (8, 4, 2, 1):
            self(f"s_nop 1\nv_add_f32_dpp v{v}, v{v}, v{v} row_ror:{r} row_mask:0xf bank_mask:0xf")

LDS_PRE = 8192 + 16384
def gen_pre(name, cfg, main):
    a = A()
    a(f"""
    s_cmp_ge_u32 s2, 256
    s_cbranch_scc1 LP_end
    """)
    a.srd(4, KA['ws'], WS_SIZE); a.srd(8, KA['wmod'], 640*7680); a.srd(12, KA['c'], 1280)
    a(f"""
    s_load_dwordx2 s[28:29], s[0:1], {KA['w1']}
    s_load_dwordx2 s[30:31], s[0:1], {KA['w2']}
    s_load_dwordx2 s[32:33], s[0:1], {KA['mem0']}
    v_lshrrev_b32 v1, 6, v0
    v_and_b32 v2, 63, v0
    v_readfirstlane_b32 s16, v1
    s_mov_b32 s34, 10240
    s_mov_b32 s35, 0x20000
    s_waitcnt lgkmcnt(0)
    ; ---- mod partial loads: cg = j%60, kq = j/60 (j<240; others read out of range -> zeros, never stored)
    s_mul_i32 s17, s2, 1093
    s_lshr_b32 s17, s17, 16
    s_mul_i32 s18, s17, 60
    s_sub_u32 s18, s2, s18
    v_lshrrev_b32 v3, 3, v0
    s_mul_i32 s19, s17, 160
    v_add_u32 v3, s19, v3
    v_mul_u32_u24 v4, 7680, v3
    v_and_b32 v5, 7, v0
    v_lshl_add_u32 v4, v5, 4, v4
    s_lshl_b32 s20, s18, 7
    v_lshlrev_b32 v3, 1, v3
    """)
    for i in range(5):
        a(f"buffer_load_dwordx4 v[{16+4*i}:{19+4*i}], v4, {SA}, s20 offen nt")
        a(f"buffer_load_ushort v{36+i}, v3, {SB}, 0 offen offset:{i*64}")
        if i < 4: a(f"s_add_u32 s20, s20, {32*7680}")
    a(f"""
    s_lshl_b32 s21, s2, 2
    s_add_u32 s21, s21, s16
    s_cmp_lt_u32 s21, 480
    s_cbranch_scc0 LP_w2
    s_mul_i32 s22, s21, 2731
    s_lshr_b32 s22, s22, 16
    s_mul_i32 s23, s22, 24
    s_sub_u32 s23, s21, s23
    s_mov_b32 s24, s28
    s_mov_b32 s25, s29
    s_mov_b32 s36, 3072
    s_mul_i32 s37, s23, {4*20*1024}
    s_lshl_b32 s38, s22, 10
    s_add_u32 s37, s37, s38
    s_add_u32 s37, s37, {WS_W1F}
    s_mov_b32 s38, {20*1024}
    s_mov_b32 s39, 1024
    s_mov_b32 s40, 512
    s_branch LP_wj
    LP_w2:
    s_sub_u32 s21, s21, 480
    s_mul_i32 s22, s21, 6554
    s_lshr_b32 s22, s22, 16
    s_mul_i32 s23, s22, 10
    s_sub_u32 s23, s21, s23
    s_mov_b32 s24, s30
    s_mov_b32 s25, s31
    s_mov_b32 s36, 1280
    s_mul_i32 s37, s23, {4*48*1024}
    s_lshl_b32 s38, s22, 10
    s_add_u32 s37, s37, s38
    s_add_u32 s37, s37, {WS_W2F}
    s_mov_b32 s38, {48*1024}
    s_mov_b32 s39, 512
    s_mov_b32 s40, 2048
    LP_wj:
    s_mov_b32 s26, {640*3072}
    s_mov_b32 s27, 0x20000
    v_lshrrev_b32 v6, 3, v2
    s_lshl_b32 s41, s22, 5
    v_add_u32 v6, s41, v6
    v_mul_lo_u32 v6, v6, s36
    v_lshl_add_u32 v6, v5, 4, v6
    s_lshl_b32 s41, s23, 7
    s_lshl_b32 s42, s36, 3
    """)
    for i in range(4):
        a(f"buffer_load_dwordx4 v[{44+4*i}:{47+4*i}], v6, {SC}, s41 offen nt")
        if i < 3: a("s_add_u32 s41, s41, s42")
    a(f"""
    s_load_dwordx2 s[48:49], s[0:1], {KA['Wo']}
    s_load_dwordx2 s[52:53], s[0:1], {KA['Wv']}
    s_load_dwordx2 s[56:57], s[0:1], {KA['x']}
    s_getreg_b32 s46, hwreg(HW_REG_XCC_ID, 0, 4)
    s_mov_b32 s50, {32*192*1280}
    s_mov_b32 s51, 0x20000
    s_mov_b32 s54, {640*12288}
    s_mov_b32 s55, 0x20000
    s_mov_b32 s58, {2048*1280}
    s_mov_b32 s59, 0x20000
    s_and_b32 s46, s46, 7
    v_min_u32 v14, 79, v0
    v_lshlrev_b32 v14, 7, v14
    s_mul_i32 s45, s2, 10240
    s_waitcnt lgkmcnt(0)
    buffer_load_dword v86, v14, s[56:59], s45 offen
    """)
    if cfg.precode:
        a(f"""
        s_getpc_b64 s[60:61]
        LP_pc:
        s_add_u32 s60, s60, {main}-LP_pc
        s_addc_u32 s61, s61, 0
        v_lshlrev_b32 v14, 7, v0
        v_min_u32 v14, LM_codeend-{main}, v14
        global_load_dword v87, v14, s[60:61]
        """)
    if cfg.prewarm:
        a(f"""
        v_min_u32 v14, 239, v0
        v_mul_u32_u24 v15, 5462, v14
        v_lshrrev_b32 v15, 16, v15
        v_mul_u32_u24 v15, {12288 - 12*128}, v15
        v_lshlrev_b32 v14, 7, v14
        v_add_u32 v15, v15, v14
        s_lshr_b32 s44, s2, 3
        s_mul_i32 s45, s44, 30720
        s_mul_i32 s47, s46, {4*245760}
        s_add_u32 s45, s45, s47
        buffer_load_dword v84, v14, s[48:51], s45 offen nt
        s_mul_i32 s45, s44, {20*12288}
        s_mul_i32 s47, s46, 1536
        s_add_u32 s45, s45, s47
        buffer_load_dword v85, v15, s[52:55], s45 offen nt
        """)
    def fill(val, lo, hi):
        lp = a.label('fill')
        a(f"""
        v_mov_b32 v8, {val}
        v_mov_b32 v9, {val}
        v_mov_b32 v10, {val}
        v_mov_b32 v11, {val}
        s_lshl_b32 s43, s2, 12
        s_add_u32 s43, s43, {lo}
        s_cmp_ge_u32 s43, {hi}
        s_cbranch_scc1 {lp}_x
        {lp}:
        buffer_store_dwordx4 v[8:11], v7, {WS}, s43 offen
        s_add_u32 s43, s43, {256*4096}
        s_cmp_lt_u32 s43, {hi}
        s_cbranch_scc1 {lp}
        {lp}_x:
        s_nop 1
        """)
        assert (hi - lo) % 4096 == 0
    a("v_lshlrev_b32 v7, 4, v0")
    fill(0, WS_FLAG, FLAG_END)
    fill(0, WS_NG, WS_L1R)
    fill(-1, WS_L1R, WS_MR)
    fill(-1, WS_MR + MSLOT, WS_PR)
    fill(-1, WS_G, WS_G + 4*GSLOT)
    a(f"""
    s_sub_u32 s43, s2, 240
    s_cmp_ge_u32 s43, 8
    s_cbranch_scc1 LP_nom
    s_mul_i32 s43, s43, 10240
    s_add_u32 s43, s43, {WS_MR}
    v_bfe_u32 v8, v0, 2, 2
    v_and_b32 v9, 1, v0
    v_lshl_add_u32 v8, v8, 1, v9
    v_mul_u32_u24 v8, 1280, v8
    v_lshrrev_b32 v9, 4, v0
    v_lshl_add_u32 v8, v9, 5, v8
    v_bfe_u32 v9, v0, 1, 1
    v_lshl_add_u32 v8, v9, 4, v8
    buffer_load_dwordx4 v[60:63], v8, s[32:35], 0 offen
    buffer_load_dwordx4 v[64:67], v8, s[32:35], 0 offen offset:512
    buffer_load_dwordx4 v[68:71], v8, s[32:35], 0 offen offset:1024
    s_waitcnt vmcnt(0)
    """)
    for i in range(60, 72): a(f"v_min_u32 v{i}, -2, v{i}")
    a(f"""
    buffer_store_dwordx4 v[60:63], v7, {WS}, s43 offen
    s_add_u32 s43, s43, 4096
    buffer_store_dwordx4 v[64:67], v7, {WS}, s43 offen
    s_add_u32 s43, s43, 4096
    s_cmp_ge_u32 s16, 2
    s_cbranch_scc1 LP_nom
    buffer_store_dwordx4 v[68:71], v7, {WS}, s43 offen
    LP_nom:
    s_waitcnt vmcnt(0)
    s_cmp_ge_u32 s2, 240
    s_cbranch_scc1 LP_end
    """)
    a(f"""
    s_lshl_b32 s43, s16, 12
    s_add_u32 s43, s43, 8192
    v_lshlrev_b32 v8, 4, v2
    v_add_u32 v9, s43, v8
    """)
    for i in range(4): a(f"ds_write_b128 v9, v[{44+4*i}:{47+4*i}] offset:{i*1024}")
    a(f"""
    v_lshrrev_b32 v10, 4, v2
    v_mul_lo_u32 v10, v10, s39
    v_bfe_u32 v11, v2, 2, 2
    v_lshl_add_u32 v10, v11, 7, v10
    v_and_b32 v11, 3, v2
    v_lshl_add_u32 v10, v11, 3, v10
    v_add_u32 v10, s43, v10
    v_add_u32 v11, s40, v10
    """)
    for n in range(4):
        a(f"ds_read_b64_tr_b16 v[{60+4*n}:{61+4*n}], v10 offset:{n*32}")
        a(f"ds_read_b64_tr_b16 v[{62+4*n}:{63+4*n}], v11 offset:{n*32}")
    a("s_waitcnt lgkmcnt(0)")
    for n in range(4):
        a(f"buffer_store_dwordx4 v[{60+4*n}:{63+4*n}], v8, {WS}, s37 offen")
        if n < 3: a("s_add_u32 s37, s37, s38")
    for i in range(5):
        c = 36 + i
        a(f"""
        v_lshlrev_b32 v{c}, 16, v{c}
        v_mul_f32 v12, {hex(f2u(-LOG2E))}, v{c}
        v_exp_f32 v12, v12
        s_nop 0
        v_add_f32 v12, 1.0, v12
        v_rcp_f32 v12, v12
        s_nop 0
        v_mul_f32 v{c}, v{c}, v12
        v_cvt_pk_bf16_f32 v{c}, v{c}, v{c}
        v_lshlrev_b32 v{c}, 16, v{c}
        """)
        for j in range(4):
            w = 16 + 4*i + j
            a(f"v_lshlrev_b32 v12, 16, v{w}\nv_and_b32 v13, 0xffff0000, v{w}")
            if i == 0: a(f"v_mul_f32 v{76+2*j}, v12, v{c}\nv_mul_f32 v{77+2*j}, v13, v{c}")
            else: a(f"v_fmac_f32 v{76+2*j}, v12, v{c}\nv_fmac_f32 v{77+2*j}, v13, v{c}")
    a(f"""
    v_lshlrev_b32 v12, 5, v0
    ds_write_b128 v12, v[76:79]
    ds_write_b128 v12, v[80:83] offset:16
    s_waitcnt lgkmcnt(0)
    s_barrier
    s_cmp_lg_u32 s16, 0
    s_cbranch_scc1 LP_fin
    v_lshlrev_b32 v12, 2, v0
    """)
    for i in range(32): a(f"ds_read_b32 v{16+i}, v12 offset:{i*256}")
    a("s_waitcnt lgkmcnt(0)")
    for st in (16, 8, 4, 2, 1):
        for i in range(st): a(f"v_add_f32 v{16+i}, v{16+i}, v{16+st+i}")
    a(f"""
    s_mul_i32 s43, s17, {3840*4}
    s_lshl_b32 s44, s18, 8
    s_add_u32 s43, s43, s44
    s_add_u32 s43, s43, {WS_MODP}
    buffer_store_dword v16, v12, {WS}, s43 offen
    LP_fin:
    s_waitcnt vmcnt(0)
    LP_end:
    s_endpgm
    """)
    return kernel_head(name) + a.text(), kernel_desc(name, 88, 64, 88)

def ln1_body(m, sw, warm=None):
    a = A(); a.uid = 900000
    a.srd(8, KA['x'], 2048*1280)
    a(f"""
    v_lshlrev_b32 v3, 4, v89
    v_mov_b32 v4, 0x40000000
    v_cmp_gt_u32 vcc, 320, v89
    s_lshl_b32 s24, s2, 3
    s_add_u32 s24, s24, s{sw}
    v_cndmask_b32 v5, v4, v3, vcc
    v_cmp_gt_u32 vcc, 40, v0
    v_lshlrev_b32 v6, 5, v0
    s_mul_i32 s25, s24, 1280
    v_cndmask_b32 v6, v4, v6, vcc
    s_mov_b32 s26, {WS_MODP}
    """)
    def modld(base, soff):
        for q in range(4):
            a(f"s_add_u32 s27, s{soff}, {q*3840*4}\nbuffer_load_dwordx4 v[{base+4*q}:{base+4*q+3}], v5, {WS}, s27 offen")
    def modsum(base):
        for i in (0, 2):
            a(f"""
            v_pk_add_f32 v[{base+i}:{base+i+1}], v[{base+i}:{base+i+1}], v[{base+4+i}:{base+5+i}]
            v_pk_add_f32 v[{base+8+i}:{base+9+i}], v[{base+8+i}:{base+9+i}], v[{base+12+i}:{base+13+i}]
            v_pk_add_f32 v[{base+i}:{base+i+1}], v[{base+i}:{base+i+1}], v[{base+8+i}:{base+9+i}]
            v_cvt_pk_bf16_f32 v{base+i}, v{base+i}, v{base+i+1}
            v_and_b32 v{base+i+1}, 0xffff0000, v{base+i}
            v_lshlrev_b32 v{base+i}, 16, v{base+i}
            """)
    modld(16, 26)
    a(f"""
    s_waitcnt lgkmcnt(0)
    buffer_load_dwordx4 v[8:11], v6, {SA}, s25 offen
    buffer_load_dwordx4 v[12:15], v6, {SA}, s25 offen offset:16
    s_cmp_ge_u32 s2, 2
    s_cbranch_scc1 LL_nf0
    s_add_u32 s28, s2, 1
    s_mul_i32 s28, s28, 5120
    s_add_u32 s26, s28, {WS_MODP}
    """)
    modld(32, 26)
    a("s_waitcnt vmcnt(0)")
    modsum(32)
    a(f"""
    s_add_u32 s28, s28, {WS_MOD}
    buffer_store_dwordx4 v[32:35], v5, {WS}, s28 offen sc1
    LL_nf0:
    """)
    if warm: warm(a)
    a(f"s_waitcnt vmcnt({1 if warm else 0})")
    modsum(16)
    a(f"""
    s_cmp_ge_u32 s{sw}, 5
    s_cbranch_scc1 LL_nw
    ds_write_b128 v3, v[16:19]
    LL_nw:
    """)
    a("s_waitcnt lgkmcnt(0)\ns_barrier")
    a("v_min_u32 v7, 39, v0\nv_lshlrev_b32 v7, 6, v7")
    for i in range(4): a(f"ds_read_b128 v[{48+4*i}:{51+4*i}], v7 offset:{i*16}")
    for i in range(4): a(f"ds_read_b128 v[{64+4*i}:{67+4*i}], v7 offset:{2560+i*16}")
    for i in range(8):
        a(f"v_lshlrev_b32 v{16+2*i}, 16, v{8+i}\nv_and_b32 v{17+2*i}, 0xffff0000, v{8+i}")
    a("v_pk_add_f32 v[32:33], v[16:17], v[18:19]")
    for i in range(20, 32, 2): a(f"v_pk_add_f32 v[32:33], v[32:33], v[{i}:{i+1}]")
    a("v_add_f32 v32, v32, v33")
    a.rowsum16(32); a.xlane("v_add_f32", 32, 33)
    a(f"v_mul_f32 v32, {hex(f2u(1/640))}, v32")
    for i in range(16, 32, 2): a(f"v_pk_add_f32 v[{i}:{i+1}], v[{i}:{i+1}], v[32:33] op_sel_hi:[1,0] neg_lo:[0,1] neg_hi:[0,1]")
    a("v_pk_mul_f32 v[34:35], v[16:17], v[16:17]")
    for i in range(18, 32, 2): a(f"v_pk_fma_f32 v[34:35], v[{i}:{i+1}], v[{i}:{i+1}], v[34:35]")
    a("v_add_f32 v34, v34, v35\nv_cndmask_b32 v34, 0, v34, vcc")
    a.rowsum16(34); a.xlane("v_add_f32", 34, 35)
    a(f"""
    v_mov_b32 v35, {hex(f2u(1e-5))}
    v_fmac_f32 v35, {hex(f2u(1/640))}, v34
    v_rsq_f32 v34, v35
    s_waitcnt lgkmcnt(0)
    """)
    for i in range(0, 16, 2):
        a(f"""
        v_pk_mul_f32 v[{16+i}:{17+i}], v[{16+i}:{17+i}], v[34:35] op_sel_hi:[1,0]
        v_pk_add_f32 v[{64+i}:{65+i}], v[{64+i}:{65+i}], 1.0 op_sel_hi:[1,0]
        v_pk_fma_f32 v[{16+i}:{17+i}], v[{16+i}:{17+i}], v[{64+i}:{65+i}], v[{48+i}:{49+i}]
        """)
    order = [0, 4, 1, 5, 2, 6, 3, 7]
    for j, d in enumerate(order): a(f"v_cvt_pk_bf16_f32 v{8+j}, v{16+2*d}, v{17+2*d}")
    a(f"""
    v_lshlrev_b32 v6, 8, v0
    s_lshl_b32 s26, s{sw}, 4
    s_add_u32 s26, s26, 8192
    v_add_u32 v6, s26, v6
    ds_write_b128 v6, v[8:11]
    ds_write_b128 v6, v[12:15] offset:128
    s_waitcnt lgkmcnt(0)
    s_barrier
    ds_read_b128 v[8:11], v3 offset:8192
    ds_read_b128 v[12:15], v3 offset:16384
    v_lshrrev_b32 v6, 3, v89
    v_lshlrev_b32 v6, 8, v6
    v_and_b32 v7, 7, v89
    v_lshl_add_u32 v6, v7, 4, v6
    s_lshr_b32 s26, s2, 1
    s_mul_i32 s26, s26, 20480
    s_and_b32 s27, s2, 1
    s_lshl_b32 s27, s27, 7
    s_add_u32 s26, s26, s27
    s_add_u32 s26, s26, {WS_H}
    s_add_u32 s27, s26, 16384
    s_waitcnt lgkmcnt(0)
    buffer_store_dwordx4 v[8:11], v6, {WS}, s26 offen sc1
    s_cmp_ge_u32 s{sw}, 2
    s_cbranch_scc1 LL_ns
    buffer_store_dwordx4 v[12:15], v6, {WS}, s27 offen sc1
    LL_ns:
    """)
    m.lines += a.lines

LDS_M1 = 81920 + 5120
def gen_mlp1(name):
    a = A()
    X = 16
    ACC = 96
    XF = 144
    T = 176
    a("s_cmp_ge_u32 s2, 256\ns_cbranch_scc1 LA_end"); a.st(0)
    a.srd(4, KA['ws'], WS_SIZE); a.srd(8, KA['b1'], 3072)
    a(f"""
    v_lshrrev_b32 v1, 6, v0
    v_and_b32 v2, 63, v0
    v_readfirstlane_b32 s16, v1
    v_lshlrev_b32 v3, 4, v2
    v_lshlrev_b32 v4, 4, v0
    s_and_b32 s17, s2, 7
    s_lshl_b32 s17, s17, 2
    s_bfe_u32 s18, s2, 0x20003
    s_add_u32 s17, s17, s18
    s_lshr_b32 s18, s2, 5
    s_lshl_b32 s19, s17, 2
    s_add_u32 s19, s19, s16
    s_mul_i32 s20, s19, 20480
    s_add_u32 s20, s20, {WS_X1}
    s_lshl_b32 s21, s18, 2
    s_add_u32 s21, s21, s16
    s_mul_i32 s21, s21, 3
    s_mul_i32 s22, s21, 20480
    s_add_u32 s22, s22, {WS_W1F}
    s_mov_b32 s23, {WS_MOD + 3*2560}
    s_add_u32 s28, s23, 4096
    s_waitcnt lgkmcnt(0)
    buffer_load_dwordx4 v[8:11], v4, {WS}, s23 offen
    buffer_load_dwordx4 v[12:15], v3, {WS}, s28 offen
    """)
    for k in range(20):
        a(f"buffer_load_dwordx4 v[{X+4*k}:{X+4*k+3}], v3, {WS}, s20 offen offset:{(k%4)*1024}")
        if k % 4 == 3: a("s_add_u32 s20, s20, 4096")
    a("s_add_u32 s29, s22, 20480\ns_add_u32 s30, s29, 20480")
    def ldB(k):
        for n, s in enumerate((22, 29, 30)):
            r = 12*k + 4*n
            a(f"buffer_load_dwordx4 a[{r}:{r+3}], v3, {WS}, s{s} offen offset:{(k%4)*1024}")
        if k % 4 == 3: a("s_add_u32 s22, s22, 4096\ns_add_u32 s29, s29, 4096\ns_add_u32 s30, s30, 4096")
    for k in range(13): ldB(k)
    a(f"""
    s_waitcnt vmcnt(59)
    v_add_u32 v5, 81920, v4
    v_add_u32 v6, {81920+4096}, v3
    ds_write_b128 v5, v[8:11]
    ds_write_b128 v6, v[12:15]
    s_waitcnt vmcnt(39)
    """)
    a.st(1)
    for k in range(13, 20): ldB(k)
    a(f"""
    v_lshrrev_b32 v7, 4, v2
    v_lshlrev_b32 v8, 3, v7
    s_lshl_b32 s31, s21, 5
    """)
    for n in range(3): a(f"buffer_load_dwordx2 v[{10+2*n}:{11+2*n}], v8, {SA}, s31 offen offset:{n*32}")
    a(f"v_mov_b32 v{T}, 0\nv_mov_b32 v{T+1}, 0")
    for i in range(80):
        a(f"""
        v_lshlrev_b32 v{T+2}, 16, v{X+i}
        v_and_b32 v{T+3}, 0xffff0000, v{X+i}
        v_pk_add_f32 v[{T}:{T+1}], v[{T}:{T+1}], v[{T+2}:{T+3}]
        """)
    a(f"v_add_f32 v{T}, v{T}, v{T+1}")
    a.xlane("v_add_f32", T, T+1)
    a(f"v_mul_f32 v{T}, {hex(f2u(1/640))}, v{T}\nv_mov_b32 v{T+4}, 0\nv_mov_b32 v{T+5}, 0")
    for i in range(80):
        a(f"""
        v_lshlrev_b32 v{T+2}, 16, v{X+i}
        v_and_b32 v{T+3}, 0xffff0000, v{X+i}
        v_pk_add_f32 v[{T+2}:{T+3}], v[{T+2}:{T+3}], v[{T}:{T+1}] op_sel_hi:[1,0] neg_lo:[0,1] neg_hi:[0,1]
        v_pk_fma_f32 v[{T+4}:{T+5}], v[{T+2}:{T+3}], v[{T+2}:{T+3}], v[{T+4}:{T+5}]
        """)
    a(f"v_add_f32 v{T+4}, v{T+4}, v{T+5}")
    a.xlane("v_add_f32", T+4, T+5)
    a(f"""
    v_mov_b32 v{T+5}, {hex(f2u(1e-5))}
    v_fmac_f32 v{T+5}, {hex(f2u(1/640))}, v{T+4}
    v_rsq_f32 v{T+4}, v{T+5}
    s_waitcnt lgkmcnt(0)
    s_barrier
    v_lshlrev_b32 v9, 5, v7
    v_add_u32 v9, 81920, v9
    s_mul_i32 s31, s16, 20480
    v_add_u32 v5, s31, v3
    """)
    P = T + 8
    def rdP(k):
        p = P + 16*(k % 2)
        a(f"""
        ds_read_b128 v[{p}:{p+3}], v9 offset:{k*128}
        ds_read_b128 v[{p+4}:{p+7}], v9 offset:{k*128+16}
        ds_read_b128 v[{p+8}:{p+11}], v9 offset:{2560+k*128}
        ds_read_b128 v[{p+12}:{p+15}], v9 offset:{2560+k*128+16}
        """)
    rdP(0)
    for k in range(20):
        if k < 19: rdP(k+1)
        a(f"s_waitcnt lgkmcnt({4 if k < 19 else 0})")
        p = P + 16*(k % 2)
        for j in range(4):
            x = X + 4*k + j
            a(f"""
            v_lshlrev_b32 v{T+2}, 16, v{x}
            v_and_b32 v{T+3}, 0xffff0000, v{x}
            v_pk_add_f32 v[{T+2}:{T+3}], v[{T+2}:{T+3}], v[{T}:{T+1}] op_sel_hi:[1,0] neg_lo:[0,1] neg_hi:[0,1]
            v_pk_mul_f32 v[{T+2}:{T+3}], v[{T+2}:{T+3}], v[{T+4}:{T+5}] op_sel_hi:[1,0]
            v_pk_add_f32 v[{p+2*j}:{p+2*j+1}], v[{p+2*j}:{p+2*j+1}], v[{T+2}:{T+3}]
            v_pk_fma_f32 v[{T+2}:{T+3}], v[{T+2}:{T+3}], v[{p+8+2*j}:{p+9+2*j}], v[{p+2*j}:{p+2*j+1}]
            v_cvt_pk_bf16_f32 v{x}, v{T+2}, v{T+3}
            """)
    for k in range(20): a(f"ds_write_b128 v5, v[{X+4*k}:{X+4*k+3}] offset:{k*1024}")
    a("v_add_u32 v6, 40960, v3\ns_waitcnt lgkmcnt(0)\ns_barrier")
    def rdA(k):
        for tt in range(4):
            r = XF + 16*(k % 2) + 4*tt
            a(f"ds_read_b128 v[{r}:{r+3}], v{3 if tt < 2 else 6} offset:{(tt%2)*20480 + k*1024}")
    a.st(2)
    a("s_waitcnt vmcnt(0)")
    a.st(3)
    if TRACE: a("s_waitcnt lgkmcnt(0)")
    rdA(0)
    for k in range(20):
        if k < 19: rdA(k+1)
        a(f"s_waitcnt lgkmcnt({4 if k < 19 else 0})")
        for n in range(3):
            for tt in range(4):
                d = ACC + 16*n + 4*tt; r = XF + 16*(k % 2) + 4*tt; b = 12*k + 4*n
                a(f"v_mfma_f32_16x16x32_bf16 v[{d}:{d+3}], a[{b}:{b+3}], v[{r}:{r+3}], " + (f"v[{d}:{d+3}]" if k else "0"))
    a.st(4)
    K1 = 2*math.sqrt(2/math.pi)*LOG2E
    a(f"""
    s_mov_b32 s32, {hex(f2u(-K1*0.044715))}
    s_mov_b32 s33, s32
    v_mov_b32 v{T+6}, {hex(f2u(-K1))}
    v_mov_b32 v{T+7}, v{T+6}
    s_mul_i32 s20, s17, {4*49152}
    s_add_u32 s20, s20, {WS_HID}
    """)
    for n in range(3):
        a(f"""
        v_lshlrev_b32 v{P}, 16, v{10+2*n}
        v_and_b32 v{P+1}, 0xffff0000, v{10+2*n}
        v_lshlrev_b32 v{P+2}, 16, v{11+2*n}
        v_and_b32 v{P+3}, 0xffff0000, v{11+2*n}
        s_add_u32 s34, s21, {n}
        s_lshr_b32 s35, s34, 1
        s_lshl_b32 s35, s35, 10
        s_and_b32 s34, s34, 1
        s_lshl_b32 s34, s34, 3
        s_add_u32 s35, s35, s34
        s_add_u32 s35, s35, s20
        """)
        for tt in range(4):
            d = ACC + 16*n + 4*tt
            for h in (0, 2):
                a(f"""
                v_pk_add_f32 v[{d+h}:{d+h+1}], v[{d+h}:{d+h+1}], v[{P+h}:{P+h+1}]
                v_pk_mul_f32 v[{T}:{T+1}], v[{d+h}:{d+h+1}], v[{d+h}:{d+h+1}]
                v_pk_fma_f32 v[{T}:{T+1}], v[{T}:{T+1}], s[32:33], v[{T+6}:{T+7}]
                v_pk_mul_f32 v[{T}:{T+1}], v[{T}:{T+1}], v[{d+h}:{d+h+1}]
                v_exp_f32 v{T}, v{T}
                v_exp_f32 v{T+1}, v{T+1}
                s_nop 0
                v_pk_add_f32 v[{T}:{T+1}], v[{T}:{T+1}], 1.0 op_sel_hi:[1,0]
                v_rcp_f32 v{T}, v{T}
                v_rcp_f32 v{T+1}, v{T+1}
                s_nop 0
                v_pk_mul_f32 v[{d+h}:{d+h+1}], v[{d+h}:{d+h+1}], v[{T}:{T+1}]
                """)
            a(f"""
            v_cvt_pk_bf16_f32 v{d}, v{d}, v{d+1}
            v_cvt_pk_bf16_f32 v{d+1}, v{d+2}, v{d+3}
            buffer_store_dwordx2 v[{d}:{d+1}], v3, {WS}, s35 offen
            """)
            if tt < 3: a("s_add_u32 s35, s35, 49152")
    a.st(5)
    a("s_waitcnt vmcnt(0)")
    a.st(6); a.stdump(7, 0)
    a("LA_end:\ns_endpgm")
    return kernel_head(name) + a.text(), kernel_desc(name, 496, 96, 256)

LDS_M2 = 81920
def gen_mlp2(name):
    a = A()
    ACC = 16
    NB = 6
    a("s_cmp_ge_u32 s2, 256\ns_cbranch_scc1 LB_end"); a.st(0)
    a.srd(4, KA['ws'], WS_SIZE); a.srd(8, KA['b2'], 1280); a.srd(12, KA['out'], 2048*1280)
    a(f"""
    v_lshrrev_b32 v1, 6, v0
    v_and_b32 v2, 63, v0
    v_readfirstlane_b32 s16, v1
    v_lshlrev_b32 v3, 4, v2
    s_and_b32 s17, s2, 7
    s_lshl_b32 s17, s17, 2
    s_bfe_u32 s18, s2, 0x20003
    s_add_u32 s17, s17, s18
    s_lshr_b32 s18, s2, 5
    s_mul_i32 s19, s16, 12288
    s_mul_i32 s20, s17, {4*49152}
    s_add_u32 s20, s20, s19
    s_add_u32 s28, s20, {WS_HID}
    s_mul_i32 s20, s18, {5*49152}
    s_add_u32 s20, s20, s19
    s_add_u32 s32, s20, {WS_W2F}
    """)
    for i in range(1, 4): a(f"s_add_u32 s{28+i}, s{27+i}, 49152")
    for i in range(1, 5): a(f"s_add_u32 s{32+i}, s{31+i}, 49152")
    a("s_waitcnt lgkmcnt(0)")
    def ld(k):
        for j in range(9):
            r = 36*(k % NB) + 4*j
            a(f"buffer_load_dwordx4 a[{r}:{r+3}], v3, {WS}, s{28+j} offen offset:{(k%4)*1024}")
        if k % 4 == 3:
            for j in range(9): a(f"s_add_u32 s{28+j}, s{28+j}, 4096")
    for k in range(NB): ld(k)
    for i in range(5):
        b = 96 + 4*i
        a(f"""
        v_add_u32 v4, {256*i}, v0
        v_mul_u32_u24 v5, 3277, v4
        v_lshrrev_b32 v5, 16, v5
        v_mul_u32_u24 v6, 20, v5
        v_sub_u32 v6, v4, v6
        v_lshrrev_b32 v7, 4, v5
        v_and_b32 v8, 15, v5
        v_mul_u32_u24 v9, 5120, v7
        v_lshl_add_u32 v9, v6, 8, v9
        v_lshl_add_u32 v{b}, v8, 4, v9
        s_mul_i32 s20, s18, 20
        v_add_u32 v6, s20, v6
        v_lshlrev_b32 v{b+3}, 3, v6
        s_lshl_b32 s20, s17, 6
        v_add_u32 v9, s20, v5
        v_mul_u32_u24 v9, 1280, v9
        v_add_u32 v{b+2}, v9, v{b+3}
        v_mul_u32_u24 v9, 20480, v7
        v_lshl_add_u32 v9, v8, 4, v9
        v_lshrrev_b32 v10, 1, v6
        v_lshl_add_u32 v9, v10, 8, v9
        v_and_b32 v10, 1, v6
        v_lshl_add_u32 v{b+1}, v10, 3, v9
        """)
    for k in range(12):
        rem = min(NB - 1, 11 - k)
        if k == 0: a.st(1)
        a(f"s_waitcnt vmcnt({9*rem})")
        if k == 0: a.st(2)
        if k == 6: a.st(3)
        r0 = 36*(k % NB)
        for tt in range(4):
            for n in range(5):
                d = ACC + 20*tt + 4*n
                a(f"v_mfma_f32_16x16x32_bf16 v[{d}:{d+3}], a[{r0+16+4*n}:{r0+19+4*n}], a[{r0+4*tt}:{r0+4*tt+3}], " + (f"v[{d}:{d+3}]" if k else "0"))
        if k + NB < 12: ld(k + NB)
    a.st(4)
    a(f"""
    s_mul_i32 s20, s17, {4*20480}
    s_add_u32 s20, s20, {WS_X1}
    s_mov_b32 s21, {WS_MOD + 5*2560}
    """)
    for i in range(5):
        b = 96 + 4*i; e = 116 + 8*i
        a(f"""
        buffer_load_dwordx2 v[{e}:{e+1}], v{b+1}, {WS}, s20 offen
        buffer_load_dwordx2 v[{e+2}:{e+3}], v{b+3}, {SA}, 0 offen
        v_lshlrev_b32 v4, 1, v{b+3}
        buffer_load_dwordx4 v[{e+4}:{e+7}], v4, {WS}, s21 offen
        """)
    a("s_mul_i32 s22, s16, 20480\nv_add_u32 v5, s22, v3")
    for j in range(20): a(f"ds_write_b128 v5, v[{ACC+4*j}:{ACC+4*j+3}] offset:{j*1024}")
    a("s_waitcnt lgkmcnt(0)\ns_barrier")
    for i in range(5):
        for w in range(4):
            r = ACC + 16*i + 4*w
            a(f"ds_read_b128 v[{r}:{r+3}], v{96+4*i} offset:{w*20480}")
        if i == 2: a("s_waitcnt lgkmcnt(4)")
    a("s_waitcnt vmcnt(0) lgkmcnt(0)")
    for i in range(5):
        r = ACC + 16*i; e = 116 + 8*i
        for h in (0, 2):
            a(f"""
            v_pk_add_f32 v[{r+h}:{r+h+1}], v[{r+h}:{r+h+1}], v[{r+4+h}:{r+5+h}]
            v_pk_add_f32 v[{r+8+h}:{r+9+h}], v[{r+8+h}:{r+9+h}], v[{r+12+h}:{r+13+h}]
            v_lshlrev_b32 v4, 16, v{e+2+h//2}
            v_and_b32 v5, 0xffff0000, v{e+2+h//2}
            v_pk_add_f32 v[{r+h}:{r+h+1}], v[{r+h}:{r+h+1}], v[{r+8+h}:{r+9+h}]
            v_lshlrev_b32 v6, 16, v{e+h//2}
            v_and_b32 v7, 0xffff0000, v{e+h//2}
            v_pk_add_f32 v[{r+h}:{r+h+1}], v[{r+h}:{r+h+1}], v[4:5]
            v_pk_fma_f32 v[{r+h}:{r+h+1}], v[{r+h}:{r+h+1}], v[{e+4+h}:{e+5+h}], v[6:7]
            """)
        a(f"""
        v_cvt_pk_bf16_f32 v{r}, v{r}, v{r+1}
        v_cvt_pk_bf16_f32 v{r+1}, v{r+2}, v{r+3}
        buffer_store_dwordx2 v[{r}:{r+1}], v{96+4*i+2}, {SB}, 0 offen
        """)
    a.st(5)
    a("s_waitcnt vmcnt(0)")
    a.st(6); a.stdump(7, 65536)
    a("LB_end:\ns_endpgm")
    return kernel_head(name) + a.text(), kernel_desc(name, 160 + 216, 96, 160)
```

```python
import math, struct
from asmlib import *
from layout import *
import gen_aux

def f2u(f): return struct.unpack('<I', struct.pack('<f', f))[0]
CSC = f2u(192 ** -0.5 * math.log2(math.e))
NEGBIG = f2u(-1e9 / (192 ** -0.5))
BIG = 1 << 20

S_WAVE, S_X, S_C, S_MODE, S_S = 16, 17, 18, 19, 20
S_CNT, S_LIM = 37, 38
WS = "s[4:7]"; SA = "s[8:11]"; SB = "s[12:15]"

def NT(x): return ' nt' if x else ''
class Cfg:
    dbg = 0
    trace = 0
    fake_xcc = 0
    tokpath = 1
    nomfma = 0
    slQW = 4; slQC = 10; slQD = 8; slO = 1; slQ3 = 5
    n1 = 6; nA = 16; wA = 0
    depthG = 2; depthL1 = 3; depthM = 3; depthN = 3
    nG = 1; posG = 2; early = 0; lgN = 8; chkN = 5; dG = 0
    nL1 = 1; padL1 = 0
    nM = 1; dM = 14; pace = 0; nowr = 0; nold = 0; ntQ = 1; ntO = 1; ntV = 0; rotV = 1; tail = 1; fuse_ln = 1; warm = 1; ntW = 1; prewarm = 0; precode = 1; light = 0; ptrace = 0; g2M = 25; g2L = 0; all12 = 1; dN1 = 16

def gen_main(cfg, name):
    a = Asm()
    slow = []
    ool = []

    def nop(n):
        while n > 0:
            k = min(n, 16); a(f"s_nop {k-1}"); n -= k

    def lstore(instrs):
        if isinstance(instrs, str): instrs = [instrs]
        ls, lb = a.label('slow'), a.label('back')
        a(f"s_cmp_lg_u32 s{S_MODE}, 0\ns_cbranch_scc1 {ls}")
        for i in instrs: a(i)
        a(lb + ":")
        slow.append((ls, lb, [(i[:-3] + " sc1 nt" if i.endswith(" nt") else i + " sc1") for i in instrs]))

    def timeout(done):
        a(f"s_sub_u32 s{S_CNT}, s{S_CNT}, 1\ns_cbranch_scc1 {done}")

    def after_wait():
        a(f"s_cmp_lt_i32 s{S_CNT}, 0\ns_cselect_b32 s{S_LIM}, 4, s{S_LIM}")

    def scout(vs, voff, soff, imm=0):
        lp, dn = a.label('sc'), a.label('scd')
        a(f"""
        v_mov_b32 v{vs}, -1
        s_mov_b64 exec, 1
        s_mov_b32 s{S_CNT}, s{S_LIM}
        {lp}:
        buffer_load_dword v{vs}, v{voff}, {WS}, s{soff} offen offset:{imm} sc1
        """)
        timeout(dn)
        a(f"""
        s_waitcnt vmcnt(1)
        v_cmp_eq_u32 vcc, -1, v{vs}
        s_cbranch_vccnz {lp}
        {dn}:
        s_mov_b64 exec, -1
        """)

    def nscout(vs, voff, sneed, sexec):
        lp, dn = a.label('ns'), a.label('nsd')
        a(f"""
        v_mov_b32 v{vs}, 0
        s_mov_b64 exec, s[{sexec}:{sexec+1}]
        s_mov_b32 s{S_CNT}, s{S_LIM}
        {lp}:
        buffer_load_dword v{vs}, v{voff}, {WS}, 0 offen sc1
        """)
        timeout(dn)
        a(f"""
        s_waitcnt vmcnt({cfg.depthN-1})
        v_cmp_gt_u32 vcc, s{sneed}, v{vs}
        s_cbranch_vccnz {lp}
        {dn}:
        s_mov_b64 exec, -1
        """)

    def lds_wait(vaddr, off, nflags, vtmp, sneed, extra=None, sleep=0):
        lp, dn, st = a.label('lw'), a.label('lwd'), a.label('lws')
        a(f"s_mov_b32 s{S_CNT}, s{S_LIM}")
        if sleep: a(f"s_branch {st}\n{lp}:\ns_sleep {sleep}\n{st}:")
        else: a(f"{lp}:")
        if nflags == 1: a(f"ds_read_b32 v{vtmp}, v{vaddr} offset:{off}")
        elif nflags == 2: a(f"ds_read_b64 v[{vtmp}:{vtmp+1}], v{vaddr} offset:{off}")
        else: a(f"ds_read_b128 v[{vtmp}:{vtmp+3}], v{vaddr} offset:{off}")
        ne = extra() if extra else 0
        timeout(dn)
        a(f"s_waitcnt lgkmcnt({ne})")
        if nflags == 2:
            a(f"v_min_u32 v{vtmp}, v{vtmp}, v{vtmp+1}")
        if nflags == 4:
            a(f"v_min3_u32 v{vtmp}, v{vtmp}, v{vtmp+1}, v{vtmp+2}\nv_min_u32 v{vtmp}, v{vtmp}, v{vtmp+3}")
        a(f"v_cmp_gt_u32 vcc, s{sneed}, v{vtmp}\ns_cbranch_vccnz {lp}\n{dn}:")

    def gather(loads, vchk, compute=None, depth=2, shadow=None, young=0, rsleep=0):
        rt, lp, ex, dn = a.label('gr'), a.label('g'), a.label('gx'), a.label('gd')
        n = len(loads)
        def issue(o):
            for (d, vo, so, im) in loads:
                o(f"buffer_load_dwordx4 v[{d}:{d+3}], v{vo}, {WS}, s{so} offen offset:{im} sc1")
        def chk(o, i):
            d = loads[i][0]
            if i == 0:
                o(f"v_max3_u32 v{vchk}, v{d}, v{d+1}, v{d+2}\nv_max_u32 v{vchk}, v{vchk}, v{d+3}")
            else:
                o(f"v_max3_u32 v{vchk}, v{vchk}, v{d}, v{d+1}\nv_max3_u32 v{vchk}, v{vchk}, v{d+2}, v{d+3}")
        issue(a)
        if shadow: shadow()
        for i in range(n):
            a(f"s_waitcnt vmcnt({n-1-i+young})")
            chk(a, i)
            if compute: compute(a, i)
        a(f"v_cmp_eq_u32 vcc, -1, v{vchk}\ns_cbranch_vccnz {rt}\n{dn}:")
        o = Asm(); o.uid = a.uid + 1000
        o(f"{rt}:\ns_mov_b32 s{S_CNT}, s{S_LIM}\n{lp}:\ns_mov_b64 exec, vcc")
        if rsleep: o(f"s_sleep {rsleep}")
        issue(o)
        o(f"s_sub_u32 s{S_CNT}, s{S_CNT}, 1\ns_cbranch_scc1 {ex}\ns_waitcnt vmcnt({n*(depth-1)})")
        for i in range(n): chk(o, i)
        o(f"v_cmp_eq_u32 vcc, -1, v{vchk}\ns_cbranch_vccnz {lp}\n{ex}:\ns_mov_b64 exec, -1")
        o(f"s_cmp_lt_i32 s{S_CNT}, 0\ns_cselect_b32 s{S_LIM}, 4, s{S_LIM}")
        if compute:
            for i in range(n): compute(o, i)
            o("s_nop 1")
        o(f"s_branch {dn}")
        ool.append(o)

    def gather2(loads, vchk, compute=None, shadow=None, pad=0):
        lp, dn = a.label('g2'), a.label('g2d')
        n = len(loads)
        def issue():
            for (d, vo, so, im) in loads:
                a(f"buffer_load_dwordx4 v[{d}:{d+3}], v{vo}, {WS}, s{so} offen offset:{im} sc1")
        issue()
        if shadow: shadow()
        nop(pad)
        a(f"s_mov_b32 s{S_CNT}, s{S_LIM}\n{lp}:")
        issue()
        timeout(dn)
        for i in range(n):
            d = loads[i][0]
            a(f"s_waitcnt vmcnt({2*n-1-i})")
            if i == 0: a(f"v_max3_u32 v{vchk}, v{d}, v{d+1}, v{d+2}\nv_max_u32 v{vchk}, v{vchk}, v{d+3}")
            else: a(f"v_max3_u32 v{vchk}, v{vchk}, v{d}, v{d+1}\nv_max3_u32 v{vchk}, v{vchk}, v{d+2}, v{d+3}")
            if compute: compute(a, i)
        a(f"v_cmp_eq_u32 vcc, -1, v{vchk}\ns_cbranch_vccnz {lp}\n{dn}:")

    def gather_blind(loads, vchk, compute, depth, pad=0):
        lp, ex = a.label('gb'), a.label('gbx')
        n = len(loads)
        for (d, vo, so, im) in loads:
            for j in range(4): a(f"v_mov_b32 v{d+j}, -1")
        a(f"s_mov_b32 s{S_CNT}, s{S_LIM}\ns_mov_b64 vcc, -1\n{lp}:\ns_mov_b64 exec, vcc")
        for (d, vo, so, im) in loads:
            a(f"buffer_load_dwordx4 v[{d}:{d+3}], v{vo}, {WS}, s{so} offen offset:{im} sc1")
        a(f"s_sub_u32 s{S_CNT}, s{S_CNT}, 1\ns_cbranch_scc1 {ex}")
        if pad: nop(pad)
        a(f"s_waitcnt vmcnt({min(63, n*(depth-1))})")
        for i in range(n):
            d = loads[i][0]
            if i == 0: a(f"v_max3_u32 v{vchk}, v{d}, v{d+1}, v{d+2}\nv_max_u32 v{vchk}, v{vchk}, v{d+3}")
            else: a(f"v_max3_u32 v{vchk}, v{vchk}, v{d}, v{d+1}\nv_max3_u32 v{vchk}, v{vchk}, v{d+2}, v{d+3}")
        a(f"v_cmp_eq_u32 vcc, -1, v{vchk}\ns_cbranch_vccnz {lp}\n{ex}:\ns_mov_b64 exec, -1")
        for i in range(n): compute(a, i)
        a("s_nop 1")

    def wait_flags(vtmp, voff, sneed):
        lp, dn = a.label('f'), a.label('fd')
        a(f"""
        s_mov_b32 s{S_CNT}, s{S_LIM}
        {lp}:
        buffer_load_dword v{vtmp}, v{voff}, {WS}, 0 offen sc1
        s_waitcnt vmcnt(0)
        v_cmp_gt_u32 vcc, s{sneed}, v{vtmp}
        s_cbranch_vccz {dn}
        """)
        timeout(dn)
        a(f"s_sleep 1\ns_branch {lp}\n{dn}:")
        after_wait()

    def set_h(wave):
        sk = a.label('nohf')
        a(f"""
        s_cmp_lg_u32 s{S_WAVE}, {wave}
        s_cbranch_scc1 {sk}
        s_cmp_ge_u32 s2, 16
        s_cbranch_scc1 {sk}
        s_lshl_b32 s21, s2, 7
        s_add_u32 s21, s21, {FLH}
        v_mov_b32 v90, 0
        v_mov_b32 v91, 1
        s_mov_b64 exec, 1
        buffer_store_dword v91, v90, {WS}, s21 offen sc1
        s_mov_b64 exec, -1
        {sk}:
        """)
    def wait_h():
        if not cfg.fuse_ln: return
        a(f"""
        v_lshlrev_b32 v16, 7, v2
        v_add_u32 v16, {FLH}, v16
        s_mov_b32 s21, 1
        """)
        wait_flags(17, 16, 21)

    def srd(dst, karg, size):
        a(f"""
        s_load_dwordx2 s[{dst}:{dst+1}], s[0:1], {karg}
        s_mov_b32 s{dst+2}, {size}
        s_mov_b32 s{dst+3}, 0x20000
        s_waitcnt lgkmcnt(0)
        """)

    def mfma32(d, x, y, c, a=a): a(f"v_mfma_f32_16x16x32_bf16 v[{d}:{d+3}], v[{x}:{x+3}], v[{y}:{y+3}], " + (f"v[{c}:{c+3}]" if c is not None else "0"))
    def mfma16(d, x, y, c, a=a): a(f"v_mfma_f32_16x16x16_bf16 v[{d}:{d+3}], v[{x}:{x+1}], v[{y}:{y+1}], " + (f"v[{c}:{c+3}]" if c is not None else "0"))
    def cvt(d, x, y): a(f"v_cvt_pk_bf16_f32 v{d}, v{x}, v{y}")
    def san(d): a(f"v_min_u32 v{d}, -2, v{d}")

    def lanes():
        a("""
        v_lshrrev_b32 v1, 4, v0
        v_and_b32 v2, 15, v0
        v_and_b32 v3, 7, v0
        v_bfe_u32 v4, v0, 3, 1
        v_lshlrev_b32 v5, 4, v0
        """)

    def build_sel(vall, vA=None, vLo=None, vHi=None, t0=6, t1=7):
        a(f"""
        v_and_b32 v{t0}, 1, v0
        v_lshlrev_b32 v{t0}, 4, v{t0}
        v_mov_b32 v{t1}, 0x3f80
        v_lshlrev_b32 v{t0}, v{t0}, v{t1}
        v_lshrrev_b32 v{t1}, 1, v3
        """)
        for j in range(4):
            a(f"v_cmp_eq_u32 vcc, {j}, v{t1}\ns_nop 1\nv_cndmask_b32 v{vall+j}, 0, v{t0}, vcc")
        if vA is not None:
            a(f"v_and_b32 v{t0}, 1, v1\nv_cmp_eq_u32 vcc, v{t0}, v4\ns_nop 1")
            for j in range(4): a(f"v_cndmask_b32 v{vA+j}, 0, v{vall+j}, vcc")
        if vLo is not None:
            a(f"v_cmp_gt_u32 vcc, 2, v1\ns_nop 1")
            for j in range(4): a(f"v_cndmask_b32 v{vLo+j}, 0, v{vA+j}, vcc")
            a(f"v_cmp_le_u32 vcc, 2, v1\ns_nop 1")
            for j in range(4): a(f"v_cndmask_b32 v{vHi+j}, 0, v{vA+j}, vcc")

    def build_selm(vM, t0=6, t1=7):
        a(f"""
        v_and_b32 v{t0}, 1, v0
        v_lshlrev_b32 v{t0}, 4, v{t0}
        v_mov_b32 v{t1}, 0x3f80
        v_lshlrev_b32 v{t0}, v{t0}, v{t1}
        v_bfe_u32 v{t1}, v0, 1, 3
        """)
        for j in range(4):
            a(f"v_cmp_eq_u32 vcc, {2*j}, v{t1}\ns_nop 1\nv_cndmask_b32 v{vM+j}, 0, v{t0}, vcc")

    def xlane(op, v, t):
        a(f"""
        v_mov_b32 v{t}, v{v}
        s_nop 1
        v_permlane32_swap_b32 v{t}, v{v}
        {op} v{v}, v{v}, v{t}
        v_mov_b32 v{t}, v{v}
        s_nop 1
        v_permlane16_swap_b32 v{t}, v{v}
        {op} v{v}, v{v}, v{t}
        """)

    def read_mode():
        a(f"""
        v_mov_b32 v6, {LDS_MISC}
        ds_read_b32 v6, v6 offset:8
        s_waitcnt lgkmcnt(0)
        v_readfirstlane_b32 s{S_MODE}, v6
        """)

    def poll_counters():
        lp, dn = a.label('pc'), a.label('pcd')
        a(f"""
        v_and_b32 v6, 7, v0
        v_lshlrev_b32 v6, 5, v6
        s_mov_b32 s{S_CNT}, s{S_LIM}
        {lp}:
        global_load_dword v7, v6, s[22:23] sc1
        s_waitcnt vmcnt(0)
        """)
        for x in range(8): a(f"v_readlane_b32 s{24+x}, v7, {x}")
        a("s_add_u32 s21, s24, s25")
        for x in range(2, 8): a(f"s_add_u32 s21, s21, s{24+x}")
        a(f"s_cmp_ge_u32 s21, 256\ns_cbranch_scc1 {dn}")
        timeout(dn)
        a(f"s_sleep 2\ns_branch {lp}\n{dn}:")

    def mode_wave():
        poll_counters()
        a("s_mov_b32 s21, 0")
        for x in range(8):
            a(f"s_cmp_lg_u32 s{24+x}, 32\ns_cselect_b32 s21, 1, s21")
        a(f"""
        v_mov_b32 v6, {LDS_MISC}
        v_mov_b32 v7, s21
        ds_write_b32 v6, v7 offset:8
        s_waitcnt lgkmcnt(0)
        """)

    def stamp(e):
        if cfg.trace: a(f"s_memrealtime s[{70+2*e}:{71+2*e}]")
    def stampc(e):
        if cfg.trace: a(f"s_memtime s[{70+2*e}:{71+2*e}]")
    def stamp_commit(evs, vbase):
        if cfg.trace:
            a(f"s_waitcnt lgkmcnt(0)\ns_mov_b32 m0, s{S_S}\ns_nop 0")
            for e in evs: a(f"v_writelane_b32 v{vbase+e}, s{70+2*e}, m0")
    def stamp_dump(evs, vbase, slot0):
        if cfg.trace:
            a(f"""
            s_lshl_b32 s21, s{S_X}, 5
            s_add_u32 s21, s21, s{S_C}
            s_lshl_b32 s21, s21, 13
            s_add_u32 s21, s21, {WS_DBG + (1<<20)}
            v_lshlrev_b32 v6, 2, v0
            """)
            for e in evs:
                a(f"s_add_u32 s24, s21, {(slot0+e)*256}\nbuffer_store_dword v{vbase+e}, v6, {WS}, s24 offen")
            a("s_waitcnt vmcnt(0)")

    def pstamp(i, wait=True):
        if not cfg.ptrace: return
        a(f"""
        s_memrealtime s[90:91]
        s_lshl_b32 s92, s2, 3
        s_add_u32 s92, s92, s{S_WAVE}
        s_lshl_b32 s92, s92, 7
        s_add_u32 s92, s92, {WS_DBG + (3<<20) + 4*i}
        s_waitcnt lgkmcnt(0)
        v_mov_b32 v6, s90
        v_mov_b32 v7, 0
        buffer_store_dword v6, v7, {WS}, s92 offen
        """)
        if wait: a("s_waitcnt vmcnt(0)")
    a(f"""
    s_cmp_ge_u32 s2, 256
    s_cbranch_scc1 LM_end
    s_load_dwordx2 s[4:5], s[0:1], {KA['ws']}
    s_load_dwordx2 s[22:23], s[0:1], {KA['dbg']}
    s_getreg_b32 s{S_X}, hwreg(HW_REG_XCC_ID, 0, 4)
    v_lshrrev_b32 v1, 6, v0
    s_mov_b32 s6, {WS_SIZE}
    v_readfirstlane_b32 s{S_WAVE}, v1
    v_mov_b32 v89, v0
    v_and_b32 v0, 63, v0
    s_mov_b32 s7, 0x20000
    s_and_b32 s{S_X}, s{S_X}, 7
    s_mov_b32 s{S_LIM}, {BIG}
    s_mov_b32 s{S_MODE}, 0
    """)
    if cfg.fake_xcc:
        a(f"s_mul_i32 s{S_X}, s2, 7\ns_lshr_b32 s{S_X}, s{S_X}, 8")
    a(f"""
    s_waitcnt lgkmcnt(0)
    """)
    if cfg.ptrace: a("s_memrealtime s[94:95]")
    a(f"""
    s_cmp_lg_u32 s{S_WAVE}, 0
    s_cbranch_scc1 LM_notick0
    v_mov_b32 v90, 1
    s_lshl_b32 s21, s{S_X}, 5
    v_mov_b32 v91, s21
    s_mov_b64 exec, 1
    global_atomic_add v92, v91, v90, s[22:23] sc0 sc1
    s_mov_b64 exec, -1
    LM_notick0:
    """)
    def warm(o):
        o(f"""
        s_cmp_lt_u32 s{S_WAVE}, 4
        s_cselect_b32 s29, {KA['Wv']}, {KA['Wo']}
        s_load_dwordx2 s[12:13], s[0:1], s29
        s_mov_b32 s14, {640*12288}
        s_mov_b32 s15, 0x20000
        v_and_b32 v80, 255, v89
        v_min_u32 v80, 239, v80
        v_mul_u32_u24 v81, 5462, v80
        v_lshrrev_b32 v81, 16, v81
        v_mul_u32_u24 v82, {12288 - 12*128}, v81
        s_lshr_b32 s30, s2, 3
        s_cmp_lt_u32 s{S_WAVE}, 4
        s_cbranch_scc1 LM_wv
        v_mov_b32 v82, 0
        s_mul_i32 s30, s30, 30720
        s_mul_i32 s29, s{S_X}, {4*245760}
        s_branch LM_wj
        LM_wv:
        s_mul_i32 s30, s30, {20*12288}
        s_mul_i32 s29, s{S_X}, 1536
        LM_wj:
        s_add_u32 s30, s30, s29
        v_lshl_add_u32 v82, v80, 7, v82
        s_waitcnt lgkmcnt(0)
        s_barrier
        buffer_load_dword v83, v82, s[12:15], s30 offen{NT(cfg.ntW)}
        """)
    if cfg.fuse_ln: gen_aux.ln1_body(a, S_WAVE, warm if cfg.warm else None)
    else: a("s_waitcnt vmcnt(0)")
    a(f"""
    s_cmp_lg_u32 s{S_WAVE}, 0
    s_cbranch_scc1 LM_notick
    v_readfirstlane_b32 s{S_C}, v92
    v_mov_b32 v2, 1
    s_cmp_lt_u32 s{S_C}, 32
    s_cbranch_scc1 LM_haverole
    v_mov_b32 v3, 8
    s_mov_b64 exec, 1
    global_atomic_add v4, v3, v2, s[22:23] sc0 sc1
    s_waitcnt vmcnt(0)
    v_readfirstlane_b32 s32, v4
    s_mov_b64 exec, -1
    """)
    poll_counters()
    a(f"s_mov_b32 s{S_X}, 0\ns_mov_b32 s{S_C}, 0")
    for x in range(8):
        nx = a.label('nx')
        a(f"""
        s_min_u32 s21, s{24+x}, 32
        s_sub_u32 s33, 32, s21
        s_cmp_ge_u32 s32, s33
        s_cbranch_scc1 {nx}
        s_mov_b32 s{S_X}, {x}
        s_add_u32 s{S_C}, s21, s32
        s_branch LM_haverole
        {nx}:
        s_sub_u32 s32, s32, s33
        """)
    a(f"""
    LM_haverole:
    v_mov_b32 v5, {LDS_MISC}
    v_mov_b32 v6, s{S_X}
    v_mov_b32 v7, s{S_C}
    ds_write_b64 v5, v[6:7]
    v_mov_b32 v6, 0
    v_lshl_add_u32 v5, v0, 2, v5
    s_mov_b32 exec_hi, 0
    ds_write_b32 v5, v6 offset:16
    s_mov_b64 exec, -1
    s_waitcnt lgkmcnt(0)
    LM_notick:
    s_barrier
    v_mov_b32 v5, {LDS_MISC}
    ds_read_b64 v[6:7], v5
    s_waitcnt lgkmcnt(0)
    v_readfirstlane_b32 s{S_X}, v6
    v_readfirstlane_b32 s{S_C}, v7
    s_nop 1
    s_and_b32 s{S_X}, s{S_X}, 7
    s_and_b32 s{S_C}, s{S_C}, 31
    """)
    if cfg.ptrace:
        pstamp(1, wait=False)
        a(f"v_mov_b32 v6, s94\ns_sub_u32 s92, s92, 4\nbuffer_store_dword v6, v7, {WS}, s92 offen")
        a(f"v_mov_b32 v6, s{S_C}\ns_add_u32 s92, s92, 60\nbuffer_store_dword v6, v7, {WS}, s92 offen")
    lanes()
    a(f"""
    s_cmp_lt_u32 s{S_C}, 20
    s_cbranch_scc1 LM_VO
    """)

    VW = 96; VA = 56; ACC = 40; VIDX = 39; VG = 24
    V_MG, V_ML, V_TOK, V_CHK, V_SC, V_OUT, V_OUT2, V_DMA = 8, 9, 10, 11, 12, 13, 14, 15
    V_MISC, V_MGL = 38, 37
    F_HO, F_MST, F_L1D, F_GST, F_MW, F_Y, F_TD, F_D2, F_D3, F_GIS = 16, 20, 24, 28, 32, 48, 64, 80, 84, 88
    def w_setup():
        a(f"""
        s_lshl_b32 s21, s{S_WAVE}, 10
        v_add_u32 v{V_MG}, s21, v5
        v_add_u32 v{V_ML}, {LDS_M}, v5
        v_mov_b32 v{VIDX}, 0x4444
        v_mov_b32 v6, 0xeeee
        v_and_b32 v7, 2, v0
        v_cmp_ne_u32 vcc, 0, v7
        s_mul_i32 s21, s{S_WAVE}, 10240
        s_nop 0
        v_cndmask_b32 v{VIDX}, v{VIDX}, v6, vcc
        v_mov_b32 v{V_MISC}, {LDS_MISC}
        v_add_u32 v{V_DMA}, s21, v5
        s_mul_i32 s40, s{S_X}, 10240
        s_add_u32 s40, s40, {WS_MR}
        """)
    def dma_tokens(sseg):
        a(f"""
        s_mul_i32 s24, s{sseg}, 40960
        s_add_u32 s24, s24, {WS_H}
        s_and_b32 s25, s{sseg}, 1
        s_mul_i32 s25, s25, 40960
        s_mul_i32 s26, s{S_WAVE}, 10240
        s_add_u32 s25, s25, s26
        """)
        for blk in range(3):
            a(f"s_add_u32 m0, s25, {LDS_TOK + blk*4096}")
            if blk: a("s_add_u32 s24, s24, 4096")
            else: a("s_nop 0")
            for i in range(4 if blk < 2 else 2):
                a(f"buffer_load_dwordx4 v{V_DMA}, {WS}, s24 offen offset:{i*1024} lds")
    def dma_tokens_all(sseg, lo=0, hi=40960):
        lp = a.label('dma')
        a(f"""
        s_mul_i32 s28, s{sseg}, 40960
        s_add_u32 s28, s28, {WS_H + lo}
        s_and_b32 s29, s{sseg}, 1
        s_mul_i32 s29, s29, 40960
        s_add_u32 s30, s29, {LDS_TOK + hi}
        s_add_u32 s29, s29, {LDS_TOK + lo}
        {lp}:
        s_mov_b32 m0, s29
        s_add_u32 s29, s29, 4096
        """)
        for i in range(4):
            a(f"buffer_load_dwordx4 v5, {WS}, s28 offen offset:{i*1024} lds")
        a(f"""
        s_add_u32 s28, s28, 4096
        s_cmp_lt_u32 s29, s30
        s_cbranch_scc1 {lp}
        """)
    def m_addr():
        a(f"""
        s_and_b32 s21, s{S_S}, 3
        s_mul_i32 s21, s21, {MSLOT}
        s_add_u32 s24, s21, s40
        s_add_u32 s25, s24, 4096
        s_add_u32 s26, s24, 8192
        """)
        for i in range(8): a(f"v_mov_b32 v{ACC+i}, 0")
    def smf(k):
        for t in range(2):
            w = VW + 80*t + 8*k
            a(f"v_smfmac_f32_16x16x64_bf16 v[{ACC+4*t}:{ACC+4*t+3}], v[{VA+4*k}:{VA+4*k+3}], v[{w}:{w+7}], v{VIDX}")
    def halfsum():
        for t in range(2):
            a(f"v_pk_add_f32 v[{ACC+4*t}:{ACC+4*t+1}], v[{ACC+4*t}:{ACC+4*t+1}], v[{ACC+4*t+2}:{ACC+4*t+3}]")
    def token_pass(w_is_A, pause_at=None, pause=None):
        def rd(k):
            for tt in range(2):
                s = VA + 4*((2*k+tt) % 10)
                a(f"ds_read_b128 v[{s}:{s+3}], v{V_TOK} offset:{tt*20480 + k*1024}")
        for k in range(4): rd(k)
        for k in range(20):
            if k == pause_at: pause()
            if k + 4 < 20:
                rd(k+4); a("s_waitcnt lgkmcnt(8)")
            else:
                a(f"s_waitcnt lgkmcnt({2*(19-k)})")
            for tt in range(2):
                s = VA + 4*((2*k+tt) % 10)
                for t in range(2):
                    w = VW + 80*t + 4*k
                    d = ACC + 8*t + 4*tt
                    if cfg.nomfma and k: continue
                    if w_is_A: mfma32(d, w, s, d if k else None)
                    else: mfma32(d, s, w, d if k else None)
        nop(8)
    def tok_base():
        a(f"""
        s_add_u32 s21, s{S_S}, 1
        s_and_b32 s27, s21, 1
        s_mul_i32 s24, s27, 40960
        v_add_u32 v{V_TOK}, s24, v5
        """)

    a(f"""
    s_sub_u32 s21, s{S_C}, 20
    s_mul_i32 s24, s21, 11
    s_lshr_b32 s24, s24, 5
    s_mul_i32 s25, s24, 3
    s_sub_u32 s42, s21, s25
    s_lshl_b32 s41, s{S_X}, 2
    s_add_u32 s41, s41, s24
    """)
    a(f"""
    v_lshrrev_b32 v8, 3, v0
    s_mul_i32 s21, s{S_WAVE}, 80
    v_add_u32 v8, s21, v8
    s_mov_b32 s21, 12288
    v_mul_lo_u32 v8, v8, s21
    s_mul_i32 s24, s41, 384
    s_lshl_b32 s25, s42, 7
    s_add_u32 s24, s24, s25
    v_lshl_add_u32 v8, v3, 4, v8
    v_add_u32 v8, s24, v8
    """)
    a(f"""
    v_lshrrev_b32 v6, 1, v1
    v_lshlrev_b32 v9, 4, v6
    v_and_b32 v6, 1, v1
    v_lshl_add_u32 v9, v6, 2, v9
    v_bfe_u32 v6, v0, 2, 1
    v_add_u32 v9, v9, v6
    v_lshl_add_u32 v9, v4, 3, v9
    v_lshlrev_b32 v9, 7, v9
    v_and_b32 v6, 3, v0
    v_lshl_add_u32 v9, v6, 3, v9
    s_lshl_b32 s21, s{S_WAVE}, 5
    v_add_u32 v9, s21, v9
    v_add_u32 v10, 40960, v9
    """)
    a("s_waitcnt vmcnt(0)\ns_barrier")
    set_h(0)
    for mat, key in enumerate(('Wq', 'Wk')):
        srd(8, KA[key], 640*12288)
        lp = a.label('stg'); sk = a.label('stgs')
        a(f"""
        s_mul_i32 s24, s{S_WAVE}, 10240
        s_mov_b32 s25, 0
        {lp}:
        s_mov_b32 m0, s24
        s_add_u32 s24, s24, 1024
        buffer_load_dwordx4 v8, {SA}, s25 offen{NT(cfg.ntQ)} lds
        s_add_u32 s25, s25, 98304
        s_cmp_lt_u32 s25, {98304*10}
        s_cbranch_scc1 {lp}
        s_waitcnt vmcnt(0)
        s_barrier
        s_cmp_ge_u32 s{S_WAVE}, 4
        s_cbranch_scc1 {sk}
        """)
        for k in range(20):
            for d in range(2):
                r = VW + 80*mat + 4*k + 2*d
                a(f"ds_read_b64_tr_b16 v[{r}:{r+1}], v{9 if k < 10 else 10} offset:{(k % 10)*4096 + d*256}")
        a(f"s_waitcnt lgkmcnt(0)\n{sk}:\ns_barrier")
    a(f"""
    s_cmp_eq_u32 s{S_WAVE}, 4
    s_cbranch_scc1 LQ_C0
    s_cmp_eq_u32 s{S_WAVE}, 5
    s_cbranch_scc1 LQ_C1
    s_cmp_eq_u32 s{S_WAVE}, 6
    s_cbranch_scc1 LQ_C2
    s_cmp_eq_u32 s{S_WAVE}, 7
    s_cbranch_scc1 LQ_C3
    """)
    pstamp(2)
    w_setup()
    wait_h()
    a(f"""
    s_mov_b32 s28, 0
    """)
    dma_tokens(28)
    a("s_mov_b32 s28, 1")
    dma_tokens(28)
    a(f"""
    v_mul_u32_u24 v{V_OUT}, 384, v1
    v_lshl_add_u32 v{V_OUT}, v2, 4, v{V_OUT}
    s_mul_i32 s21, s{S_WAVE}, 1536
    s_add_u32 s21, s21, {LDS_QKM}
    v_add_u32 v{V_OUT}, s21, v{V_OUT}
    s_lshr_b32 s21, s{S_WAVE}, 1
    s_lshl_b32 s21, s21, 11
    s_and_b32 s24, s{S_WAVE}, 1
    s_lshl_b32 s24, s24, 3
    s_add_u32 s21, s21, s24
    s_add_u32 s21, s21, {LDS_QX}
    v_add_u32 v{V_OUT2}, s21, v5
    v_lshrrev_b32 v6, 1, v0
    v_lshlrev_b32 v6, 3, v6
    v_and_b32 v7, 1, v0
    v_add_u32 v6, v6, v7
    s_lshl_b32 s21, s{S_WAVE}, 1
    v_add_u32 v6, s21, v6
    s_lshl_b32 s21, s{S_X}, 5
    s_add_u32 s21, s21, s{S_C}
    s_lshl_b32 s21, s21, 7
    s_add_u32 s21, s21, {WS_NL}
    v_lshlrev_b32 v6, 2, v6
    v_add_u32 v36, s21, v6
    s_cmp_lt_u32 s{S_WAVE}, 2
    s_cselect_b32 s44, 63, 15
    s_mov_b32 s45, 0
    s_waitcnt vmcnt(0)
    s_barrier
    s_mov_b32 s{S_S}, -1
    s_branch LQ_Wtok
    LQ_Wloop:
    """)
    a("s_setprio 2")
    m_addr()
    stamp(4)
    for w in range(1, 4):
        a(f"s_cmp_eq_u32 s{S_WAVE}, {w}\ns_cbranch_scc1 LQ_W{w}")
    for w in range(4):
        own = [w, w+4] + ([w+8] if w < 2 else [])
        a(f"LQ_W{w}:")
        if cfg.nM: nscout(V_SC, 36, S_S, 44)
        else: scout(V_SC, V_MG, 24)
        stamp(3)
        if cfg.g2M: gather2([(VA+4*k, V_MG, 24+i, 0) for i, k in enumerate(own)], V_CHK, pad=cfg.g2M)
        else: gather([(VA+4*k, V_MG, 24+i, 0) for i, k in enumerate(own)], V_CHK, depth=cfg.depthM)
        for k in own: a(f"ds_write_b128 v{V_ML}, v[{VA+4*k}:{VA+4*k+3}] offset:{k*1024}")
        for k in own[:-1]: smf(k)
        a("s_waitcnt lgkmcnt(0)")
        stamp(0)
        a("s_barrier")
        if cfg.trace: a("s_waitcnt lgkmcnt(0)")
        oth = [k for k in range(10) if k not in own]
        for k in oth: a(f"ds_read_b128 v[{VA+4*k}:{VA+4*k+3}], v{V_ML} offset:{k*1024}")
        smf(own[-1])
        for i, k in enumerate(oth):
            a(f"s_waitcnt lgkmcnt({len(oth)-1-i})")
            smf(k)
        if w < 3: a("s_nop 5\ns_branch LQ_Wjoin")
        else: a("s_nop 6")
    a("LQ_Wjoin:")
    halfsum()
    cvt(ACC+8, ACC, ACC+1); cvt(ACC+9, ACC, ACC+1); cvt(ACC+10, ACC+4, ACC+5); cvt(ACC+11, ACC+4, ACC+5)
    a(f"""
    ds_write_b128 v{V_OUT}, v[{ACC+8}:{ACC+11}]
    s_waitcnt lgkmcnt(0)
    s_barrier
    s_setprio 0
    s_waitcnt vmcnt(0)
    """)
    after_wait()
    stamp_commit([0, 1, 2, 3, 4], 16)
    a(f"""
    s_cmp_eq_u32 s{S_S}, 63
    s_cbranch_scc1 LQ_Wend
    s_sleep {cfg.slQW}
    LQ_Wtok:
    """)
    tok_base()
    stampc(1)
    if cfg.trace: a("s_waitcnt lgkmcnt(0)")
    token_pass(True)
    stampc(2)
    a(f"s_lshl_b32 s27, s27, 13\nv_add_u32 v6, s27, v{V_OUT2}")
    for t in range(2):
        for tt in range(2):
            d = ACC + 8*t + 4*tt
            cvt(d, d, d+1); cvt(d+1, d+2, d+3)
            a(f"ds_write_b64 v6, v[{d}:{d+1}] offset:{t*4096 + tt*1024}")
    a(f"""
    s_waitcnt vmcnt(0) lgkmcnt(0)
    s_add_u32 s{S_S}, s{S_S}, 1
    s_branch LQ_Wloop
    LQ_Wend:
    """)
    if cfg.trace:
        a(f"s_cmp_lg_u32 s{S_WAVE}, 0\ns_cbranch_scc1 LM_tail")
        stamp_dump([0, 3, 4], 16, 0); stamp_dump([1, 2], 16, 8)
    a("s_branch LM_tail")

    KX, QM, KM, S0, S1, SM = 16, 32, 40, 48, 52, 56
    V_TR, V_A1, V_A2, V_QXR = 8, 9, 10, 11
    def trbase(v):
        a(f"""
        v_and_b32 v6, 3, v0
        v_mul_u32_u24 v{v}, 384, v6
        v_lshrrev_b32 v6, 2, v0
        v_lshl_add_u32 v{v}, v6, 4, v{v}
        v_add_u32 v{v}, {LDS_QKM}, v{v}
        """)
    a("LQ_C0:\ns_setprio 3")
    trbase(V_TR)
    a(f"""
    v_bfe_u32 v12, v0, 2, 2
    v_and_b32 v6, 1, v0
    v_lshl_add_u32 v12, v12, 1, v6
    v_bfe_u32 v13, v0, 1, 1
    v_lshlrev_b32 v{V_A2}, 4, v12
    s_and_b32 s21, s41, 1
    s_lshl_b32 s21, s21, 7
    v_add_u32 v{V_A2}, s21, v{V_A2}
    v_and_b32 v6, 1, v1
    v_lshl_add_u32 v{V_A1}, v6, 3, v{V_A2}
    v_lshl_add_u32 v{V_A2}, v1, 2, v{V_A2}
    v_lshrrev_b32 v6, 1, v1
    v_lshl_add_u32 v{V_A1}, v6, 8, v{V_A1}
    s_cmp_eq_u32 s42, 2
    s_cselect_b32 s24, 9, 10
    s_lshl_b32 s25, s42, 9
    s_cmp_eq_u32 s42, 2
    s_cselect_b32 s25, 2048, s25
    v_lshlrev_b32 v6, s24, v13
    v_add_u32 v{V_A1}, v{V_A1}, v6
    v_add_u32 v{V_A1}, s25, v{V_A1}
    s_lshl_b32 s25, s42, 8
    s_add_u32 s25, s25, 3072
    v_add_u32 v{V_A2}, s25, v{V_A2}
    s_lshl_b32 s43, s{S_X}, 13
    s_bfe_u32 s21, s41, 0x10001
    s_lshl_b32 s21, s21, 12
    s_add_u32 s43, s43, s21
    s_add_u32 s43, s43, {WS_L1R}
    v_cmp_eq_u32 s[44:45], 1, v13
    v_mov_b32 v60, -1
    v_mov_b32 v61, -1
    s_lshl_b32 s21, s{S_X}, 12
    s_sub_u32 s24, s{S_C}, 20
    s_lshl_b32 s24, s24, 2
    s_add_u32 s21, s21, s24
    s_add_u32 s21, s21, {WS_NL}
    v_lshlrev_b32 v14, 7, v0
    v_add_u32 v14, s21, v14
    v_mov_b32 v6, 0x40000000
    v_cmp_gt_u32 vcc, 20, v0
    s_nop 1
    v_cndmask_b32 v14, v6, v14, vcc
    s_barrier
    """)
    read_mode()
    a(f"""
    s_mov_b32 s{S_S}, 0
    LQ_C0loop:
    s_and_b32 s21, s{S_S}, 1
    s_lshl_b32 s21, s21, 13
    s_add_u32 s21, s21, {LDS_QX + 4096}
    v_add_u32 v{V_QXR}, s21, v5
    s_and_b32 s21, s{S_S}, 3
    s_mul_i32 s24, s21, {L1SLOT}
    s_add_u32 s24, s24, s43
    s_xor_b32 s21, s21, 2
    s_mul_i32 s25, s21, {L1SLOT}
    s_add_u32 s25, s25, s43
    s_add_u32 s21, s{S_S}, 1
    v_mov_b32 v15, s21
    s_barrier
    """)
    for tt in range(2):
        for p in range(2):
            r = KX + 8*tt + 4*p
            a(f"ds_read_b128 v[{r}:{r+3}], v{V_QXR} offset:{p*2048 + tt*1024}")
    a("s_waitcnt vmcnt(0) lgkmcnt(0)")
    if cfg.nL1 == 2:
        nop(cfg.dN1*4)
        lstore(f"buffer_store_dword v15, v14, {WS}, 0 offen")
    a("s_barrier")
    stamp(1)
    if cfg.trace: a("s_waitcnt lgkmcnt(0)")
    for w in range(4): a(f"ds_read_b64_tr_b16 v[{QM+2*w}:{QM+2*w+1}], v{V_TR} offset:{w*1536}")
    for w in range(4): a(f"ds_read_b64_tr_b16 v[{KM+2*w}:{KM+2*w+1}], v{V_TR} offset:{w*1536+8}")
    if cfg.nL1 == 1: lstore(f"buffer_store_dword v15, v14, {WS}, 0 offen")
    a(f"s_waitcnt lgkmcnt(6)")
    mfma32(S0, KX, QM, None); mfma32(S1, KX+8, QM, None)
    a(f"s_waitcnt lgkmcnt(4)")
    mfma32(S0, KX+4, QM+4, S0); mfma32(S1, KX+12, QM+4, S1)
    a(f"s_waitcnt lgkmcnt(2)")
    mfma32(SM, KM, QM, None)
    a("s_waitcnt lgkmcnt(0)")
    mfma32(SM, KM+4, QM+4, SM)
    nop(4)
    cvt(S0, S0, S0+1); cvt(S0+1, S0+2, S0+3); cvt(S1, S1, S1+1); cvt(S1+1, S1+2, S1+3)
    cvt(SM, SM, SM+1)
    for i in range(2): a(f"v_cndmask_b32 v{S0+i}, v{S0+i}, v{S1+i}, s[44:45]")
    san(S0); san(S0+1); san(SM)
    lstore([f"buffer_store_dwordx2 v[{S0}:{S0+1}], v{V_A1}, {WS}, s24 offen",
            f"buffer_store_dword v{SM}, v{V_A2}, {WS}, s24 offen"])
    stamp(2)
    lstore([f"buffer_store_dwordx2 v[60:61], v{V_A1}, {WS}, s25 offen",
            f"buffer_store_dword v60, v{V_A2}, {WS}, s25 offen"])
    stamp_commit([1, 2], 64)
    a(f"""
    s_add_u32 s27, s{S_S}, 2
    s_cmp_gt_u32 s27, 63
    s_cbranch_scc1 LQ_C0nd
    s_sleep {cfg.slQD}
    """)
    if not cfg.nold: dma_tokens_all(27)
    a("LQ_C0nd:")
    if cfg.trace:
        a("s_waitcnt vmcnt(0)")
        stamp(6)
        stamp_commit([6], 64)
    a(f"""
    s_add_u32 s{S_S}, s{S_S}, 1
    s_cmp_lt_u32 s{S_S}, 63
    s_cbranch_scc1 LQ_C0loop
    s_waitcnt vmcnt(0)
    """)
    stamp_dump([1, 2, 6], 64, 0)
    a("s_endpgm")

    QX_, KX_, KM_, T = 16, 32, 48, 56
    a("LQ_C1:")
    if not cfg.tokpath: a("s_barrier\ns_endpgm")
    trbase(V_TR)
    a(f"""
    s_mul_i32 s43, s41, 3
    s_add_u32 s43, s43, s42
    s_lshl_b32 s44, s43, 7
    s_add_u32 s44, s44, {FL1}
    s_mul_i32 s43, s43, 5120
    s_add_u32 s43, s43, {WS_T1R}
    v_mov_b32 v9, 0
    v_lshlrev_b32 v12, 3, v0
    s_barrier
    """)
    read_mode()
    a(f"""
    s_mov_b32 s{S_S}, 0
    LQ_C1loop:
    s_and_b32 s21, s{S_S}, 1
    s_lshl_b32 s21, s21, 13
    s_add_u32 s21, s21, {LDS_QX}
    v_add_u32 v{V_QXR}, s21, v5
    s_and_b32 s21, s{S_S}, 3
    s_mul_i32 s24, s21, {T1SLOT}
    s_add_u32 s24, s24, s43
    s_add_u32 s25, s24, 4096
    s_add_u32 s26, s{S_S}, 1
    v_mov_b32 v10, s26
    s_barrier
    s_barrier
    s_cmp_eq_u32 s{S_S}, 63
    s_cbranch_scc1 LQ_C1ns
    s_sleep {cfg.slQC}
    LQ_C1ns:
    """)
    for tt in range(2):
        for p in range(2):
            a(f"ds_read_b128 v[{QX_+8*tt+4*p}:{QX_+8*tt+4*p+3}], v{V_QXR} offset:{p*2048 + tt*1024}")
            a(f"ds_read_b128 v[{KX_+8*tt+4*p}:{KX_+8*tt+4*p+3}], v{V_QXR} offset:{4096 + p*2048 + tt*1024}")
    for w in range(4): a(f"ds_read_b64_tr_b16 v[{KM_+2*w}:{KM_+2*w+1}], v{V_TR} offset:{w*1536+8}")
    a("s_waitcnt lgkmcnt(0)")
    tl = [(KX_, QX_), (KM_, QX_), (KX_, QX_+8), (KX_+8, QX_+8), (KM_, QX_+8)]
    for p in range(2):
        for i, (A_, B_) in enumerate(tl):
            mfma32(T+4*i, A_+4*p, B_+4*p, T+4*i if p else None)
    nop(8)
    lstore([(f"buffer_store_dwordx2 v[{T+4*i}:{T+4*i+1}], v12, {WS}, " if i in (1, 4) else f"buffer_store_dwordx4 v[{T+4*i}:{T+4*i+3}], v5, {WS}, ")
            + (f"s24 offen offset:{i*1024}" if i < 4 else "s25 offen") for i in range(5)])
    a("s_waitcnt vmcnt(0)\ns_mov_b64 exec, 1")
    lstore(f"buffer_store_dword v10, v9, {WS}, s44 offen")
    a(f"""
    s_mov_b64 exec, -1
    s_add_u32 s{S_S}, s{S_S}, 1
    s_cmp_lt_u32 s{S_S}, 64
    s_cbranch_scc1 LQ_C1loop
    s_waitcnt vmcnt(0)
    s_endpgm
    """)

    X0 = 16
    a("LQ_C2:")
    if not cfg.tokpath: a("s_barrier\ns_endpgm")
    a(f"""
    s_cmp_eq_u32 s42, 2
    s_cbranch_scc1 LQ_exit1
    s_mul_i32 s43, s41, {3*5120}
    s_add_u32 s43, s43, {WS_T1R}
    s_mul_i32 s21, s41, {3*128}
    s_add_u32 s21, s21, {FL1}
    v_min_u32 v8, 2, v0
    v_lshlrev_b32 v8, 7, v8
    v_add_u32 v8, s21, v8
    s_lshl_b32 s44, s41, 1
    s_add_u32 s44, s44, s42
    s_lshl_b32 s45, s44, 7
    s_add_u32 s45, s45, {FL2}
    s_mul_i32 s44, s44, 1536
    s_add_u32 s44, s44, {WS_PR}
    s_lshl_b32 s46, s42, 11
    s_mul_i32 s47, s42, 3072
    s_add_u32 s48, s47, 1024
    v_lshlrev_b32 v9, 3, v0
    v_mov_b32 v10, 0
    v_lshlrev_b32 v6, 2, v1
    s_lshl_b32 s21, s42, 4
    v_add_u32 v7, s21, v2
    """)
    for i in range(8):
        a(f"v_add_u32 v11, {16*(i>>2) + (i&3)}, v6\nv_cmp_le_u32 s[{50+2*i}:{51+2*i}], v11, v7")
    a(f"""
    v_mov_b32 v12, {NEGBIG}
    v_lshlrev_b32 v14, 2, v0
    s_mov_b32 s66, {CSC}
    s_mov_b32 s67, {CSC}
    s_barrier
    """)
    read_mode()
    a(f"""
    s_barrier
    s_barrier
    s_mov_b32 s{S_S}, 1
    LQ_C2loop:
    s_cmp_gt_u32 s{S_S}, 63
    s_cbranch_scc1 LQ_C2nb
    s_barrier
    s_barrier
    s_cmp_eq_u32 s{S_S}, 63
    s_cbranch_scc1 LQ_C2nb
    s_sleep {cfg.slQC}
    LQ_C2nb:
    s_sub_u32 s21, s{S_S}, 1
    s_and_b32 s21, s21, 3
    s_mul_i32 s24, s21, {T1SLOT}
    s_add_u32 s24, s24, s43
    s_mul_i32 s30, s21, {PSLOT}
    s_add_u32 s30, s30, s44
    v_mov_b32 v13, s{S_S}
    """)
    wait_flags(11, 8, S_S)
    for pp in range(3):
        for j, so in enumerate((46, 47, 48)):
            r = X0 + 12*pp + 4*j
            a(f"s_add_u32 s25, s24, s{so}")
            if j < 2: a(f"buffer_load_dwordx4 v[{r}:{r+3}], v5, {WS}, s25 offen sc1")
            else: a(f"buffer_load_dwordx2 v[{r}:{r+1}], v9, {WS}, s25 offen sc1")
        if pp < 2: a("s_add_u32 s24, s24, 5120")
    a("s_waitcnt vmcnt(3)")
    for i in range(0, 10, 2): a(f"v_pk_add_f32 v[{X0+i}:{X0+i+1}], v[{X0+i}:{X0+i+1}], v[{X0+12+i}:{X0+13+i}]")
    a("s_waitcnt vmcnt(0)")
    for i in range(0, 10, 2): a(f"v_pk_add_f32 v[{X0+i}:{X0+i+1}], v[{X0+i}:{X0+i+1}], v[{X0+24+i}:{X0+25+i}]")
    for i in range(8): a(f"v_cndmask_b32 v{X0+i}, v12, v{X0+i}, s[{50+2*i}:{51+2*i}]")
    def softmax_max(X, mx, t, sc):
        a(f"v_max3_f32 v{mx}, v{X}, v{X+1}, v{X+2}")
        for i in range(3, 9, 2): a(f"v_max3_f32 v{mx}, v{mx}, v{X+i}, v{X+i+1}")
        a(f"v_max_f32 v{mx}, v{mx}, v{X+9}")
        xlane("v_max_f32", mx, t)
        a(f"v_mul_f32 v{mx}, s{sc}, v{mx}")
    def pkarg(x, mx, sc):
        a(f"v_pk_fma_f32 v[{x}:{x+1}], v[{x}:{x+1}], s[{sc}:{sc+1}], v[{mx}:{mx+1}] op_sel_hi:[1,1,0] neg_lo:[0,0,1] neg_hi:[0,0,1]")
    softmax_max(X0, 52, 53, 66)
    for i in range(0, 10, 2): pkarg(X0+i, 52, 66)
    for i in range(10): a(f"v_exp_f32 v{X0+i}, v{X0+i}")
    a(f"v_pk_add_f32 v[52:53], v[{X0}:{X0+1}], v[{X0+2}:{X0+3}]")
    for i in range(4, 10, 2): a(f"v_pk_add_f32 v[52:53], v[52:53], v[{X0+i}:{X0+i+1}]")
    a("v_add_f32 v52, v52, v53")
    xlane("v_add_f32", 52, 53)
    a("v_rcp_f32 v52, v52\ns_nop 0")
    for i in range(0, 10, 2): a(f"v_pk_mul_f32 v[{X0+i}:{X0+i+1}], v[{X0+i}:{X0+i+1}], v[52:53] op_sel_hi:[1,0]")
    for i in range(5): cvt(X0+12+i, X0+2*i, X0+2*i+1)
    lstore([f"buffer_store_dwordx4 v[{X0+12}:{X0+15}], v5, {WS}, s30 offen",
            f"buffer_store_dword v{X0+16}, v14, {WS}, s30 offen offset:1024"])
    a("s_waitcnt vmcnt(0)\ns_mov_b64 exec, 1")
    lstore(f"buffer_store_dword v13, v10, {WS}, s45 offen")
    a(f"""
    s_mov_b64 exec, -1
    s_add_u32 s{S_S}, s{S_S}, 1
    s_cmp_lt_u32 s{S_S}, 65
    s_cbranch_scc1 LQ_C2loop
    s_waitcnt vmcnt(0)
    s_endpgm
    LQ_exit1:
    s_barrier
    s_endpgm
    """)

    a("LQ_C3:")
    mode_wave()
    a(f"""
    s_sub_u32 s21, s{S_C}, 20
    s_cmp_ge_u32 s21, 10
    s_cbranch_scc1 LM_end
    s_lshl_b32 s43, s21, 12
    s_add_u32 s43, s43, {WS_H + 2*40960}
    v_lshlrev_b32 v8, 6, v0
    s_mul_i32 s24, s{S_X}, 10
    s_add_u32 s24, s24, s21
    s_lshl_b32 s44, s24, 12
    s_add_u32 s44, s44, {WS_O}
    s_lshr_b32 s45, s24, 2
    s_and_b32 s46, s24, 3
    """)
    build_sel(16, 20)
    srd(8, KA['x'], 2048*1280)
    a(f"""
    v_and_b32 v6, 3, v2
    v_lshlrev_b32 v10, 3, v6
    v_and_b32 v6, 1, v1
    v_lshl_add_u32 v10, v6, 2, v10
    s_lshl_b32 s21, s45, 5
    v_add_u32 v10, s21, v10
    v_lshlrev_b32 v11, 2, v10
    v_lshrrev_b32 v6, 1, v1
    v_lshlrev_b32 v6, 2, v6
    v_lshrrev_b32 v7, 2, v2
    v_add_u32 v6, v6, v7
    s_lshl_b32 s21, s46, 3
    v_add_u32 v6, s21, v6
    ; x1 fragment offset v15 = (T>>4)*20480 + kappa*1024 + (16gc + (T&15))*16 + (g&1)*8
    v_and_b32 v7, 15, v6
    v_lshlrev_b32 v15, 4, v7
    v_and_b32 v7, 3, v2
    v_lshl_add_u32 v15, v7, 8, v15
    v_and_b32 v7, 1, v1
    v_lshl_add_u32 v15, v7, 3, v15
    s_lshr_b32 s21, s46, 1
    s_mul_i32 s21, s21, 20480
    s_lshl_b32 s24, s45, 10
    s_add_u32 s21, s21, s24
    v_add_u32 v15, s21, v15
    v_mul_u32_u24 v6, 1280, v6
    v_lshl_add_u32 v10, v10, 1, v6
    v_mov_b32 v28, -1
    v_mov_b32 v29, -1
    v_mov_b32 v30, -1
    v_mov_b32 v31, -1
    s_mov_b32 s21, s44
    s_add_u32 s24, s44, {8*OSLOT}
    LQ_armo:
    buffer_store_dwordx4 v[28:31], v5, {WS}, s21 offen sc1
    buffer_store_dwordx4 v[28:31], v5, {WS}, s21 offen offset:1024 sc1
    buffer_store_dwordx4 v[28:31], v5, {WS}, s21 offen offset:2048 sc1
    buffer_store_dwordx4 v[28:31], v5, {WS}, s21 offen offset:3072 sc1
    s_add_u32 s21, s21, {OSLOT}
    s_cmp_lt_u32 s21, s24
    s_cbranch_scc1 LQ_armo
    s_mov_b32 s21, {WS_X1 + 59*40960}
    LQ_armx:
    buffer_store_dwordx2 v[28:29], v15, {WS}, s21 offen sc1
    s_add_u32 s21, s21, 40960
    s_cmp_lt_u32 s21, {WS_X1 + 64*40960}
    s_cbranch_scc1 LQ_armx
    s_sub_u32 s47, s44, {WS_O}
    s_lshr_b32 s47, s47, 1
    s_add_u32 s47, s47, {WS_G + 4*GSLOT}
    s_mov_b32 s24, {WS_MOD + 2*640*4}
    s_waitcnt vmcnt(0)
    s_barrier
    buffer_load_dwordx4 v[24:27], v11, {WS}, s24 offen sc1
    buffer_load_dword v9, v8, {WS}, s43 offen
    s_mov_b32 s{S_S}, 0
    LQ_C3loop:
    s_cmp_gt_u32 s{S_S}, 63
    s_cbranch_scc1 LQ_C3nb
    s_barrier
    s_barrier
    s_sleep {cfg.slQ3}
    s_cmp_lt_u32 s{S_S}, 59
    s_cbranch_scc1 LQ_C3np
    s_cmp_eq_u32 s{S_S}, 63
    s_cbranch_scc1 LQ_C3nb
    s_sub_u32 s21, s{S_S}, 59
    s_mul_i32 s21, s21, 10
    s_add_u32 s21, s21, s{S_C}
    s_mul_i32 s21, s21, 49152
    s_add_u32 s21, s21, {WS_W1F - 20*49152}
    s_add_u32 s24, s21, 49152
    v_lshlrev_b32 v57, 7, v0
    LQ_pf:
    buffer_load_dword v56, v57, {WS}, s21 offen
    s_add_u32 s21, s21, 8192
    s_cmp_lt_u32 s21, s24
    s_cbranch_scc1 LQ_pf
    s_getpc_b64 s[48:49]
    LQ_pc:
    s_add_u32 s48, s48, LM_tail-LQ_pc
    s_addc_u32 s49, s49, 0
    s_sub_u32 s21, s{S_S}, 59
    s_lshl_b32 s21, s21, 13
    v_add_u32 v57, s21, v57
    v_min_u32 v57, LM_codeend-LM_tail, v57
    global_load_dword v56, v57, s[48:49]
    LQ_C3np:
    s_cmp_gt_u32 s{S_S}, 60
    s_cbranch_scc1 LQ_C3nb
    s_add_u32 s43, s43, 40960
    buffer_load_dword v9, v8, {WS}, s43 offen
    s_cmp_gt_u32 s{S_S}, 58
    s_cbranch_scc1 LQ_C3nb
    buffer_store_dwordx4 v[28:31], v5, {WS}, s47 offen sc1
    buffer_store_dwordx4 v[28:31], v5, {WS}, s47 offen offset:1024 sc1
    s_add_u32 s47, s47, {GSLOT}
    LQ_C3nb:
    """)
    if cfg.tokpath:
        a(f"""
        s_cmp_lt_u32 s{S_S}, 3
        s_cbranch_scc1 LQ_C3skip
        s_sub_u32 s26, s{S_S}, 3
        s_and_b32 s21, s26, 7
        s_mul_i32 s28, s21, {OSLOT}
        s_add_u32 s28, s28, s44
        s_mul_i32 s29, s26, {32*1280}
        s_add_u32 s30, s29, {WS_X1}
        buffer_load_dwordx2 v[12:13], v10, {SA}, s29 offen
        s_add_u32 s21, s26, 7
        s_and_b32 s21, s21, 7
        s_mul_i32 s31, s21, {OSLOT}
        s_add_u32 s31, s31, s44
        """)
        for i in range(4): a(f"buffer_store_dwordx4 v[28:31], v5, {WS}, s31 offen offset:{1024*i} sc1")
        def comp3(o, i): mfma32(48, 20, 32+4*i, 48 if i else None, o)
        gather([(32+4*i, 5, 28, 1024*i) for i in range(4)], 14, comp3, depth=1)
        a("""
        s_nop 1
        v_lshlrev_b32 v52, 16, v12
        v_and_b32 v53, 0xffff0000, v12
        v_lshlrev_b32 v54, 16, v13
        v_and_b32 v55, 0xffff0000, v13
        """)
        for i in range(4): a(f"v_fma_f32 v{52+i}, v{48+i}, v{24+i}, v{52+i}")
        cvt(52, 52, 53); cvt(53, 54, 55); san(52); san(53)
        a(f"buffer_store_dwordx2 v[52:53], v15, {WS}, s30 offen sc1\nLQ_C3skip:")
    a(f"""
    s_waitcnt vmcnt(0)
    """)
    _t = cfg.trace; cfg.trace = cfg.trace or cfg.light
    stamp(0)
    stamp_commit([0], 60)
    a(f"""
    s_add_u32 s{S_S}, s{S_S}, 1
    s_cmp_lt_u32 s{S_S}, {67 if cfg.tokpath else 61}
    s_cbranch_scc1 LQ_C3loop
    """)
    stamp_dump([0], 60, 5)
    pstamp(11)
    cfg.trace = _t
    a("s_endpgm")

    a(f"""
    LM_VO:
    """)
    BP, AP, AC = 8, 56, 104
    a(f"""
    s_and_b32 s41, s{S_WAVE}, 3
    s_mul_i32 s42, s41, 36864
    s_lshl_b32 s21, s{S_X}, 2
    s_add_u32 s41, s41, s21
    s_cmp_lt_u32 s{S_WAVE}, 4
    s_cbranch_scc1 LV_Wpro
    """)
    srd(8, KA['Wo'], 32*192*1280)
    srd(12, KA['Wv'], 640*12288)
    a(f"""
    v_lshrrev_b32 v6, 2, v0
    v_mul_u32_u24 v12, 1280, v6
    v_and_b32 v7, 3, v0
    v_lshl_add_u32 v12, v7, 4, v12
    s_mul_i32 s21, s41, 245760
    s_lshl_b32 s24, s{S_C}, 6
    s_add_u32 s21, s21, s24
    v_add_u32 v12, s21, v12
    s_add_u32 s24, s42, 24576
    s_mov_b32 s25, 0
    LV_wo:
    s_mov_b32 m0, s24
    s_add_u32 s24, s24, 1024
    buffer_load_dwordx4 v12, {SA}, s25 offen{NT(cfg.ntO)} lds
    s_add_u32 s25, s25, {16*1280}
    s_cmp_lt_u32 s25, {192*1280}
    s_cbranch_scc1 LV_wo
    v_lshrrev_b32 v6, 3, v0
    s_mov_b32 s21, 12288
    v_mul_lo_u32 v6, v6, s21
    s_mul_i32 s21, s41, 384
    v_add_u32 v6, s21, v6
    v_lshrrev_b32 v7, 5, v0
    v_lshlrev_b32 v7, 1, v7
    v_xor_b32 v7, v7, v3
    """)
    for ro in range(4):
        a(f"v_xor_b32 v13, {4*(ro>>1) + (ro&1)}, v7\nv_lshl_add_u32 v{8+ro}, v13, 4, v6\nv_add_u32 v{8+ro}, {8*ro*12288}, v{8+ro}")
    a(f"""
    s_mov_b32 s28, 0
    s_mov_b32 s29, 0
    LV_ld:
    s_mul_i32 s24, s{S_C}, {1 if cfg.rotV else 0}
    s_add_u32 s24, s24, s28
    s_sub_u32 s21, s24, 20
    s_cmp_ge_u32 s24, 20
    s_cselect_b32 s24, s21, s24
    s_mul_i32 s24, s24, {32*12288}
    s_add_u32 s25, s29, s42
    """)
    for ro in range(4):
        for jl in range(3):
            a(f"s_add_u32 m0, s25, {ro*3072 + jl*1024 - jl*128}\ns_nop 0")
            a(f"buffer_load_dwordx4 v{8+ro}, {SB}, s24 offen offset:{jl*128}{NT(cfg.ntV)} lds")
    a(f"""
    s_add_u32 s29, s29, 12288
    s_cmp_eq_u32 s29, 36864
    s_cselect_b32 s29, 0, s29
    s_add_u32 s28, s28, 1
    s_cmp_eq_u32 s28, 1
    s_cbranch_scc1 LV_ld
    s_waitcnt vmcnt(12)
    s_cmp_lg_u32 s28, 2
    s_cbranch_scc1 LV_ld2
    s_barrier
    LV_ld2:
    s_barrier
    s_cmp_lt_u32 s28, 20
    s_cbranch_scc1 LV_ld
    s_waitcnt vmcnt(0)
    s_barrier
    """)
    wait_h()
    a(f"""
    s_barrier
    s_cmp_eq_u32 s{S_WAVE}, 6
    s_cbranch_scc1 LV_C2
    s_cmp_eq_u32 s{S_WAVE}, 7
    s_cbranch_scc1 LV_C3
    s_branch LV_C01
    LV_Wpro:
    v_bfe_u32 v6, v0, 2, 2
    v_lshl_add_u32 v94, v1, 3, v6
    v_lshlrev_b32 v94, 6, v94
    v_and_b32 v7, 3, v0
    v_lshl_add_u32 v94, v7, 4, v94
    s_add_u32 s21, s42, 24576
    v_add_u32 v94, s21, v94
    v_bfe_u32 v6, v0, 1, 1
    v_lshl_add_u32 v6, v4, 1, v6
    v_mul_u32_u24 v6, 3072, v6
    v_bfe_u32 v7, v0, 2, 1
    v_lshl_add_u32 v6, v7, 9, v6
    v_and_b32 v7, 1, v0
    v_lshl_add_u32 v6, v7, 7, v6
    v_bfe_u32 v7, v0, 1, 3
    v_xor_b32 v7, v7, v1
    v_lshl_add_u32 v6, v7, 4, v6
    v_add_u32 v6, s42, v6
    v_xor_b32 v7, 64, v6
    s_waitcnt vmcnt(0)
    s_barrier
    """)
    set_h(0)
    for t in range(2):
        for e in range(6):
            for d in range(2):
                r = BP + 24*t + 4*e + 2*d
                a(f"ds_read_b64_tr_b16 v[{r}:{r+1}], v94 offset:{e*2048 + d*256 + t*8}")
    if cfg.ptrace: a("s_memrealtime s[96:97]")
    a(f"""
    s_mov_b32 s28, 0
    s_mov_b32 s29, 0
    s_waitcnt lgkmcnt(0)
    LV_it:
    s_barrier
    v_add_u32 v2, s29, v6
    v_add_u32 v3, s29, v7
    """)
    AC = 80
    def rdA(d, e): a(f"ds_read_b128 v[{AP+4*e}:{AP+4*e+3}], v{2 + (e&1)} offset:{(e>>1)*1024 + d*256}")
    for e in range(6): rdA(0, e)
    a(f"""
    s_mul_i32 s26, s{S_C}, {1 if cfg.rotV else 0}
    s_add_u32 s26, s26, s28
    s_sub_u32 s21, s26, 20
    s_cmp_ge_u32 s26, 20
    s_cselect_b32 s26, s21, s26
    s_lshl_b32 s26, s26, 2
    s_add_u32 s29, s29, 12288
    s_cmp_eq_u32 s29, 36864
    s_cselect_b32 s29, 0, s29
    """)
    for e in range(6):
        a(f"s_waitcnt lgkmcnt(5)")
        for t in range(2): mfma32(AC+8*t, AP+4*e, BP+24*t+4*e, AC+8*t if e else None)
        rdA(1, e)
    for e in range(6):
        a(f"s_waitcnt lgkmcnt({5-e})")
        for t in range(2): mfma32(AC+8*t+4, AP+4*e, BP+24*t+4*e, AC+8*t+4 if e else None)
    a("s_add_u32 s28, s28, 1")
    nop(7)
    for t in range(2):
        for i in range(4): cvt(AC+8*t+i, AC+8*t+2*i, AC+8*t+2*i+1)
    a("s_set_gpr_idx_on s26, gpr_idx(DST)\ns_nop 0")
    for t in range(2):
        for i in range(4): a(f"v_mov_b32 v{VW+80*t+i}, v{AC+8*t+i}")
    a(f"""
    s_set_gpr_idx_off
    s_cmp_lt_u32 s28, 20
    s_cbranch_scc1 LV_it
    s_barrier
    """)
    lanes()
    if cfg.ptrace:
        pstamp(3)
        a(f"v_mov_b32 v6, s96\ns_sub_u32 s92, s92, 4\nbuffer_store_dword v6, v7, {WS}, s92 offen\ns_waitcnt vmcnt(0)")
    w_setup()
    a("s_mov_b32 s28, 0")
    dma_tokens(28)
    a("s_mov_b32 s28, 1")
    dma_tokens(28)
    a(f"""
    s_lshl_b32 s21, s{S_WAVE}, 9
    s_add_u32 s21, s21, {LDS_Y}
    v_lshlrev_b32 v6, 3, v0
    v_add_u32 v{V_OUT}, s21, v6
    s_lshl_b32 s21, s{S_WAVE}, 11
    s_add_u32 s21, s21, {LDS_U}
    v_add_u32 v{V_OUT2}, s21, v5
    v_add_u32 v{V_MGL}, {LDS_M}, v{V_MG}
    s_lshl_b32 s21, s{S_WAVE}, 2
    s_add_u32 s21, s21, {LDS_MISC}
    v_mov_b32 v36, s21
    s_waitcnt vmcnt(10)
    s_barrier
    s_mov_b32 s{S_S}, -1
    """)
    pstamp(4)
    a(f"""
    s_branch LV_Wtok
    LV_Wloop:
    """)
    if cfg.ptrace:
        a(f"s_cmp_gt_u32 s{S_S}, 3\ns_cbranch_scc1 LV_nps")
        a(f"s_memrealtime s[90:91]\ns_waitcnt lgkmcnt(0)\nv_mov_b32 v6, s90\nv_mov_b32 v7, 0\ns_add_u32 s92, s92, 4\nbuffer_store_dword v6, v7, {WS}, s92 offen\nLV_nps:")
    a(f"""
    s_add_u32 s27, s{S_S}, 1
    v_mov_b32 v7, s27
    """)
    m_addr()
    stamp(0)
    lds_wait(V_MISC, F_MST, 1, 16, S_S, sleep=1)
    stamp(1)
    a(f"s_cmp_ge_u32 s{S_WAVE}, 2\ns_cbranch_scc1 LV_W2")
    gather([(VG, V_MG, 24, 0), (VG+4, V_MG, 25, 0), (VG+8, V_MG, 26, 0)], V_CHK, depth=1)
    a(f"ds_write_b128 v{V_MGL}, v[{VG+8}:{VG+11}] offset:8192\ns_branch LV_W3\nLV_W2:")
    gather([(VG, V_MG, 24, 0), (VG+4, V_MG, 25, 0)], V_CHK, depth=1)
    a(f"""
    LV_W3:
    ds_write_b128 v{V_MGL}, v[{VG}:{VG+3}]
    ds_write_b128 v{V_MGL}, v[{VG+4}:{VG+7}] offset:4096
    ds_write_b32 v36, v7 offset:{F_MW}
    """)
    stamp(2)
    lds_wait(V_MISC, F_MW, 4, 16, 27)
    stamp(3)
    if cfg.trace: a("s_waitcnt lgkmcnt(0)")
    for k in range(10): a(f"ds_read_b128 v[{VA+4*k}:{VA+4*k+3}], v{V_ML} offset:{k*1024}")
    for k in range(10):
        a(f"s_waitcnt lgkmcnt({9-k})")
        smf(k)
    a(f"s_and_b32 s21, s{S_S}, 3\ns_lshl_b32 s21, s21, 11\nv_add_u32 v6, s21, v{V_OUT}")
    nop(6)
    halfsum()
    cvt(ACC, ACC, ACC+1); cvt(ACC+1, ACC+4, ACC+5)
    a(f"""
    ds_write_b64 v6, v[{ACC}:{ACC+1}]
    ds_write_b32 v36, v7 offset:{F_Y}
    s_cmp_eq_u32 s{S_S}, 63
    s_cbranch_scc1 LV_Wend
    """)
    stamp_commit([0, 1, 2, 3], 20)
    lds_wait(V_MISC, F_D2, 2, 16, S_S, sleep=1)
    a("LV_Wtok:")
    tok_base()
    token_pass(False, cfg.n1, lambda: lds_wait(V_MISC, F_GST, 1, 16, 21, sleep=1))
    a(f"s_add_u32 s24, s21, 1\nv_mov_b32 v7, s24\nds_write_b32 v36, v7 offset:{F_TD}")
    a(f"s_and_b32 s21, s21, 3\ns_lshl_b32 s21, s21, 13\nv_add_u32 v6, s21, v{V_OUT2}")
    for t in range(2):
        d = ACC + 8*t
        cvt(d, d, d+1); cvt(d+1, d+2, d+3); cvt(d+2, d+4, d+5); cvt(d+3, d+6, d+7)
        a(f"ds_write_b128 v6, v[{d}:{d+3}] offset:{t*1024}")
    a(f"""
    s_waitcnt lgkmcnt(0)
    """)
    after_wait()
    a(f"""
    s_add_u32 s{S_S}, s{S_S}, 1
    s_branch LV_Wloop
    LV_Wend:
    s_waitcnt vmcnt(0) lgkmcnt(0)
    """)
    pstamp(10)
    if cfg.trace:
        a(f"s_cmp_lg_u32 s{S_WAVE}, 0\ns_cbranch_scc1 LM_tail")
        stamp_dump([0, 1, 2, 3], 20, 16)
    a("s_branch LM_tail")

    SELM, SELA, SLO, SHI = 16, 20, 24, 28
    LD = 32
    D_ = 48
    PT, PMA, PMB = 60, 64, 66
    UF, YF = 68, 84
    ONES = 88
    OA = 92
    KEEP, SEND = 108, 112
    HO = 116
    LS = 128
    LG = 132
    MX = 14
    V_L3, V_UR, V_YR, V_GS, V_MS, V_HO, V_FL = 8, 9, 10, 120, 121, 122, 123
    a("LV_C01:\ns_setprio 3")
    build_sel(SELM, SELA, SLO, SHI)
    build_selm(SELM)
    a(f"""
    s_sub_u32 s41, s{S_WAVE}, 4
    v_cmp_eq_u32 vcc, 3, v1
    v_mov_b32 v6, 0x40000000
    s_nop 0
    v_cndmask_b32 v{V_L3}, v5, v6, vcc
    s_lshl_b32 s43, s{S_X}, 13
    s_lshl_b32 s21, s41, 12
    s_add_u32 s43, s43, s21
    s_add_u32 s43, s43, {WS_L1R}
    v_cmp_eq_u32 s[44:45], 1, v4
    v_cmp_eq_u32 s[64:65], 0, v4
    s_mov_b32 s66, {CSC}
    s_mov_b32 s67, {CSC}
    v_mov_b32 v{ONES}, 0x3f803f80
    v_mov_b32 v{ONES+1}, 0x3f803f80
    v_mov_b32 v{ONES+2}, 0x3f803f80
    v_mov_b32 v{ONES+3}, 0x3f803f80
    v_mov_b32 v{PMA+1}, 0
    v_mov_b32 v{PMB}, 0
    v_lshl_add_u32 v6, v1, 3, v3
    v_lshlrev_b32 v{V_GS}, 4, v6
    v_lshl_add_u32 v{V_GS}, v4, 3, v{V_GS}
    v_lshrrev_b32 v6, 1, v1
    v_lshlrev_b32 v{V_MS}, 4, v6
    v_bfe_u32 v6, v0, 1, 2
    v_lshl_add_u32 v{V_MS}, v6, 2, v{V_MS}
    v_lshl_add_u32 v{V_MS}, v4, 1, v{V_MS}
    v_and_b32 v6, 1, v0
    v_add_u32 v{V_MS}, v{V_MS}, v6
    v_lshlrev_b32 v{V_MS}, 4, v{V_MS}
    v_and_b32 v6, 1, v1
    v_lshl_add_u32 v{V_MS}, v6, 3, v{V_MS}
    v_add_u32 v{V_HO}, {LDS_HO}, v5
    v_mov_b32 v{V_FL}, {LDS_MISC}
    s_lshr_b32 s21, s{S_C}, 1
    s_lshl_b32 s46, s21, 14
    s_and_b32 s21, s{S_C}, 1
    s_lshl_b32 s21, s21, 12
    s_add_u32 s46, s46, s21
    s_add_u32 s46, s46, {WS_G}
    s_lshl_b32 s47, s{S_X}, 9
    s_mul_i32 s48, s{S_X}, 10240
    s_lshl_b32 s21, s{S_C}, 9
    s_add_u32 s48, s48, s21
    s_add_u32 s48, s48, {WS_MR}
    v_mov_b32 v124, -1
    v_mov_b32 v125, -1
    s_lshl_b32 s21, s{S_X}, 12
    s_add_u32 s21, s21, {WS_NL}
    s_lshl_b32 s24, s{S_C}, 7
    s_add_u32 s24, s24, s21
    s_mul_i32 s25, s41, {0 if cfg.all12 else 24}
    s_add_u32 s24, s24, s25
    v_lshlrev_b32 v6, 2, v0
    v_add_u32 v148, s24, v6
    s_mov_b64 s[68:69], {0xfff if cfg.all12 else 63}
    s_lshl_b32 s24, s{S_C}, 2
    s_add_u32 s24, s24, s21
    s_add_u32 s24, s24, {20*128}
    v_lshlrev_b32 v149, 7, v0
    v_add_u32 v149, s24, v149
    v_mov_b32 v7, 0x40000000
    v_cmp_gt_u32 vcc, 12, v0
    s_mul_i32 s24, s{S_X}, 20
    s_add_u32 s24, s24, s{S_C}
    v_cndmask_b32 v149, v7, v149, vcc
    s_lshr_b32 s51, s24, 6
    s_lshl_b32 s51, s51, 14
    s_and_b32 s24, s24, 63
    s_lshl_b32 s24, s24, 7
    s_add_u32 s51, s51, s24
    s_add_u32 s51, s51, {WS_NG}
    v_mul_u32_u24 v6, 20, v3
    v_add_u32 v6, s{S_C}, v6
    v_lshrrev_b32 v150, 6, v6
    v_lshlrev_b32 v150, 14, v150
    v_and_b32 v6, 63, v6
    v_lshl_add_u32 v150, v6, 7, v150
    v_lshl_add_u32 v150, v4, 13, v150
    s_add_u32 s24, s{S_X}, {WS_NG}
    v_add_u32 v150, s24, v150
    v_cmp_gt_u32 vcc, 16, v0
    s_nop 1
    v_cndmask_b32 v150, v7, v150, vcc
    s_barrier
    s_mov_b32 s50, 0
    s_cmp_eq_u32 s41, 0
    s_cbranch_scc1 LV_nocal
    s_lshl_b32 s21, s{S_X}, 5
    s_add_u32 s21, s21, s{S_C}
    s_lshr_b32 s24, s21, 6
    s_lshl_b32 s24, s24, 14
    s_and_b32 s21, s21, 63
    s_lshl_b32 s21, s21, 7
    s_add_u32 s24, s24, s21
    s_add_u32 s24, s24, {WS_CAL}
    s_add_u32 s25, s24, 8192
    v_mov_b32 v6, 0
    buffer_store_dword v6, v6, {WS}, s24 offen sc1
    buffer_store_dword v6, v6, {WS}, s25 offen sc1
    s_waitcnt vmcnt(0)
    s_memtime s[52:53]
    s_waitcnt lgkmcnt(0)
    buffer_load_dword v7, v6, {WS}, s24 offen sc1
    s_waitcnt vmcnt(0)
    s_memtime s[54:55]
    s_waitcnt lgkmcnt(0)
    buffer_load_dword v7, v6, {WS}, s25 offen sc1
    s_waitcnt vmcnt(0)
    s_memtime s[56:57]
    s_waitcnt lgkmcnt(0)
    s_sub_u32 s56, s56, s54
    s_sub_u32 s54, s54, s52
    s_cmp_lt_u32 s56, s54
    s_cselect_b32 s50, 8192, 0
    LV_nocal:
    """)
    read_mode()
    a(f"""
    s_add_u32 s51, s51, s50
    s_mov_b32 s{S_S}, 0
    s_cmp_lg_u32 s41, 0
    s_cbranch_scc1 LV_Cloop1
    """)
    for cw in range(2):
        a(f"""
        LV_Cloop{cw}:
        s_and_b32 s21, s{S_S}, 3
        s_mul_i32 s24, s21, {L1SLOT}
        s_add_u32 s24, s24, s43
        s_lshl_b32 s25, s21, 13
        s_add_u32 s25, s25, {LDS_U + cw*4096}
        v_add_u32 v{V_UR}, s25, v5
        s_lshl_b32 s25, s21, 11
        s_add_u32 s25, s25, {LDS_Y + cw*1024}
        v_lshlrev_b32 v6, 3, v0
        v_add_u32 v{V_YR}, s25, v6
        s_add_u32 s27, s{S_S}, 1
        v_mov_b32 v126, s27
        s_mul_i32 s32, s{S_S}, {GSLOT}
        s_add_u32 s32, s32, s46
        """)
        if cw == 0:
            a("s_add_u32 s32, s32, s47\ns_add_u32 s33, s32, 8192")
        else:
            a(f"""
            s_lshr_b32 s21, s32, 8
            s_and_b32 s21, s21, 8192
            s_xor_b32 s21, s21, s50
            s_add_u32 s34, s32, s21
            s_and_b32 s21, s27, 3
            s_mul_i32 s35, s21, {MSLOT}
            s_add_u32 s35, s35, s48
            s_xor_b32 s21, s21, 2
            s_mul_i32 s36, s21, {MSLOT}
            s_add_u32 s36, s36, s48
            s_and_b32 s21, s{S_S}, 1
            s_mul_i32 s58, s21, 49152
            s_add_u32 s59, s58, s51
            s_mul_i32 s62, s27, 0x01010101
            s_mov_b32 s63, s62
            """)
        lds_wait(V_FL, F_MW, 4, HO, 27, sleep=1)
        a("s_waitcnt vmcnt(0)")
        if cw == 1: a("s_mov_b64 s[60:61], 0")
        if cfg.nL1: nscout(11, 148, 27, 68)
        else: scout(11, 5, 24)
        nop(cfg.padL1)
        stamp(4)
        def rduy():
            for j in range(4): a(f"ds_read_b128 v[{UF+4*j}:{UF+4*j+3}], v{V_UR} offset:{j*1024}")
            for j in range(2): a(f"ds_read_b64 v[{YF+2*j}:{YF+2*j+1}], v{V_YR} offset:{j*512}")
            return 0
        def shadow1():
            if cw == 0: a(f"ds_write_b32 v{V_FL}, v126 offset:{F_L1D}")
            lds_wait(V_FL, F_Y, 4, HO, 27, extra=rduy)
            if cw == 1 and cfg.nG and cfg.posG == -1: a(f"buffer_store_byte v126, v150, {WS}, s58 offen sc1")
            stamp(3)
        def comp1(o, i):
            if i == 0: mfma32(D_+8, SELM, LD+12, None, o)
            if i == 1: mfma32(D_, SELA, LD, None, o)
            if i == 2: mfma32(D_+4, SELA, LD+4, None, o)
            if i == 3: mfma32(D_, SLO, LD+8, D_, o); mfma32(D_+4, SHI, LD+8, D_+4, o)
        l1loads = [(LD+12, V_L3, 24, 3072), (LD, 5, 24, 0), (LD+4, 5, 24, 1024), (LD+8, 5, 24, 2048)]
        if cfg.g2L: gather2(l1loads, 12, comp1, shadow=shadow1, pad=cfg.g2L-1)
        else: gather(l1loads, 12, comp1, shadow=shadow1, depth=cfg.depthL1, young=int(cw == 1 and cfg.nG and cfg.posG == -1))
        stamp(0)
        def notice(pos):
            if cw == 1 and cfg.nG and cfg.posG == pos:
                a(f"buffer_store_byte v126, v150, {WS}, s58 offen sc1")
        def spoll(pos):
            if cw == 1 and cfg.nG and (cfg.early >> pos) & 1:
                a("s_load_dwordx2 s[60:61], s[4:5], s59 glc")
        notice(0)
        nop(5)
        softmax_max(D_, MX, MX+1, 66)
        notice(1)
        ex = lambda i: a(f"v_exp_f32 v{D_+i}, v{D_+i}")
        pkarg(D_+8, MX, 66)
        pkarg(D_, MX, 66)
        ex(8); ex(9)
        pkarg(D_+2, MX, 66)
        cvt(PMA, D_+8, D_+9); cvt(PMB+1, D_+8, D_+9)
        pkarg(D_+4, MX, 66); pkarg(D_+6, MX, 66)
        mfma16(LS, ONES, PMA, None)
        ex(0); ex(1)
        mfma16(OA, YF, PMA, None)
        notice(2)
        ex(2); ex(3)
        mfma16(OA+4, YF, PMB, None)
        ex(4); ex(5)
        mfma16(OA+8, YF+2, PMA, None)
        ex(6); ex(7)
        mfma16(OA+12, YF+2, PMB, None)
        notice(3)
        spoll(0)
        for i in range(4): cvt(PT+i, D_+2*i, D_+2*i+1)
        a("s_nop 1")
        mfma32(LS, ONES, PT, LS)
        for j in range(4): mfma32(OA+4*j, UF+4*j, PT, OA+4*j)
        notice(4)
        spoll(1)
        a(f"s_nop 3\nv_rcp_f32 v{LS}, v{LS}\ns_mov_b64 exec, s[64:65]")
        pm = lambda d, x: a(f"v_pk_mul_f32 v[{d}:{d+1}], v[{x}:{x+1}], v[{LS}:{LS+1}] op_sel_hi:[1,0]")
        pm(KEEP, OA); pm(KEEP+2, OA+2); pm(SEND, OA+4); pm(SEND+2, OA+6)
        a("s_mov_b64 exec, s[44:45]")
        pm(SEND, OA+8); pm(SEND+2, OA+10); pm(KEEP, OA+12); pm(KEEP+2, OA+14)
        a("s_mov_b64 exec, -1")
        for i in range(4): a(f"v_add_f32_dpp v{KEEP+i}, v{SEND+i}, v{KEEP+i} row_ror:8 row_mask:0xf bank_mask:0xf")
        if cw == 0:
            def rdho():
                a(f"ds_read_b128 v[{HO}:{HO+3}], v{V_HO}")
                return 0
            lds_wait(V_FL, F_HO, 1, 15, 27, extra=rdho)
            for i in range(0, 4, 2): a(f"v_pk_add_f32 v[{KEEP+i}:{KEEP+i+1}], v[{KEEP+i}:{KEEP+i+1}], v[{HO+i}:{HO+i+1}]")
            cvt(KEEP, KEEP, KEEP+1); cvt(KEEP+1, KEEP+2, KEEP+3); san(KEEP); san(KEEP+1)
            a(f"""
            buffer_store_dwordx2 v[{KEEP}:{KEEP+1}], v{V_GS}, {WS}, s32 offen sc1
            buffer_store_dwordx2 v[{KEEP}:{KEEP+1}], v{V_GS}, {WS}, s33 offen sc1
            ds_write_b32 v{V_FL}, v126 offset:{F_GST}
            """)
            stamp(1)
        else:
            a(f"""
            ds_write_b128 v{V_HO}, v[{KEEP}:{KEEP+3}]
            ds_write_b32 v{V_FL}, v126 offset:{F_HO}
            """)
            if cfg.nG:
                a(f"""
                s_mov_b32 s{S_CNT}, s{S_LIM}
                LV_np:
                s_load_dwordx2 s[60:61], s[4:5], s59 glc
                s_sub_u32 s{S_CNT}, s{S_CNT}, 1
                s_cbranch_scc1 LV_npd
                s_waitcnt lgkmcnt({cfg.lgN})
                """)
                for _ in range(cfg.chkN):
                    a("s_cmp_eq_u64 s[60:61], s[62:63]\ns_cbranch_scc1 LV_npd\ns_nop 1")
                a("""
                s_cmp_eq_u64 s[60:61], s[62:63]
                s_cbranch_scc0 LV_np
                LV_npd:
                """)
            else:
                lds_wait(V_FL, F_GST, 1, 15, 27)
            nop(cfg.dG*4)
            stamp(2)
            def comp2(o, i): mfma32(D_, SELA, LG+4*i, D_ if i else None, o)
            def shadow2():
                a(f"ds_write_b32 v{V_FL}, v126 offset:{F_GIS}")
                if cfg.nM:
                    nop(cfg.dM*4)
                    lstore(f"buffer_store_dword v126, v149, {WS}, 0 offen")
            gather([(LG+4*i, 5, 34, 1024*i) for i in range(4)], 12, comp2, depth=cfg.depthG, shadow=shadow2, young=cfg.nM)
            nop(6)
            cvt(D_, D_, D_+1); cvt(D_+1, D_+2, D_+3); san(D_); san(D_+1)
            lstore(f"buffer_store_dwordx2 v[{D_}:{D_+1}], v{V_MS}, {WS}, s35 offen")
            a(f"ds_write_b32 v{V_FL}, v126 offset:{F_MST}")
            stamp(1)
            lstore(f"buffer_store_dwordx2 v[124:125], v{V_MS}, {WS}, s36 offen")
            if cfg.dbg:
                a(f"""
                s_cmp_lg_u32 s{S_X}, 0
                s_cbranch_scc1 LV_Cnd
                s_mul_i32 s21, s27, 10240
                s_lshl_b32 s25, s{S_C}, 9
                s_add_u32 s21, s21, s25
                s_add_u32 s21, s21, {WS_DBG}
                buffer_store_dwordx2 v[{D_}:{D_+1}], v{V_MS}, {WS}, s21 offen
                LV_Cnd:
                """)
        stamp(5)
        if cfg.trace: a("s_memtime s[82:83]")
        after_wait()
        stamp_commit([0, 1, 2, 3, 4, 5, 6], 160)
        a(f"""
        s_add_u32 s{S_S}, s{S_S}, 1
        s_cmp_lt_u32 s{S_S}, 63
        s_cbranch_scc1 LV_Cloop{cw}
        s_waitcnt vmcnt(0) lgkmcnt(0)
        """)
        stamp_dump([0, 1, 2, 3, 4, 5, 6], 160, 8*cw)
        a("s_endpgm")

    PTK, PMM, UU, YY, OO = 16, 48, 80, 112, 120
    a("LV_C2:")
    a(f"""
    s_lshl_b32 s21, s{S_X}, 10
    s_add_u32 s21, s21, {FL2}
    v_lshlrev_b32 v8, 7, v3
    v_add_u32 v8, s21, v8
    s_mul_i32 s43, s{S_X}, {8*1536}
    s_add_u32 s43, s43, {WS_PR}
    v_lshlrev_b32 v9, 2, v0
    v_lshlrev_b32 v10, 12, v4
    v_lshl_add_u32 v6, v3, 2, v1
    v_lshl_add_u32 v10, v6, 4, v10
    s_lshl_b32 s44, s{S_C}, 14
    s_lshl_b32 s21, s{S_X}, 9
    s_add_u32 s44, s44, s21
    s_add_u32 s44, s44, {WS_O}
    v_mov_b32 v7, {LDS_MISC}
    """)
    for j in range(8): a(f"v_mov_b32 v{PMM+4*j+1}, 0\nv_mov_b32 v{PMM+4*j+2}, 0")
    a(f"""
    s_barrier
    s_mov_b32 s{S_S}, 0
    LV_C2loop:
    s_add_u32 s27, s{S_S}, 1
    v_mov_b32 v15, s27
    s_cmp_lt_u32 s{S_S}, {2 if cfg.tokpath else 100}
    s_cbranch_scc0 LV_C2a
    ds_write_b32 v7, v15 offset:{F_D2}
    s_branch LV_C2c
    LV_C2a:
    s_sub_u32 s26, s{S_S}, 2
    s_add_u32 s30, s26, 1
    s_and_b32 s21, s26, 3
    s_mul_i32 s24, s21, {PSLOT}
    s_add_u32 s24, s24, s43
    s_lshl_b32 s25, s21, 13
    s_add_u32 s25, s25, {LDS_U}
    v_add_u32 v11, s25, v5
    s_lshl_b32 s25, s21, 11
    s_add_u32 s25, s25, {LDS_Y}
    v_lshlrev_b32 v6, 3, v0
    v_add_u32 v12, s25, v6
    s_and_b32 s21, s26, 7
    s_mul_i32 s28, s21, {OSLOT}
    s_add_u32 s28, s28, s44
    s_add_u32 s29, s28, 8192
    s_min_u32 s31, s27, 64
    s_min_u32 s32, s27, 63
    """)
    lds_wait(7, F_Y, 4, 136, 30, sleep=1)
    for j in range(8): a(f"ds_read_b128 v[{UU+4*j}:{UU+4*j+3}], v11 offset:{j*1024}")
    for j in range(4): a(f"ds_read_b64 v[{YY+2*j}:{YY+2*j+1}], v12 offset:{j*512}")
    a("s_waitcnt lgkmcnt(0)")
    lds_wait(7, F_MW, 4, 136, 31, sleep=1)
    wait_flags(13, 8, 30)
    for j in range(8):
        o = (j % 2)*1536
        a(f"buffer_load_dwordx4 v[{PTK+4*j}:{PTK+4*j+3}], v5, {WS}, s24 offen offset:{o} sc1")
        a(f"buffer_load_dword v{PMM+4*j}, v9, {WS}, s24 offen offset:{o+1024} sc1")
        if j % 2 == 1 and j < 7: a("s_add_u32 s24, s24, 3072")
    for h in range(4):
        a(f"s_waitcnt vmcnt({12-4*h})")
        for tau in range(2): a(f"v_mov_b32 v{PMM+8*h+4*tau+3}, v{PMM+8*h+4*tau}")
        if h == 3: a(f"ds_write_b32 v7, v15 offset:{F_D2}")
        for tau in range(2):
            for t in range(2):
                d = OO + 8*tau + 4*t
                mfma32(d, UU+8*h+4*t, PTK+8*h+4*tau, d if h else None)
        for tau in range(2):
            for t in range(2):
                d = OO + 8*tau + 4*t
                mfma16(d, YY+2*h, PMM+8*h+4*tau+2*t, d)
    nop(8)
    for tau in range(2):
        d = OO + 8*tau
        cvt(d, d, d+1); cvt(d+1, d+2, d+3); cvt(d+2, d+4, d+5); cvt(d+3, d+6, d+7)
        for i in range(4): san(d+i)
    lds_wait(7, F_GIS, 1, 13, 32, sleep=cfg.slO)
    a(f"""
    buffer_store_dwordx4 v[{OO}:{OO+3}], v10, {WS}, s28 offen sc1
    buffer_store_dwordx4 v[{OO+8}:{OO+11}], v10, {WS}, s29 offen sc1
    LV_C2c:
    s_add_u32 s{S_S}, s{S_S}, 1
    s_cmp_lt_u32 s{S_S}, 66
    s_cbranch_scc1 LV_C2loop
    s_waitcnt vmcnt(0) lgkmcnt(0)
    s_endpgm
    """)

    a("LV_C3:")
    mode_wave()
    a(f"""
    v_mov_b32 v7, {LDS_MISC}
    s_and_b32 s21, s{S_C}, 1
    s_mul_i32 s21, s21, 20480
    v_add_u32 v9, s21, v5
    s_sub_u32 s21, 20480, s21
    v_add_u32 v11, s21, v5
    s_barrier
    s_mov_b32 s{S_S}, 0
    LV_C3loop:
    s_add_u32 s27, s{S_S}, 1
    v_mov_b32 v15, s27
    """)
    a(f"""
    s_add_u32 s26, s{S_S}, 2
    s_cmp_gt_u32 s26, 63
    s_cbranch_scc1 LV_C3b
    """)
    a(f"""
    s_mul_i32 s28, s26, 40960
    s_add_u32 s28, s28, {WS_H}
    s_and_b32 s29, s26, 1
    s_mul_i32 s29, s29, 40960
    s_add_u32 s29, s29, {LDS_TOK}
    v_add_u32 v8, s29, v9
    v_add_u32 v10, s29, v11
    """)
    def tld(i):
        if cfg.nold: return
        a(f"buffer_load_dwordx4 v[{32+4*i}:{35+4*i}], v{9 if i < 20 else 11}, {WS}, s28 offen offset:{(i%4)*1024}")
        if i % 4 == 3: a("s_add_u32 s28, s28, 4096" if i != 19 else "s_sub_u32 s28, s28, 16384")
        if cfg.pace: nop(cfg.pace)
    def twr(i):
        a(f"ds_write_b128 v{8 if i < 20 else 10}, v[{32+4*i}:{35+4*i}] offset:{(i%20)*1024}")
    lds_wait(7, F_MW, 4, 16, 27, sleep=1)
    for i in range(cfg.nA): tld(i)
    if cfg.wA:
        for i in range(cfg.wA):
            a(f"s_waitcnt vmcnt({cfg.nA-1-i})")
            twr(i)
    if cfg.trace: a("s_waitcnt vmcnt(0)")
    stamp(2)
    if cfg.nA < 40:
        lds_wait(7, F_L1D, 1, 16, 27, sleep=1)
        for i in range(cfg.nA, 40): tld(i)
    a("s_waitcnt vmcnt(0)")
    stamp(3)
    lds_wait(7, F_GST, 1, 16, 27, sleep=1)
    for i in range(cfg.wA, 40):
        if not cfg.nowr: twr(i)
    a("LV_C3b:")
    stamp(0)
    a(f"""
    s_waitcnt vmcnt(0)
    ds_write_b32 v7, v15 offset:{F_D3}
    """)
    stamp(1)
    stamp_commit([0, 1, 2, 3], 20)
    after_wait()
    a(f"""
    s_add_u32 s{S_S}, s{S_S}, 1
    s_cmp_lt_u32 s{S_S}, 63
    s_cbranch_scc1 LV_C3loop
    s_waitcnt vmcnt(0) lgkmcnt(0)
    """)
    stamp_dump([0, 1, 2, 3], 20, 20)
    a(f"""
    LM_end:
    s_endpgm
    """)
    a("LM_tail:")
    if not cfg.tail: a("s_endpgm")
    F_TS = 96
    nsync = [0]
    def wsync():
        a("s_waitcnt lgkmcnt(0)\ns_barrier")
    def tst(j, cyc=False):
        if cfg.ptrace: a(f"{'s_memtime' if cyc else 's_memrealtime'} s[{62+2*j}:{63+2*j}]\ns_waitcnt lgkmcnt(0)")
    X = 16; AC1 = 96; XF = 144; BR = 176; T = 144
    lanes()
    read_mode()
    srd(8, KA['b1'], 3072)
    a(f"""
    s_setprio 0
    v_mov_b32 v8, {LDS_MISC}
    s_lshl_b32 s21, s{S_WAVE}, 2
    v_add_u32 v9, s21, v8
    s_lshr_b32 s40, s{S_C}, 3
    s_sub_u32 s40, 3, s40
    s_lshl_b32 s21, s{S_X}, 2
    s_add_u32 s40, s40, s21
    s_and_b32 s41, s{S_C}, 7
    s_lshl_b32 s21, s40, 2
    s_add_u32 s21, s21, s{S_WAVE}
    s_mul_i32 s24, s21, 20480
    s_add_u32 s24, s24, {WS_X1}
    s_add_u32 s25, s24, 4096
    s_add_u32 s26, s25, 4096
    s_add_u32 s27, s26, 4096
    s_add_u32 s28, s27, 4096
    s_lshl_b32 s42, s41, 2
    s_add_u32 s42, s42, s{S_WAVE}
    s_mul_i32 s42, s42, 3
    s_mul_i32 s44, s42, 20480
    s_add_u32 s44, s44, {WS_W1F}
    s_add_u32 s45, s44, 20480
    s_add_u32 s46, s45, 20480
    s_mov_b32 s29, {WS_MOD + 3*2560}
    s_add_u32 s30, s29, 4096
    s_lshl_b32 s47, s{S_C}, 2
    s_add_u32 s47, s47, s{S_WAVE}
    s_mul_i32 s47, s47, 15360
    s_add_u32 s47, s47, {WS_W2F}
    s_add_u32 s43, s47, 7168
    v_lshlrev_b32 v9, 7, v0
    s_barrier
    """)
    tst(0); tst(10, True)
    for i in range(5):
        a(f"buffer_load_dwordx4 v[{AC1+4*i}:{AC1+4*i+3}], v5, {WS}, s{29 if i < 4 else 30} offen offset:{(i%4)*1024} sc1")
    a(f"v_lshlrev_b32 v10, 3, v1\ns_lshl_b32 s31, s42, 5")
    for n in range(3): a(f"buffer_load_dwordx2 v[{250+2*n}:{251+2*n}], v10, {SA}, s31 offen offset:{n*32}")
    def bslot(k): k %= 12; return (BR + 12*k) if k < 6 else (X + 12*(k-6))
    def ldB(k):
        for n in range(3):
            r = bslot(k) + 4*n
            a(f"buffer_load_dwordx4 v[{r}:{r+3}], v5, {WS}, s{44+n} offen offset:{(k%4)*1024}")
        if k % 4 == 3: a("s_add_u32 s44, s44, 4096\ns_add_u32 s45, s45, 4096\ns_add_u32 s46, s46, 4096")
    def shadowx():
        for k in range(6): ldB(k)
        a(f"buffer_load_dword v248, v9, {WS}, s47 offen\nbuffer_load_dword v249, v9, {WS}, s43 offen")
        a(f"s_waitcnt vmcnt({3+20+20})\nv_add_u32 v11, {LDS_PAR}, v5\nv_cmp_le_u32 vcc, 32, v0\nv_mov_b32 v6, 1.0\ns_nop 0\nv_cndmask_b32 v6, 0, v6, vcc")
        for j in range(4): a(f"v_add_f32 v{AC1+8+j}, v6, v{AC1+8+j}")
        for j in range(8): a(f"v_add_f32 v{AC1+12+j}, 1.0, v{AC1+12+j}")
        for i in range(5): a(f"ds_write_b128 v11, v[{AC1+4*i}:{AC1+4*i+3}] offset:{i*1024}")
        for j in range(4): a(f"v_mov_b32 v{T+8+j}, 0x3f803f80")
    def compx(o, i):
        mfma32(T, T+8, X+4*i, T if i else None, o)
        mfma32(T+4, X+4*i, X+4*i, T+4 if i else None, o)
    gather([(X+4*k, 5, 24 + k//4, (k%4)*1024) for k in range(20)], 12, compx, depth=1, shadow=shadowx, young=20, rsleep=4)
    tst(1)
    a(f"""
    v_lshlrev_b32 v6, 2, v1
    v_sub_u32 v6, v2, v6
    v_mov_b32 v{T+12}, 0
    s_nop 2
    """)
    for j in range(4): a(f"v_cmp_eq_u32 vcc, {j}, v6\ns_nop 1\nv_cndmask_b32 v{T+12}, v{T+12}, v{T+4+j}, vcc")
    xlane("v_add_f32", T+12, T+13)
    a(f"""
    v_mul_f32 v{T}, {hex(f2u(1/640))}, v{T}
    v_mul_f32 v{T+12}, {hex(f2u(1/640))}, v{T+12}
    v_fma_f32 v{T+12}, -v{T}, v{T}, v{T+12}
    v_max_f32 v{T+12}, 0, v{T+12}
    v_add_f32 v{T+12}, {hex(f2u(1e-5))}, v{T+12}
    v_rsq_f32 v{T+2}, v{T+12}
    v_lshlrev_b32 v11, 5, v1
    v_add_u32 v11, {LDS_PAR}, v11
    v_mul_f32 v{T}, v{T}, v{T+2}
    s_mul_i32 s31, s{S_WAVE}, 20480
    v_add_u32 v13, s31, v5
    """)
    P = AC1
    def rdP(k):
        p = P + 16*(k % 3)
        a(f"""
        ds_read_b128 v[{p}:{p+3}], v11 offset:{k*128}
        ds_read_b128 v[{p+4}:{p+7}], v11 offset:{k*128+16}
        ds_read_b128 v[{p+8}:{p+11}], v11 offset:{2560+k*128}
        ds_read_b128 v[{p+12}:{p+15}], v11 offset:{2560+k*128+16}
        """)
    rdP(0); rdP(1)
    for k in range(20):
        p = P + 16*(k % 3)
        for j in range(4):
            a(f"v_lshlrev_b32 v{T+8+2*j}, 16, v{X+4*k+j}\nv_and_b32 v{T+9+2*j}, 0xffff0000, v{X+4*k+j}")
        for j in range(4):
            a(f"v_pk_fma_f32 v[{T+8+2*j}:{T+9+2*j}], v[{T+8+2*j}:{T+9+2*j}], v[{T+2}:{T+3}], v[{T}:{T+1}] op_sel_hi:[1,0,0] neg_lo:[0,0,1] neg_hi:[0,0,1]")
        a(f"s_waitcnt lgkmcnt({(4 if k < 19 else 0) + min(k, 2)})")
        for j in range(4):
            a(f"v_pk_fma_f32 v[{T+8+2*j}:{T+9+2*j}], v[{T+8+2*j}:{T+9+2*j}], v[{p+8+2*j}:{p+9+2*j}], v[{p+2*j}:{p+2*j+1}]")
        for j in range(4): cvt(X+4*k+j, T+8+2*j, T+9+2*j)
        if k + 2 < 20: rdP(k+2)
        a(f"ds_write_b128 v13, v[{X+4*k}:{X+4*k+3}] offset:{k*1024}")
    a("s_waitcnt lgkmcnt(0)")
    tst(2)
    for k in range(6, 12): ldB(k)
    wsync()
    tst(3)
    a("v_add_u32 v14, 40960, v5")
    def rdA(k):
        for tt in range(4):
            r = XF + 16*(k % 2) + 4*tt
            a(f"ds_read_b128 v[{r}:{r+3}], v{5 if tt < 2 else 14} offset:{(tt%2)*20480 + k*1024}")
    rdA(0)
    for k in range(20):
        if k < 19: rdA(k+1)
        a(f"s_waitcnt vmcnt({3*min(11, 19-k) + (2 if k < 6 else 0)}) lgkmcnt({4 if k < 19 else 0})")
        for n in range(3):
            for tt in range(4):
                d = AC1 + 16*n + 4*tt
                mfma32(d, bslot(k) + 4*n, XF + 16*(k % 2) + 4*tt, d if k else None)
        if k + 12 < 20: ldB(k + 12)
    tst(4)
    WB, HB, AC2 = 16, 176, 96
    a(f"""
    s_mul_i32 s21, s{S_WAVE}, 12288
    s_mul_i32 s48, s40, {4*49152}
    s_add_u32 s48, s48, {WS_HID}
    s_add_u32 s52, s48, s21
    s_mul_i32 s56, s41, {5*49152}
    s_add_u32 s56, s56, s21
    s_add_u32 s56, s56, {WS_W2F}
    """)
    for i in range(1, 4): a(f"s_add_u32 s{52+i}, s{51+i}, 49152")
    for i in range(1, 5): a(f"s_add_u32 s{56+i}, s{55+i}, 49152")
    def ldW(k):
        for j in range(5):
            r = WB + 20*(k % 4) + 4*j
            a(f"buffer_load_dwordx4 v[{r}:{r+3}], v5, {WS}, s{56+j} offen offset:{(k%4)*1024}")
        if k % 4 == 3:
            for j in range(5): a(f"s_add_u32 s{56+j}, s{56+j}, 4096")
    def ldH(k):
        for j in range(4):
            r = HB + 16*(k % 4) + 4*j
            a(f"buffer_load_dwordx4 v[{r}:{r+3}], v5, {WS}, s{52+j} offen offset:{(k%4)*1024} sc1")
        if k % 4 == 3:
            for j in range(4): a(f"s_add_u32 s{52+j}, s{52+j}, 4096")
    for k in range(4): ldW(k)
    K1 = 2*math.sqrt(2/math.pi)*math.log2(math.e)
    a(f"""
    s_mov_b32 s32, {hex(f2u(-K1*0.044715))}
    s_mov_b32 s33, s32
    v_mov_b32 v{T+16}, {hex(f2u(-K1))}
    """)
    sts = []
    for n in range(3):
        a(f"""
        v_lshlrev_b32 v{T+20}, 16, v{250+2*n}
        v_and_b32 v{T+21}, 0xffff0000, v{250+2*n}
        v_lshlrev_b32 v{T+22}, 16, v{251+2*n}
        v_and_b32 v{T+23}, 0xffff0000, v{251+2*n}
        s_add_u32 s34, s42, {n}
        s_lshr_b32 s35, s34, 1
        s_lshl_b32 s35, s35, 10
        s_and_b32 s34, s34, 1
        s_lshl_b32 s34, s34, 3
        s_add_u32 s35, s35, s34
        s_add_u32 s24, s35, s48
        s_add_u32 s25, s24, 49152
        s_add_u32 s26, s25, 49152
        s_add_u32 s27, s26, 49152
        """)
        d = AC1 + 16*n
        for h in range(8): a(f"v_pk_add_f32 v[{d+2*h}:{d+2*h+1}], v[{d+2*h}:{d+2*h+1}], v[{T+20+2*(h&1)}:{T+21+2*(h&1)}]")
        for h in range(8): a(f"v_pk_mul_f32 v[{T+2*h}:{T+2*h+1}], v[{d+2*h}:{d+2*h+1}], v[{d+2*h}:{d+2*h+1}]")
        for h in range(8): a(f"v_pk_fma_f32 v[{T+2*h}:{T+2*h+1}], v[{T+2*h}:{T+2*h+1}], s[32:33], v[{T+16}:{T+17}] op_sel_hi:[1,1,0]")
        for h in range(8): a(f"v_pk_mul_f32 v[{T+2*h}:{T+2*h+1}], v[{T+2*h}:{T+2*h+1}], v[{d+2*h}:{d+2*h+1}]")
        for h in range(16): a(f"v_exp_f32 v{T+h}, v{T+h}")
        for h in range(8): a(f"v_pk_add_f32 v[{T+2*h}:{T+2*h+1}], v[{T+2*h}:{T+2*h+1}], 1.0 op_sel_hi:[1,0]")
        for h in range(16): a(f"v_rcp_f32 v{T+h}, v{T+h}")
        for h in range(8): a(f"v_pk_mul_f32 v[{d+2*h}:{d+2*h+1}], v[{d+2*h}:{d+2*h+1}], v[{T+2*h}:{T+2*h+1}]")
        for tt in range(4):
            cvt(d+4*tt, d+4*tt, d+4*tt+1); cvt(d+4*tt+1, d+4*tt+2, d+4*tt+3)
        lstore([f"buffer_store_dwordx2 v[{d+4*tt}:{d+4*tt+1}], v5, {WS}, s{24+tt} offen" for tt in range(4)])
    tst(5)
    a(f"""
    s_lshl_b32 s21, s40, 9
    s_add_u32 s21, s21, {FLD}
    s_lshr_b32 s24, s41, 1
    s_lshl_b32 s24, s24, 7
    s_add_u32 s24, s24, s21
    s_and_b32 s25, s41, 1
    s_lshl_b32 s25, s25, 2
    s_add_u32 s25, s25, s{S_WAVE}
    s_lshl_b32 s25, s25, 2
    s_add_u32 s24, s24, s25
    s_lshl_b32 s25, s{S_WAVE}, 7
    s_add_u32 s21, s21, s25
    v_lshlrev_b32 v10, 2, v3
    v_add_u32 v10, s21, v10
    v_mov_b32 v6, 0
    v_mov_b32 v7, 1
    s_mov_b32 s26, 1
    s_waitcnt vmcnt(0)
    s_mov_b64 exec, 1
    """)
    lstore(f"buffer_store_dword v7, v6, {WS}, s24 offen")
    a("s_mov_b64 exec, -1")
    tst(6)
    wait_flags(11, 10, 26)
    tst(7)
    for k in range(4): ldH(k)
    srd(8, KA['b2'], 1280)
    srd(12, KA['out'], 2048*1280)
    for k in range(12):
        if k < 4: y = 4*(3-k) + 9*k
        else: y = 9*min(3, 11-k)
        a(f"s_waitcnt vmcnt({y})")
        for tt in range(4):
            for n in range(5):
                d = AC2 + 20*tt + 4*n
                mfma32(d, WB + 20*(k % 4) + 4*n, HB + 16*(k % 4) + 4*tt, d if k else None)
        if k + 4 < 12: ldW(k+4); ldH(k+4)
    tst(8)
    EA, EE = 16, 176
    a(f"""
    s_mul_i32 s24, s40, {4*20480}
    s_add_u32 s24, s24, {WS_X1}
    s_mov_b32 s25, {WS_MOD + 5*2560}
    s_mul_i32 s26, s41, 20
    s_lshl_b32 s27, s40, 6
    s_lshl_b32 s28, s{S_WAVE}, 6
    """)
    for i in range(5):
        b = EA + 2*i; e = EE + 8*i
        a(f"""
        s_add_u32 s21, s28, {256*i}
        v_add_u32 v30, s21, v0
        v_mul_u32_u24 v31, 3277, v30
        v_lshrrev_b32 v31, 16, v31
        v_mul_u32_u24 v32, 20, v31
        v_sub_u32 v32, v30, v32
        v_lshrrev_b32 v33, 4, v31
        v_and_b32 v34, 15, v31
        v_mul_u32_u24 v35, 20, v33
        v_add_u32 v35, v35, v32
        v_mul_u32_u24 v35, 272, v35
        v_lshl_add_u32 v{b}, v34, 4, v35
        v_add_u32 v32, s26, v32
        v_lshlrev_b32 v36, 3, v32
        v_add_u32 v35, s27, v31
        v_mul_u32_u24 v35, 1280, v35
        v_add_u32 v{b+1}, v35, v36
        v_mul_u32_u24 v35, 20480, v33
        v_lshl_add_u32 v35, v34, 4, v35
        v_lshrrev_b32 v37, 1, v32
        v_lshl_add_u32 v35, v37, 8, v35
        v_and_b32 v37, 1, v32
        v_lshl_add_u32 v35, v37, 3, v35
        v_lshlrev_b32 v37, 1, v36
        buffer_load_dwordx2 v[{e}:{e+1}], v35, {WS}, s24 offen sc1
        buffer_load_dwordx2 v[{e+2}:{e+3}], v36, {SA}, 0 offen
        buffer_load_dwordx4 v[{e+4}:{e+7}], v37, {WS}, s25 offen sc1
        """)
    wsync()
    a(f"""
    v_mul_u32_u24 v13, 272, v1
    v_lshl_add_u32 v13, v2, 4, v13
    s_mul_i32 s21, s{S_WAVE}, 21760
    v_add_u32 v13, s21, v13
    """)
    for j in range(20): a(f"ds_write_b128 v13, v[{AC2+4*j}:{AC2+4*j+3}] offset:{j*4*272}")
    wsync()
    for i in range(5):
        for w in range(4):
            r = AC2 + 16*i + 4*w
            a(f"ds_read_b128 v[{r}:{r+3}], v{EA+2*i} offset:{w*21760}")
        if i == 2: a("s_waitcnt lgkmcnt(4)")
    a("s_waitcnt vmcnt(0)")
    for i in range(5):
        r = AC2 + 16*i; e = EE + 8*i
        if i >= 2: a(f"s_waitcnt lgkmcnt({4*(4-i)})")
        for h in (0, 2):
            a(f"""
            v_pk_add_f32 v[{r+h}:{r+h+1}], v[{r+h}:{r+h+1}], v[{r+4+h}:{r+5+h}]
            v_pk_add_f32 v[{r+8+h}:{r+9+h}], v[{r+8+h}:{r+9+h}], v[{r+12+h}:{r+13+h}]
            v_lshlrev_b32 v30, 16, v{e+2+h//2}
            v_and_b32 v31, 0xffff0000, v{e+2+h//2}
            v_pk_add_f32 v[{r+h}:{r+h+1}], v[{r+h}:{r+h+1}], v[{r+8+h}:{r+9+h}]
            v_lshlrev_b32 v32, 16, v{e+h//2}
            v_and_b32 v33, 0xffff0000, v{e+h//2}
            v_pk_add_f32 v[{r+h}:{r+h+1}], v[{r+h}:{r+h+1}], v[30:31]
            v_pk_fma_f32 v[{r+h}:{r+h+1}], v[{r+h}:{r+h+1}], v[{e+4+h}:{e+5+h}], v[32:33]
            """)
        cvt(r, r, r+1); cvt(r+1, r+2, r+3)
        a(f"buffer_store_dwordx2 v[{r}:{r+1}], v{EA+2*i+1}, {SB}, 0 offen")
    a("s_waitcnt vmcnt(0)")
    tst(9); tst(11, True)
    if cfg.ptrace:
        pstamp(9)
        for j in range(12): a(f"v_mov_b32 v6, s{62+2*j}\nbuffer_store_dword v6, v7, {WS}, s92 offen offset:{4*(7+j)}")
        a("s_waitcnt vmcnt(0)")
    a("s_endpgm")

    for ls, lb, ins in slow:
        a(ls + ":")
        for i in ins: a(i)
        a(f"s_branch {lb}")
    for o in ool: a.lines += o.lines
    a('LM_codeend:\ns_endpgm')
    return kernel_head(name) + a.text(), kernel_desc(name, 256, 100, 256)
```

```python
def al(x, a): return (x + a - 1) // a * a

WS_MODP = 0
WS_MOD  = 65536
WS_FLAG = 81920
FL1 = WS_FLAG
FL2 = FL1 + 32*3*128
FLD = FL2 + 32*2*128
FLH = FLD + 32*4*128
FLAG_END = FLH + 32*128
WS_CAL  = al(FLAG_END, 16384)
WS_NG   = WS_CAL + 65536
WS_NL   = WS_NG + 6*16384
WS_L1R  = WS_NL + 32768
L1SLOT = 8*2*4096
WS_MR   = WS_L1R + 4*L1SLOT
MSLOT = 8*10240
WS_PR   = WS_MR + 4*MSLOT
PSLOT = 32*2*1536
WS_T1R  = WS_PR + 4*PSLOT
T1SLOT = 32*3*5120
WS_H    = al(WS_T1R + 4*T1SLOT, 1 << 21)
WS_X1   = WS_H + 64*40960
WS_G    = al(WS_X1 + 2048*1280, 1 << 21)
GSLOT = 163840
WS_O    = al(WS_G + 63*GSLOT, 1 << 21)
OSLOT = 327680
WS_HID  = WS_O + 8*OSLOT
WS_W1F  = WS_HID + 2048*1536*2
WS_W2F  = WS_W1F + 96*20*1024
WS_DBG  = al(WS_W2F + 40*48*1024, 1 << 21)
WS_SIZE = 1 << 28

KA = dict(x=0, mem0=8, Wq=16, Wk=24, Wv=32, Wo=40, seg=48, Bx=56, w1=64, b1=72, w2=80, b2=88,
          c=96, wmod=104, out=112, dbg=120, ws=128)

LDS_TOK = 0
LDS_M   = 81920
LDS_QKM = 92160
LDS_QX  = 98304
LDS_U   = 92160
LDS_Y   = LDS_U + 32768
LDS_HO  = LDS_Y + 8192
LDS_MISC = 147456
LDS_PAR = 135168
LDS_MAIN = LDS_MISC + 256
if __name__ == '__main__':
    for k, v in list(globals().items()):
        if isinstance(v, int): print(k, v, hex(v))
```

```python
import sys
sys.path.insert(0, 'dev')
from layout import *
import gen_main, gen_aux
NAME = 'adaLN_cond__memory_aug_recurrent_mem_tr__dense_activation_gelu__prompt'
def gen(cfg):
    gen_aux.TRACE = cfg.ptrace
    ref = open(f'cdna_kernels/{NAME}.s.ref').read().splitlines()
    head = [l for l in ref if l.startswith(';') and 'launch' not in l.replace('launch list', '').replace("later launches", "") and 'grid=ceil' not in l]
    ks = [('pre_kernel', lambda n: gen_aux.gen_pre(n, cfg, NAME + '_kernel'), 256, gen_aux.LDS_PRE),
          (NAME + '_kernel', lambda n: gen_main.gen_main(cfg, n), 512, LDS_MAIN)]
    if not cfg.tail:
        ks += [('mlp1_kernel', gen_aux.gen_mlp1, 256, gen_aux.LDS_M1), ('mlp2_kernel', gen_aux.gen_mlp2, 256, gen_aux.LDS_M2)]
    out = '\n'.join(head) + '\n'
    for n, g, b, lds in ks: out += f"; @launch kernel={n} grid=(256,1,1) block=({b},1,1) lds={lds}\n"
    out += '.amdgcn_target "amdgcn-amd-amdhsa--gfx950"\n'
    descs = ''
    for n, g, b, lds in ks:
        body, desc = g(n)
        out += body; descs += desc
    return out + descs
if __name__ == '__main__':
    cfg = gen_main.Cfg()
    path = f'cdna_kernels/{NAME}.s'
    for kv in sys.argv[1:]:
        k, v = kv.split('=')
        if k == 'o': path = v
        else:
            assert hasattr(cfg, k), k; setattr(cfg, k, int(v))
    open(path, 'w').write(gen(cfg))
```

```python
import math, struct
from asmlib import *
from layout import *
def f2u(f): return struct.unpack('<I', struct.pack('<f', f))[0]
WS = "s[4:7]"; SA = "s[8:11]"; SB = "s[12:15]"; SC = "s[24:27]"
LOG2E = math.log2(math.e)
TRACE = 0

class A(Asm):
    def nop(self, n):
        while n > 0:
            k = min(n, 16); self(f"s_nop {k-1}"); n -= k
    def srd(self, dst, karg, size):
        self(f"s_load_dwordx2 s[{dst}:{dst+1}], s[0:1], {karg}\ns_mov_b32 s{dst+2}, {size}\ns_mov_b32 s{dst+3}, 0x20000")
    def xlane(self, op, v, t):
        self(f"""
        v_mov_b32 v{t}, v{v}
        s_nop 1
        v_permlane32_swap_b32 v{t}, v{v}
        {op} v{v}, v{v}, v{t}
        v_mov_b32 v{t}, v{v}
        s_nop 1
        v_permlane16_swap_b32 v{t}, v{v}
        {op} v{v}, v{v}, v{t}
        """)
    def st(self, i):
        if TRACE: self(f"s_memrealtime s[{70+2*i}:{71+2*i}]")
    def stdump(self, n, base):
        if not TRACE: return
        self(f"s_waitcnt lgkmcnt(0)\ns_lshl_b32 s60, s2, 2\ns_add_u32 s60, s60, s16\ns_lshl_b32 s60, s60, 6\ns_add_u32 s60, s60, {WS_DBG + base}\nv_mov_b32 v4, 0")
        for i in range(n): self(f"v_mov_b32 v5, s{70+2*i}\nbuffer_store_dword v5, v4, {WS}, s60 offen offset:{4*i}")
        self("s_waitcnt vmcnt(0)")
    def rowsum16(self, v):
        for r in (8, 4, 2, 1):
            self(f"s_nop 1\nv_add_f32_dpp v{v}, v{v}, v{v} row_ror:{r} row_mask:0xf bank_mask:0xf")

LDS_PRE = 8192 + 16384
def gen_pre(name, cfg, main):
    a = A()
    a(f"""
    s_cmp_ge_u32 s2, 256
    s_cbranch_scc1 LP_end
    """)
    a.srd(4, KA['ws'], WS_SIZE); a.srd(8, KA['wmod'], 640*7680); a.srd(12, KA['c'], 1280)
    a(f"""
    s_load_dwordx2 s[28:29], s[0:1], {KA['w1']}
    s_load_dwordx2 s[30:31], s[0:1], {KA['w2']}
    s_load_dwordx2 s[32:33], s[0:1], {KA['mem0']}
    v_lshrrev_b32 v1, 6, v0
    v_and_b32 v2, 63, v0
    v_readfirstlane_b32 s16, v1
    s_mov_b32 s34, 10240
    s_mov_b32 s35, 0x20000
    s_waitcnt lgkmcnt(0)
    """)
    if cfg.dtrace:
        a(f"""
        s_memrealtime s[60:61]
        s_waitcnt lgkmcnt(0)
        s_cmp_lg_u32 s2, 0
        s_cbranch_scc1 LP_nd
        v_mov_b32 v3, s60
        v_mov_b32 v4, 0
        s_mov_b32 s17, {WS_CAL - 64}
        buffer_store_dword v3, v4, {WS}, s17 offen
        LP_nd:
        """)
    a(f"""
    ; ---- mod partial loads: cg = j%60, kq = j/60 (j<240; others read out of range -> zeros, never stored)
    s_mul_i32 s17, s2, 1093
    s_lshr_b32 s17, s17, 16
    s_mul_i32 s18, s17, 60
    s_sub_u32 s18, s2, s18
    v_lshrrev_b32 v3, 3, v0
    s_mul_i32 s19, s17, 160
    v_add_u32 v3, s19, v3
    v_mul_u32_u24 v4, 7680, v3
    v_and_b32 v5, 7, v0
    v_lshl_add_u32 v4, v5, 4, v4
    s_lshl_b32 s20, s18, 7
    v_lshlrev_b32 v3, 1, v3
    """)
    for i in range(5):
        a(f"buffer_load_dwordx4 v[{16+4*i}:{19+4*i}], v4, {SA}, s20 offen{' nt' if cfg.ntP else ''}")
        a(f"buffer_load_ushort v{36+i}, v3, {SB}, 0 offen offset:{i*64}")
        if i < 4: a(f"s_add_u32 s20, s20, {32*7680}")
    a(f"""
    s_lshl_b32 s21, s2, 2
    s_add_u32 s21, s21, s16
    s_cmp_lt_u32 s21, 480
    s_cbranch_scc0 LP_w2
    s_mul_i32 s22, s21, 2731
    s_lshr_b32 s22, s22, 16
    s_mul_i32 s23, s22, 24
    s_sub_u32 s23, s21, s23
    s_mov_b32 s24, s28
    s_mov_b32 s25, s29
    s_mov_b32 s36, 3072
    s_mul_i32 s37, s23, {4*20*1024}
    s_lshl_b32 s38, s22, 10
    s_add_u32 s37, s37, s38
    s_add_u32 s37, s37, {WS_W1F}
    s_mov_b32 s38, {20*1024}
    s_mov_b32 s39, 1024
    s_mov_b32 s40, 512
    s_branch LP_wj
    LP_w2:
    s_sub_u32 s21, s21, 480
    s_mul_i32 s22, s21, 6554
    s_lshr_b32 s22, s22, 16
    s_mul_i32 s23, s22, 10
    s_sub_u32 s23, s21, s23
    s_mov_b32 s24, s30
    s_mov_b32 s25, s31
    s_mov_b32 s36, 1280
    s_mul_i32 s37, s23, {4*48*1024}
    s_lshl_b32 s38, s22, 10
    s_add_u32 s37, s37, s38
    s_add_u32 s37, s37, {WS_W2F}
    s_mov_b32 s38, {48*1024}
    s_mov_b32 s39, 512
    s_mov_b32 s40, 2048
    LP_wj:
    s_mov_b32 s26, {640*3072}
    s_mov_b32 s27, 0x20000
    v_lshrrev_b32 v6, 3, v2
    s_lshl_b32 s41, s22, 5
    v_add_u32 v6, s41, v6
    v_mul_lo_u32 v6, v6, s36
    v_lshl_add_u32 v6, v5, 4, v6
    s_lshl_b32 s41, s23, 7
    s_lshl_b32 s42, s36, 3
    """)
    for i in range(4):
        a(f"buffer_load_dwordx4 v[{44+4*i}:{47+4*i}], v6, {SC}, s41 offen{' nt' if cfg.ntP else ''}")
        if i < 3: a("s_add_u32 s41, s41, s42")
    a(f"""
    s_load_dwordx2 s[48:49], s[0:1], {KA['Wo']}
    s_load_dwordx2 s[52:53], s[0:1], {KA['Wv']}
    s_load_dwordx2 s[56:57], s[0:1], {KA['x']}
    s_getreg_b32 s46, hwreg(HW_REG_XCC_ID, 0, 4)
    s_mov_b32 s50, {32*192*1280}
    s_mov_b32 s51, 0x20000
    s_mov_b32 s54, {640*12288}
    s_mov_b32 s55, 0x20000
    s_mov_b32 s58, {2048*1280}
    s_mov_b32 s59, 0x20000
    s_and_b32 s46, s46, 7
    v_min_u32 v14, 79, v0
    v_lshlrev_b32 v14, 7, v14
    s_mul_i32 s45, s2, 10240
    s_waitcnt lgkmcnt(0)
    buffer_load_dword v86, v14, s[56:59], s45 offen
    """)
    if cfg.precode:
        a(f"""
        s_getpc_b64 s[60:61]
        LP_pc:
        s_add_u32 s60, s60, {main}-LP_pc
        s_addc_u32 s61, s61, 0
        v_lshlrev_b32 v14, 7, v0
        v_min_u32 v14, LM_codeend-{main}, v14
        global_load_dword v87, v14, s[60:61]
        """)
    if cfg.prewarm:
        a(f"""
        v_min_u32 v14, 239, v0
        v_mul_u32_u24 v15, 5462, v14
        v_lshrrev_b32 v15, 16, v15
        v_mul_u32_u24 v15, {12288 - 12*128}, v15
        v_lshlrev_b32 v14, 7, v14
        v_add_u32 v15, v15, v14
        s_lshr_b32 s44, s2, 3
        s_mul_i32 s45, s44, 30720
        s_mul_i32 s47, s46, {4*245760}
        s_add_u32 s45, s45, s47
        buffer_load_dword v84, v14, s[48:51], s45 offen nt
        s_mul_i32 s45, s44, {20*12288}
        s_mul_i32 s47, s46, 1536
        s_add_u32 s45, s45, s47
        buffer_load_dword v85, v15, s[52:55], s45 offen nt
        """)
    def fill(val, lo, hi):
        lp = a.label('fill')
        a(f"""
        v_mov_b32 v8, {val}
        v_mov_b32 v9, {val}
        v_mov_b32 v10, {val}
        v_mov_b32 v11, {val}
        s_lshl_b32 s43, s2, 12
        s_add_u32 s43, s43, {lo}
        s_cmp_ge_u32 s43, {hi}
        s_cbranch_scc1 {lp}_x
        {lp}:
        buffer_store_dwordx4 v[8:11], v7, {WS}, s43 offen
        s_add_u32 s43, s43, {256*4096}
        s_cmp_lt_u32 s43, {hi}
        s_cbranch_scc1 {lp}
        {lp}_x:
        s_nop 1
        """)
        assert (hi - lo) % 4096 == 0
    a("v_lshlrev_b32 v7, 4, v0")
    fill(0, WS_FLAG, FLAG_END)
    fill(0, WS_NG, WS_L1R)
    fill(-1, WS_L1R, WS_MR)
    fill(-1, WS_MR + MSLOT, WS_PR)
    fill(-1, WS_G, WS_G + 4*GSLOT)
    a(f"""
    s_sub_u32 s43, s2, 240
    s_cmp_ge_u32 s43, 8
    s_cbranch_scc1 LP_nom
    s_mul_i32 s43, s43, 10240
    s_add_u32 s43, s43, {WS_MR}
    v_bfe_u32 v8, v0, 2, 2
    v_and_b32 v9, 1, v0
    v_lshl_add_u32 v8, v8, 1, v9
    v_mul_u32_u24 v8, 1280, v8
    v_lshrrev_b32 v9, 4, v0
    v_lshl_add_u32 v8, v9, 5, v8
    v_bfe_u32 v9, v0, 1, 1
    v_lshl_add_u32 v8, v9, 4, v8
    buffer_load_dwordx4 v[60:63], v8, s[32:35], 0 offen
    buffer_load_dwordx4 v[64:67], v8, s[32:35], 0 offen offset:512
    buffer_load_dwordx4 v[68:71], v8, s[32:35], 0 offen offset:1024
    s_waitcnt vmcnt(0)
    """)
    for i in range(60, 72): a(f"v_min_u32 v{i}, -2, v{i}")
    a(f"""
    buffer_store_dwordx4 v[60:63], v7, {WS}, s43 offen
    s_add_u32 s43, s43, 4096
    buffer_store_dwordx4 v[64:67], v7, {WS}, s43 offen
    s_add_u32 s43, s43, 4096
    s_cmp_ge_u32 s16, 2
    s_cbranch_scc1 LP_nom
    buffer_store_dwordx4 v[68:71], v7, {WS}, s43 offen
    LP_nom:
    s_waitcnt vmcnt(0)
    s_cmp_ge_u32 s2, 240
    s_cbranch_scc1 LP_end
    """)
    a(f"""
    s_lshl_b32 s43, s16, 12
    s_add_u32 s43, s43, 8192
    v_lshlrev_b32 v8, 4, v2
    v_add_u32 v9, s43, v8
    """)
    for i in range(4): a(f"ds_write_b128 v9, v[{44+4*i}:{47+4*i}] offset:{i*1024}")
    a(f"""
    v_lshrrev_b32 v10, 4, v2
    v_mul_lo_u32 v10, v10, s39
    v_bfe_u32 v11, v2, 2, 2
    v_lshl_add_u32 v10, v11, 7, v10
    v_and_b32 v11, 3, v2
    v_lshl_add_u32 v10, v11, 3, v10
    v_add_u32 v10, s43, v10
    v_add_u32 v11, s40, v10
    """)
    for n in range(4):
        a(f"ds_read_b64_tr_b16 v[{60+4*n}:{61+4*n}], v10 offset:{n*32}")
        a(f"ds_read_b64_tr_b16 v[{62+4*n}:{63+4*n}], v11 offset:{n*32}")
    a("s_waitcnt lgkmcnt(0)")
    for n in range(4):
        a(f"buffer_store_dwordx4 v[{60+4*n}:{63+4*n}], v8, {WS}, s37 offen")
        if n < 3: a("s_add_u32 s37, s37, s38")
    for i in range(5):
        c = 36 + i
        a(f"""
        v_lshlrev_b32 v{c}, 16, v{c}
        v_mul_f32 v12, {hex(f2u(-LOG2E))}, v{c}
        v_exp_f32 v12, v12
        s_nop 0
        v_add_f32 v12, 1.0, v12
        v_rcp_f32 v12, v12
        s_nop 0
        v_mul_f32 v{c}, v{c}, v12
        v_cvt_pk_bf16_f32 v{c}, v{c}, v{c}
        v_lshlrev_b32 v{c}, 16, v{c}
        """)
        for j in range(4):
            w = 16 + 4*i + j
            a(f"v_lshlrev_b32 v12, 16, v{w}\nv_and_b32 v13, 0xffff0000, v{w}")
            if i == 0: a(f"v_mul_f32 v{76+2*j}, v12, v{c}\nv_mul_f32 v{77+2*j}, v13, v{c}")
            else: a(f"v_fmac_f32 v{76+2*j}, v12, v{c}\nv_fmac_f32 v{77+2*j}, v13, v{c}")
    a(f"""
    v_lshlrev_b32 v12, 5, v0
    ds_write_b128 v12, v[76:79]
    ds_write_b128 v12, v[80:83] offset:16
    s_waitcnt lgkmcnt(0)
    s_barrier
    s_cmp_lg_u32 s16, 0
    s_cbranch_scc1 LP_fin
    v_lshlrev_b32 v12, 2, v0
    """)
    for i in range(32): a(f"ds_read_b32 v{16+i}, v12 offset:{i*256}")
    a("s_waitcnt lgkmcnt(0)")
    for st in (16, 8, 4, 2, 1):
        for i in range(st): a(f"v_add_f32 v{16+i}, v{16+i}, v{16+st+i}")
    a(f"""
    s_mul_i32 s43, s17, {3840*4}
    s_lshl_b32 s44, s18, 8
    s_add_u32 s43, s43, s44
    s_add_u32 s43, s43, {WS_MODP}
    buffer_store_dword v16, v12, {WS}, s43 offen
    LP_fin:
    s_waitcnt vmcnt(0)
    LP_end:
    s_endpgm
    """)
    return kernel_head(name) + a.text(), kernel_desc(name, 88, 64, 88)

def ln1_body(m, sw, warm=None):
    a = A(); a.uid = 900000
    a.srd(8, KA['x'], 2048*1280)
    a(f"""
    v_lshlrev_b32 v3, 4, v89
    v_mov_b32 v4, 0x40000000
    v_cmp_gt_u32 vcc, 320, v89
    s_lshl_b32 s24, s2, 3
    s_add_u32 s24, s24, s{sw}
    v_cndmask_b32 v5, v4, v3, vcc
    v_cmp_gt_u32 vcc, 40, v0
    v_lshlrev_b32 v6, 5, v0
    s_mul_i32 s25, s24, 1280
    v_cndmask_b32 v6, v4, v6, vcc
    s_mov_b32 s26, {WS_MODP}
    """)
    def modld(base, soff):
        for q in range(4):
            a(f"s_add_u32 s27, s{soff}, {q*3840*4}\nbuffer_load_dwordx4 v[{base+4*q}:{base+4*q+3}], v5, {WS}, s27 offen")
    def modsum(base):
        for i in (0, 2):
            a(f"""
            v_pk_add_f32 v[{base+i}:{base+i+1}], v[{base+i}:{base+i+1}], v[{base+4+i}:{base+5+i}]
            v_pk_add_f32 v[{base+8+i}:{base+9+i}], v[{base+8+i}:{base+9+i}], v[{base+12+i}:{base+13+i}]
            v_pk_add_f32 v[{base+i}:{base+i+1}], v[{base+i}:{base+i+1}], v[{base+8+i}:{base+9+i}]
            v_cvt_pk_bf16_f32 v{base+i}, v{base+i}, v{base+i+1}
            v_and_b32 v{base+i+1}, 0xffff0000, v{base+i}
            v_lshlrev_b32 v{base+i}, 16, v{base+i}
            """)
    modld(16, 26)
    a(f"""
    s_waitcnt lgkmcnt(0)
    buffer_load_dwordx4 v[8:11], v6, {SA}, s25 offen
    buffer_load_dwordx4 v[12:15], v6, {SA}, s25 offen offset:16
    s_cmp_ge_u32 s2, 2
    s_cbranch_scc1 LL_nf0
    s_add_u32 s28, s2, 1
    s_mul_i32 s28, s28, 5120
    s_add_u32 s26, s28, {WS_MODP}
    """)
    modld(32, 26)
    a("s_waitcnt vmcnt(0)")
    modsum(32)
    a(f"""
    s_add_u32 s28, s28, {WS_MOD}
    buffer_store_dwordx4 v[32:35], v5, {WS}, s28 offen sc1
    LL_nf0:
    """)
    if warm: warm(a)
    a(f"s_waitcnt vmcnt({1 if warm else 0})")
    modsum(16)
    a(f"""
    s_cmp_ge_u32 s{sw}, 5
    s_cbranch_scc1 LL_nw
    ds_write_b128 v3, v[16:19]
    LL_nw:
    """)
    a("s_waitcnt lgkmcnt(0)\ns_barrier")
    a("v_min_u32 v7, 39, v0\nv_lshlrev_b32 v7, 6, v7")
    for i in range(4): a(f"ds_read_b128 v[{48+4*i}:{51+4*i}], v7 offset:{i*16}")
    for i in range(4): a(f"ds_read_b128 v[{64+4*i}:{67+4*i}], v7 offset:{2560+i*16}")
    for i in range(8):
        a(f"v_lshlrev_b32 v{16+2*i}, 16, v{8+i}\nv_and_b32 v{17+2*i}, 0xffff0000, v{8+i}")
    a("v_pk_add_f32 v[32:33], v[16:17], v[18:19]")
    for i in range(20, 32, 2): a(f"v_pk_add_f32 v[32:33], v[32:33], v[{i}:{i+1}]")
    a("v_add_f32 v32, v32, v33")
    a.rowsum16(32); a.xlane("v_add_f32", 32, 33)
    a(f"v_mul_f32 v32, {hex(f2u(1/640))}, v32")
    for i in range(16, 32, 2): a(f"v_pk_add_f32 v[{i}:{i+1}], v[{i}:{i+1}], v[32:33] op_sel_hi:[1,0] neg_lo:[0,1] neg_hi:[0,1]")
    a("v_pk_mul_f32 v[34:35], v[16:17], v[16:17]")
    for i in range(18, 32, 2): a(f"v_pk_fma_f32 v[34:35], v[{i}:{i+1}], v[{i}:{i+1}], v[34:35]")
    a("v_add_f32 v34, v34, v35\nv_cndmask_b32 v34, 0, v34, vcc")
    a.rowsum16(34); a.xlane("v_add_f32", 34, 35)
    a(f"""
    v_mov_b32 v35, {hex(f2u(1e-5))}
    v_fmac_f32 v35, {hex(f2u(1/640))}, v34
    v_rsq_f32 v34, v35
    s_waitcnt lgkmcnt(0)
    """)
    for i in range(0, 16, 2):
        a(f"""
        v_pk_mul_f32 v[{16+i}:{17+i}], v[{16+i}:{17+i}], v[34:35] op_sel_hi:[1,0]
        v_pk_add_f32 v[{64+i}:{65+i}], v[{64+i}:{65+i}], 1.0 op_sel_hi:[1,0]
        v_pk_fma_f32 v[{16+i}:{17+i}], v[{16+i}:{17+i}], v[{64+i}:{65+i}], v[{48+i}:{49+i}]
        """)
    order = [0, 4, 1, 5, 2, 6, 3, 7]
    for j, d in enumerate(order): a(f"v_cvt_pk_bf16_f32 v{8+j}, v{16+2*d}, v{17+2*d}")
    a(f"""
    v_lshlrev_b32 v6, 8, v0
    s_lshl_b32 s26, s{sw}, 4
    s_add_u32 s26, s26, 8192
    v_add_u32 v6, s26, v6
    ds_write_b128 v6, v[8:11]
    ds_write_b128 v6, v[12:15] offset:128
    s_waitcnt lgkmcnt(0)
    s_barrier
    ds_read_b128 v[8:11], v3 offset:8192
    ds_read_b128 v[12:15], v3 offset:16384
    v_lshrrev_b32 v6, 3, v89
    v_lshlrev_b32 v6, 8, v6
    v_and_b32 v7, 7, v89
    v_lshl_add_u32 v6, v7, 4, v6
    s_lshr_b32 s26, s2, 1
    s_mul_i32 s26, s26, 20480
    s_and_b32 s27, s2, 1
    s_lshl_b32 s27, s27, 7
    s_add_u32 s26, s26, s27
    s_add_u32 s26, s26, {WS_H}
    s_add_u32 s27, s26, 16384
    s_waitcnt lgkmcnt(0)
    buffer_store_dwordx4 v[8:11], v6, {WS}, s26 offen sc1
    s_cmp_ge_u32 s{sw}, 2
    s_cbranch_scc1 LL_ns
    buffer_store_dwordx4 v[12:15], v6, {WS}, s27 offen sc1
    LL_ns:
    """)
    m.lines += a.lines

LDS_M1 = 81920 + 5120
def gen_mlp1(name):
    a = A()
    X = 16
    ACC = 96
    XF = 144
    T = 176
    a("s_cmp_ge_u32 s2, 256\ns_cbranch_scc1 LA_end"); a.st(0)
    a.srd(4, KA['ws'], WS_SIZE); a.srd(8, KA['b1'], 3072)
    a(f"""
    v_lshrrev_b32 v1, 6, v0
    v_and_b32 v2, 63, v0
    v_readfirstlane_b32 s16, v1
    v_lshlrev_b32 v3, 4, v2
    v_lshlrev_b32 v4, 4, v0
    s_and_b32 s17, s2, 7
    s_lshl_b32 s17, s17, 2
    s_bfe_u32 s18, s2, 0x20003
    s_add_u32 s17, s17, s18
    s_lshr_b32 s18, s2, 5
    s_lshl_b32 s19, s17, 2
    s_add_u32 s19, s19, s16
    s_mul_i32 s20, s19, 20480
    s_add_u32 s20, s20, {WS_X1}
    s_lshl_b32 s21, s18, 2
    s_add_u32 s21, s21, s16
    s_mul_i32 s21, s21, 3
    s_mul_i32 s22, s21, 20480
    s_add_u32 s22, s22, {WS_W1F}
    s_mov_b32 s23, {WS_MOD + 3*2560}
    s_add_u32 s28, s23, 4096
    s_waitcnt lgkmcnt(0)
    buffer_load_dwordx4 v[8:11], v4, {WS}, s23 offen
    buffer_load_dwordx4 v[12:15], v3, {WS}, s28 offen
    """)
    for k in range(20):
        a(f"buffer_load_dwordx4 v[{X+4*k}:{X+4*k+3}], v3, {WS}, s20 offen offset:{(k%4)*1024}")
        if k % 4 == 3: a("s_add_u32 s20, s20, 4096")
    a("s_add_u32 s29, s22, 20480\ns_add_u32 s30, s29, 20480")
    def ldB(k):
        for n, s in enumerate((22, 29, 30)):
            r = 12*k + 4*n
            a(f"buffer_load_dwordx4 a[{r}:{r+3}], v3, {WS}, s{s} offen offset:{(k%4)*1024}")
        if k % 4 == 3: a("s_add_u32 s22, s22, 4096\ns_add_u32 s29, s29, 4096\ns_add_u32 s30, s30, 4096")
    for k in range(13): ldB(k)
    a(f"""
    s_waitcnt vmcnt(59)
    v_add_u32 v5, 81920, v4
    v_add_u32 v6, {81920+4096}, v3
    ds_write_b128 v5, v[8:11]
    ds_write_b128 v6, v[12:15]
    s_waitcnt vmcnt(39)
    """)
    a.st(1)
    for k in range(13, 20): ldB(k)
    a(f"""
    v_lshrrev_b32 v7, 4, v2
    v_lshlrev_b32 v8, 3, v7
    s_lshl_b32 s31, s21, 5
    """)
    for n in range(3): a(f"buffer_load_dwordx2 v[{10+2*n}:{11+2*n}], v8, {SA}, s31 offen offset:{n*32}")
    a(f"v_mov_b32 v{T}, 0\nv_mov_b32 v{T+1}, 0")
    for i in range(80):
        a(f"""
        v_lshlrev_b32 v{T+2}, 16, v{X+i}
        v_and_b32 v{T+3}, 0xffff0000, v{X+i}
        v_pk_add_f32 v[{T}:{T+1}], v[{T}:{T+1}], v[{T+2}:{T+3}]
        """)
    a(f"v_add_f32 v{T}, v{T}, v{T+1}")
    a.xlane("v_add_f32", T, T+1)
    a(f"v_mul_f32 v{T}, {hex(f2u(1/640))}, v{T}\nv_mov_b32 v{T+4}, 0\nv_mov_b32 v{T+5}, 0")
    for i in range(80):
        a(f"""
        v_lshlrev_b32 v{T+2}, 16, v{X+i}
        v_and_b32 v{T+3}, 0xffff0000, v{X+i}
        v_pk_add_f32 v[{T+2}:{T+3}], v[{T+2}:{T+3}], v[{T}:{T+1}] op_sel_hi:[1,0] neg_lo:[0,1] neg_hi:[0,1]
        v_pk_fma_f32 v[{T+4}:{T+5}], v[{T+2}:{T+3}], v[{T+2}:{T+3}], v[{T+4}:{T+5}]
        """)
    a(f"v_add_f32 v{T+4}, v{T+4}, v{T+5}")
    a.xlane("v_add_f32", T+4, T+5)
    a(f"""
    v_mov_b32 v{T+5}, {hex(f2u(1e-5))}
    v_fmac_f32 v{T+5}, {hex(f2u(1/640))}, v{T+4}
    v_rsq_f32 v{T+4}, v{T+5}
    s_waitcnt lgkmcnt(0)
    s_barrier
    v_lshlrev_b32 v9, 5, v7
    v_add_u32 v9, 81920, v9
    s_mul_i32 s31, s16, 20480
    v_add_u32 v5, s31, v3
    """)
    P = T + 8
    def rdP(k):
        p = P + 16*(k % 2)
        a(f"""
        ds_read_b128 v[{p}:{p+3}], v9 offset:{k*128}
        ds_read_b128 v[{p+4}:{p+7}], v9 offset:{k*128+16}
        ds_read_b128 v[{p+8}:{p+11}], v9 offset:{2560+k*128}
        ds_read_b128 v[{p+12}:{p+15}], v9 offset:{2560+k*128+16}
        """)
    rdP(0)
    for k in range(20):
        if k < 19: rdP(k+1)
        a(f"s_waitcnt lgkmcnt({4 if k < 19 else 0})")
        p = P + 16*(k % 2)
        for j in range(4):
            x = X + 4*k + j
            a(f"""
            v_lshlrev_b32 v{T+2}, 16, v{x}
            v_and_b32 v{T+3}, 0xffff0000, v{x}
            v_pk_add_f32 v[{T+2}:{T+3}], v[{T+2}:{T+3}], v[{T}:{T+1}] op_sel_hi:[1,0] neg_lo:[0,1] neg_hi:[0,1]
            v_pk_mul_f32 v[{T+2}:{T+3}], v[{T+2}:{T+3}], v[{T+4}:{T+5}] op_sel_hi:[1,0]
            v_pk_add_f32 v[{p+2*j}:{p+2*j+1}], v[{p+2*j}:{p+2*j+1}], v[{T+2}:{T+3}]
            v_pk_fma_f32 v[{T+2}:{T+3}], v[{T+2}:{T+3}], v[{p+8+2*j}:{p+9+2*j}], v[{p+2*j}:{p+2*j+1}]
            v_cvt_pk_bf16_f32 v{x}, v{T+2}, v{T+3}
            """)
    for k in range(20): a(f"ds_write_b128 v5, v[{X+4*k}:{X+4*k+3}] offset:{k*1024}")
    a("v_add_u32 v6, 40960, v3\ns_waitcnt lgkmcnt(0)\ns_barrier")
    def rdA(k):
        for tt in range(4):
            r = XF + 16*(k % 2) + 4*tt
            a(f"ds_read_b128 v[{r}:{r+3}], v{3 if tt < 2 else 6} offset:{(tt%2)*20480 + k*1024}")
    a.st(2)
    a("s_waitcnt vmcnt(0)")
    a.st(3)
    if TRACE: a("s_waitcnt lgkmcnt(0)")
    rdA(0)
    for k in range(20):
        if k < 19: rdA(k+1)
        a(f"s_waitcnt lgkmcnt({4 if k < 19 else 0})")
        for n in range(3):
            for tt in range(4):
                d = ACC + 16*n + 4*tt; r = XF + 16*(k % 2) + 4*tt; b = 12*k + 4*n
                a(f"v_mfma_f32_16x16x32_bf16 v[{d}:{d+3}], a[{b}:{b+3}], v[{r}:{r+3}], " + (f"v[{d}:{d+3}]" if k else "0"))
    a.st(4)
    K1 = 2*math.sqrt(2/math.pi)*LOG2E
    a(f"""
    s_mov_b32 s32, {hex(f2u(-K1*0.044715))}
    s_mov_b32 s33, s32
    v_mov_b32 v{T+6}, {hex(f2u(-K1))}
    v_mov_b32 v{T+7}, v{T+6}
    s_mul_i32 s20, s17, {4*49152}
    s_add_u32 s20, s20, {WS_HID}
    """)
    for n in range(3):
        a(f"""
        v_lshlrev_b32 v{P}, 16, v{10+2*n}
        v_and_b32 v{P+1}, 0xffff0000, v{10+2*n}
        v_lshlrev_b32 v{P+2}, 16, v{11+2*n}
        v_and_b32 v{P+3}, 0xffff0000, v{11+2*n}
        s_add_u32 s34, s21, {n}
        s_lshr_b32 s35, s34, 1
        s_lshl_b32 s35, s35, 10
        s_and_b32 s34, s34, 1
        s_lshl_b32 s34, s34, 3
        s_add_u32 s35, s35, s34
        s_add_u32 s35, s35, s20
        """)
        for tt in range(4):
            d = ACC + 16*n + 4*tt
            for h in (0, 2):
                a(f"""
                v_pk_add_f32 v[{d+h}:{d+h+1}], v[{d+h}:{d+h+1}], v[{P+h}:{P+h+1}]
                v_pk_mul_f32 v[{T}:{T+1}], v[{d+h}:{d+h+1}], v[{d+h}:{d+h+1}]
                v_pk_fma_f32 v[{T}:{T+1}], v[{T}:{T+1}], s[32:33], v[{T+6}:{T+7}]
                v_pk_mul_f32 v[{T}:{T+1}], v[{T}:{T+1}], v[{d+h}:{d+h+1}]
                v_exp_f32 v{T}, v{T}
                v_exp_f32 v{T+1}, v{T+1}
                s_nop 0
                v_pk_add_f32 v[{T}:{T+1}], v[{T}:{T+1}], 1.0 op_sel_hi:[1,0]
                v_rcp_f32 v{T}, v{T}
                v_rcp_f32 v{T+1}, v{T+1}
                s_nop 0
                v_pk_mul_f32 v[{d+h}:{d+h+1}], v[{d+h}:{d+h+1}], v[{T}:{T+1}]
                """)
            a(f"""
            v_cvt_pk_bf16_f32 v{d}, v{d}, v{d+1}
            v_cvt_pk_bf16_f32 v{d+1}, v{d+2}, v{d+3}
            buffer_store_dwordx2 v[{d}:{d+1}], v3, {WS}, s35 offen
            """)
            if tt < 3: a("s_add_u32 s35, s35, 49152")
    a.st(5)
    a("s_waitcnt vmcnt(0)")
    a.st(6); a.stdump(7, 0)
    a("LA_end:\ns_endpgm")
    return kernel_head(name) + a.text(), kernel_desc(name, 496, 96, 256)

LDS_M2 = 81920
def gen_mlp2(name):
    a = A()
    ACC = 16
    NB = 6
    a("s_cmp_ge_u32 s2, 256\ns_cbranch_scc1 LB_end"); a.st(0)
    a.srd(4, KA['ws'], WS_SIZE); a.srd(8, KA['b2'], 1280); a.srd(12, KA['out'], 2048*1280)
    a(f"""
    v_lshrrev_b32 v1, 6, v0
    v_and_b32 v2, 63, v0
    v_readfirstlane_b32 s16, v1
    v_lshlrev_b32 v3, 4, v2
    s_and_b32 s17, s2, 7
    s_lshl_b32 s17, s17, 2
    s_bfe_u32 s18, s2, 0x20003
    s_add_u32 s17, s17, s18
    s_lshr_b32 s18, s2, 5
    s_mul_i32 s19, s16, 12288
    s_mul_i32 s20, s17, {4*49152}
    s_add_u32 s20, s20, s19
    s_add_u32 s28, s20, {WS_HID}
    s_mul_i32 s20, s18, {5*49152}
    s_add_u32 s20, s20, s19
    s_add_u32 s32, s20, {WS_W2F}
    """)
    for i in range(1, 4): a(f"s_add_u32 s{28+i}, s{27+i}, 49152")
    for i in range(1, 5): a(f"s_add_u32 s{32+i}, s{31+i}, 49152")
    a("s_waitcnt lgkmcnt(0)")
    def ld(k):
        for j in range(9):
            r = 36*(k % NB) + 4*j
            a(f"buffer_load_dwordx4 a[{r}:{r+3}], v3, {WS}, s{28+j} offen offset:{(k%4)*1024}")
        if k % 4 == 3:
            for j in range(9): a(f"s_add_u32 s{28+j}, s{28+j}, 4096")
    for k in range(NB): ld(k)
    for i in range(5):
        b = 96 + 4*i
        a(f"""
        v_add_u32 v4, {256*i}, v0
        v_mul_u32_u24 v5, 3277, v4
        v_lshrrev_b32 v5, 16, v5
        v_mul_u32_u24 v6, 20, v5
        v_sub_u32 v6, v4, v6
        v_lshrrev_b32 v7, 4, v5
        v_and_b32 v8, 15, v5
        v_mul_u32_u24 v9, 5120, v7
        v_lshl_add_u32 v9, v6, 8, v9
        v_lshl_add_u32 v{b}, v8, 4, v9
        s_mul_i32 s20, s18, 20
        v_add_u32 v6, s20, v6
        v_lshlrev_b32 v{b+3}, 3, v6
        s_lshl_b32 s20, s17, 6
        v_add_u32 v9, s20, v5
        v_mul_u32_u24 v9, 1280, v9
        v_add_u32 v{b+2}, v9, v{b+3}
        v_mul_u32_u24 v9, 20480, v7
        v_lshl_add_u32 v9, v8, 4, v9
        v_lshrrev_b32 v10, 1, v6
        v_lshl_add_u32 v9, v10, 8, v9
        v_and_b32 v10, 1, v6
        v_lshl_add_u32 v{b+1}, v10, 3, v9
        """)
    for k in range(12):
        rem = min(NB - 1, 11 - k)
        if k == 0: a.st(1)
        a(f"s_waitcnt vmcnt({9*rem})")
        if k == 0: a.st(2)
        if k == 6: a.st(3)
        r0 = 36*(k % NB)
        for tt in range(4):
            for n in range(5):
                d = ACC + 20*tt + 4*n
                a(f"v_mfma_f32_16x16x32_bf16 v[{d}:{d+3}], a[{r0+16+4*n}:{r0+19+4*n}], a[{r0+4*tt}:{r0+4*tt+3}], " + (f"v[{d}:{d+3}]" if k else "0"))
        if k + NB < 12: ld(k + NB)
    a.st(4)
    a(f"""
    s_mul_i32 s20, s17, {4*20480}
    s_add_u32 s20, s20, {WS_X1}
    s_mov_b32 s21, {WS_MOD + 5*2560}
    """)
    for i in range(5):
        b = 96 + 4*i; e = 116 + 8*i
        a(f"""
        buffer_load_dwordx2 v[{e}:{e+1}], v{b+1}, {WS}, s20 offen
        buffer_load_dwordx2 v[{e+2}:{e+3}], v{b+3}, {SA}, 0 offen
        v_lshlrev_b32 v4, 1, v{b+3}
        buffer_load_dwordx4 v[{e+4}:{e+7}], v4, {WS}, s21 offen
        """)
    a("s_mul_i32 s22, s16, 20480\nv_add_u32 v5, s22, v3")
    for j in range(20): a(f"ds_write_b128 v5, v[{ACC+4*j}:{ACC+4*j+3}] offset:{j*1024}")
    a("s_waitcnt lgkmcnt(0)\ns_barrier")
    for i in range(5):
        for w in range(4):
            r = ACC + 16*i + 4*w
            a(f"ds_read_b128 v[{r}:{r+3}], v{96+4*i} offset:{w*20480}")
        if i == 2: a("s_waitcnt lgkmcnt(4)")
    a("s_waitcnt vmcnt(0) lgkmcnt(0)")
    for i in range(5):
        r = ACC + 16*i; e = 116 + 8*i
        for h in (0, 2):
            a(f"""
            v_pk_add_f32 v[{r+h}:{r+h+1}], v[{r+h}:{r+h+1}], v[{r+4+h}:{r+5+h}]
            v_pk_add_f32 v[{r+8+h}:{r+9+h}], v[{r+8+h}:{r+9+h}], v[{r+12+h}:{r+13+h}]
            v_lshlrev_b32 v4, 16, v{e+2+h//2}
            v_and_b32 v5, 0xffff0000, v{e+2+h//2}
            v_pk_add_f32 v[{r+h}:{r+h+1}], v[{r+h}:{r+h+1}], v[{r+8+h}:{r+9+h}]
            v_lshlrev_b32 v6, 16, v{e+h//2}
            v_and_b32 v7, 0xffff0000, v{e+h//2}
            v_pk_add_f32 v[{r+h}:{r+h+1}], v[{r+h}:{r+h+1}], v[4:5]
            v_pk_fma_f32 v[{r+h}:{r+h+1}], v[{r+h}:{r+h+1}], v[{e+4+h}:{e+5+h}], v[6:7]
            """)
        a(f"""
        v_cvt_pk_bf16_f32 v{r}, v{r}, v{r+1}
        v_cvt_pk_bf16_f32 v{r+1}, v{r+2}, v{r+3}
        buffer_store_dwordx2 v[{r}:{r+1}], v{96+4*i+2}, {SB}, 0 offen
        """)
    a.st(5)
    a("s_waitcnt vmcnt(0)")
    a.st(6); a.stdump(7, 65536)
    a("LB_end:\ns_endpgm")
    return kernel_head(name) + a.text(), kernel_desc(name, 160 + 216, 96, 160)
```

```python
import math, struct
from asmlib import *
from layout import *
import gen_aux

def f2u(f): return struct.unpack('<I', struct.pack('<f', f))[0]
CSC = f2u(192 ** -0.5 * math.log2(math.e))
NEGBIG = f2u(-1e9 / (192 ** -0.5))
BIG = 1 << 20

S_WAVE, S_X, S_C, S_MODE, S_S = 16, 17, 18, 19, 20
S_CNT, S_LIM = 37, 38
WS = "s[4:7]"; SA = "s[8:11]"; SB = "s[12:15]"

def NT(x): return ' nt' if x else ''
class Cfg:
    dbg = 0
    trace = 0
    fake_xcc = 0
    tokpath = 1
    nomfma = 0
    slQW = 4; slQC = 10; slQD = 8; slO = 1; slQ3 = 5
    n1 = 6; nA = 16; wA = 0
    depthG = 2; depthL1 = 3; depthM = 3; depthN = 3
    nG = 1; posG = 2; early = 0; lgN = 8; chkN = 5; dG = 0
    nL1 = 1; padL1 = 0
    nM = 1; dM = 14; pace = 0; nowr = 0; nold = 0; ntQ = 0; ntO = 0; ntV = 0; rotV = 1; dtrace = 0; tail = 1; fuse_ln = 1; warm = 1; ntW = 0; ntP = 0; prewarm = 0; precode = 1; light = 0; ptrace = 0; g2M = 25; g2L = 0; all12 = 1; dN1 = 16

def gen_main(cfg, name):
    a = Asm()
    slow = []
    ool = []

    def nop(n):
        while n > 0:
            k = min(n, 16); a(f"s_nop {k-1}"); n -= k

    def lstore(instrs):
        if isinstance(instrs, str): instrs = [instrs]
        ls, lb = a.label('slow'), a.label('back')
        a(f"s_cmp_lg_u32 s{S_MODE}, 0\ns_cbranch_scc1 {ls}")
        for i in instrs: a(i)
        a(lb + ":")
        slow.append((ls, lb, [(i[:-3] + " sc1 nt" if i.endswith(" nt") else i + " sc1") for i in instrs]))

    def timeout(done):
        a(f"s_sub_u32 s{S_CNT}, s{S_CNT}, 1\ns_cbranch_scc1 {done}")

    def after_wait():
        a(f"s_cmp_lt_i32 s{S_CNT}, 0\ns_cselect_b32 s{S_LIM}, 4, s{S_LIM}")

    def scout(vs, voff, soff, imm=0):
        lp, dn = a.label('sc'), a.label('scd')
        a(f"""
        v_mov_b32 v{vs}, -1
        s_mov_b64 exec, 1
        s_mov_b32 s{S_CNT}, s{S_LIM}
        {lp}:
        buffer_load_dword v{vs}, v{voff}, {WS}, s{soff} offen offset:{imm} sc1
        """)
        timeout(dn)
        a(f"""
        s_waitcnt vmcnt(1)
        v_cmp_eq_u32 vcc, -1, v{vs}
        s_cbranch_vccnz {lp}
        {dn}:
        s_mov_b64 exec, -1
        """)

    def nscout(vs, voff, sneed, sexec):
        lp, dn = a.label('ns'), a.label('nsd')
        a(f"""
        v_mov_b32 v{vs}, 0
        s_mov_b64 exec, s[{sexec}:{sexec+1}]
        s_mov_b32 s{S_CNT}, s{S_LIM}
        {lp}:
        buffer_load_dword v{vs}, v{voff}, {WS}, 0 offen sc1
        """)
        timeout(dn)
        a(f"""
        s_waitcnt vmcnt({cfg.depthN-1})
        v_cmp_gt_u32 vcc, s{sneed}, v{vs}
        s_cbranch_vccnz {lp}
        {dn}:
        s_mov_b64 exec, -1
        """)

    def lds_wait(vaddr, off, nflags, vtmp, sneed, extra=None, sleep=0):
        lp, dn, st = a.label('lw'), a.label('lwd'), a.label('lws')
        a(f"s_mov_b32 s{S_CNT}, s{S_LIM}")
        if sleep: a(f"s_branch {st}\n{lp}:\ns_sleep {sleep}\n{st}:")
        else: a(f"{lp}:")
        if nflags == 1: a(f"ds_read_b32 v{vtmp}, v{vaddr} offset:{off}")
        elif nflags == 2: a(f"ds_read_b64 v[{vtmp}:{vtmp+1}], v{vaddr} offset:{off}")
        else: a(f"ds_read_b128 v[{vtmp}:{vtmp+3}], v{vaddr} offset:{off}")
        ne = extra() if extra else 0
        timeout(dn)
        a(f"s_waitcnt lgkmcnt({ne})")
        if nflags == 2:
            a(f"v_min_u32 v{vtmp}, v{vtmp}, v{vtmp+1}")
        if nflags == 4:
            a(f"v_min3_u32 v{vtmp}, v{vtmp}, v{vtmp+1}, v{vtmp+2}\nv_min_u32 v{vtmp}, v{vtmp}, v{vtmp+3}")
        a(f"v_cmp_gt_u32 vcc, s{sneed}, v{vtmp}\ns_cbranch_vccnz {lp}\n{dn}:")

    def gather(loads, vchk, compute=None, depth=2, shadow=None, young=0, rsleep=0):
        rt, lp, ex, dn = a.label('gr'), a.label('g'), a.label('gx'), a.label('gd')
        n = len(loads)
        def issue(o):
            for (d, vo, so, im) in loads:
                o(f"buffer_load_dwordx4 v[{d}:{d+3}], v{vo}, {WS}, s{so} offen offset:{im} sc1")
        def chk(o, i):
            d = loads[i][0]
            if i == 0:
                o(f"v_max3_u32 v{vchk}, v{d}, v{d+1}, v{d+2}\nv_max_u32 v{vchk}, v{vchk}, v{d+3}")
            else:
                o(f"v_max3_u32 v{vchk}, v{vchk}, v{d}, v{d+1}\nv_max3_u32 v{vchk}, v{vchk}, v{d+2}, v{d+3}")
        issue(a)
        if shadow: shadow()
        for i in range(n):
            a(f"s_waitcnt vmcnt({n-1-i+young})")
            chk(a, i)
            if compute: compute(a, i)
        a(f"v_cmp_eq_u32 vcc, -1, v{vchk}\ns_cbranch_vccnz {rt}\n{dn}:")
        o = Asm(); o.uid = a.uid + 1000
        o(f"{rt}:\ns_mov_b32 s{S_CNT}, s{S_LIM}\n{lp}:\ns_mov_b64 exec, vcc")
        if rsleep: o(f"s_sleep {rsleep}")
        issue(o)
        o(f"s_sub_u32 s{S_CNT}, s{S_CNT}, 1\ns_cbranch_scc1 {ex}\ns_waitcnt vmcnt({n*(depth-1)})")
        for i in range(n): chk(o, i)
        o(f"v_cmp_eq_u32 vcc, -1, v{vchk}\ns_cbranch_vccnz {lp}\n{ex}:\ns_mov_b64 exec, -1")
        o(f"s_cmp_lt_i32 s{S_CNT}, 0\ns_cselect_b32 s{S_LIM}, 4, s{S_LIM}")
        if compute:
            for i in range(n): compute(o, i)
            o("s_nop 1")
        o(f"s_branch {dn}")
        ool.append(o)

    def gather2(loads, vchk, compute=None, shadow=None, pad=0):
        lp, dn = a.label('g2'), a.label('g2d')
        n = len(loads)
        def issue():
            for (d, vo, so, im) in loads:
                a(f"buffer_load_dwordx4 v[{d}:{d+3}], v{vo}, {WS}, s{so} offen offset:{im} sc1")
        issue()
        if shadow: shadow()
        nop(pad)
        a(f"s_mov_b32 s{S_CNT}, s{S_LIM}\n{lp}:")
        issue()
        timeout(dn)
        for i in range(n):
            d = loads[i][0]
            a(f"s_waitcnt vmcnt({2*n-1-i})")
            if i == 0: a(f"v_max3_u32 v{vchk}, v{d}, v{d+1}, v{d+2}\nv_max_u32 v{vchk}, v{vchk}, v{d+3}")
            else: a(f"v_max3_u32 v{vchk}, v{vchk}, v{d}, v{d+1}\nv_max3_u32 v{vchk}, v{vchk}, v{d+2}, v{d+3}")
            if compute: compute(a, i)
        a(f"v_cmp_eq_u32 vcc, -1, v{vchk}\ns_cbranch_vccnz {lp}\n{dn}:")

    def gather_blind(loads, vchk, compute, depth, pad=0):
        lp, ex = a.label('gb'), a.label('gbx')
        n = len(loads)
        for (d, vo, so, im) in loads:
            for j in range(4): a(f"v_mov_b32 v{d+j}, -1")
        a(f"s_mov_b32 s{S_CNT}, s{S_LIM}\ns_mov_b64 vcc, -1\n{lp}:\ns_mov_b64 exec, vcc")
        for (d, vo, so, im) in loads:
            a(f"buffer_load_dwordx4 v[{d}:{d+3}], v{vo}, {WS}, s{so} offen offset:{im} sc1")
        a(f"s_sub_u32 s{S_CNT}, s{S_CNT}, 1\ns_cbranch_scc1 {ex}")
        if pad: nop(pad)
        a(f"s_waitcnt vmcnt({min(63, n*(depth-1))})")
        for i in range(n):
            d = loads[i][0]
            if i == 0: a(f"v_max3_u32 v{vchk}, v{d}, v{d+1}, v{d+2}\nv_max_u32 v{vchk}, v{vchk}, v{d+3}")
            else: a(f"v_max3_u32 v{vchk}, v{vchk}, v{d}, v{d+1}\nv_max3_u32 v{vchk}, v{vchk}, v{d+2}, v{d+3}")
        a(f"v_cmp_eq_u32 vcc, -1, v{vchk}\ns_cbranch_vccnz {lp}\n{ex}:\ns_mov_b64 exec, -1")
        for i in range(n): compute(a, i)
        a("s_nop 1")

    def wait_flags(vtmp, voff, sneed):
        lp, dn = a.label('f'), a.label('fd')
        a(f"""
        s_mov_b32 s{S_CNT}, s{S_LIM}
        {lp}:
        buffer_load_dword v{vtmp}, v{voff}, {WS}, 0 offen sc1
        s_waitcnt vmcnt(0)
        v_cmp_gt_u32 vcc, s{sneed}, v{vtmp}
        s_cbranch_vccz {dn}
        """)
        timeout(dn)
        a(f"s_sleep 1\ns_branch {lp}\n{dn}:")
        after_wait()

    def set_h(wave):
        sk = a.label('nohf')
        a(f"""
        s_cmp_lg_u32 s{S_WAVE}, {wave}
        s_cbranch_scc1 {sk}
        s_cmp_ge_u32 s2, 16
        s_cbranch_scc1 {sk}
        s_lshl_b32 s21, s2, 7
        s_add_u32 s21, s21, {FLH}
        v_mov_b32 v90, 0
        v_mov_b32 v91, 1
        s_mov_b64 exec, 1
        buffer_store_dword v91, v90, {WS}, s21 offen sc1
        s_mov_b64 exec, -1
        {sk}:
        """)
    def wait_h():
        if not cfg.fuse_ln: return
        a(f"""
        v_lshlrev_b32 v16, 7, v2
        v_add_u32 v16, {FLH}, v16
        s_mov_b32 s21, 1
        """)
        wait_flags(17, 16, 21)

    def srd(dst, karg, size):
        a(f"""
        s_load_dwordx2 s[{dst}:{dst+1}], s[0:1], {karg}
        s_mov_b32 s{dst+2}, {size}
        s_mov_b32 s{dst+3}, 0x20000
        s_waitcnt lgkmcnt(0)
        """)

    def mfma32(d, x, y, c, a=a): a(f"v_mfma_f32_16x16x32_bf16 v[{d}:{d+3}], v[{x}:{x+3}], v[{y}:{y+3}], " + (f"v[{c}:{c+3}]" if c is not None else "0"))
    def mfma16(d, x, y, c, a=a): a(f"v_mfma_f32_16x16x16_bf16 v[{d}:{d+3}], v[{x}:{x+1}], v[{y}:{y+1}], " + (f"v[{c}:{c+3}]" if c is not None else "0"))
    def cvt(d, x, y): a(f"v_cvt_pk_bf16_f32 v{d}, v{x}, v{y}")
    def san(d): a(f"v_min_u32 v{d}, -2, v{d}")

    def lanes():
        a("""
        v_lshrrev_b32 v1, 4, v0
        v_and_b32 v2, 15, v0
        v_and_b32 v3, 7, v0
        v_bfe_u32 v4, v0, 3, 1
        v_lshlrev_b32 v5, 4, v0
        """)

    def build_sel(vall, vA=None, vLo=None, vHi=None, t0=6, t1=7):
        a(f"""
        v_and_b32 v{t0}, 1, v0
        v_lshlrev_b32 v{t0}, 4, v{t0}
        v_mov_b32 v{t1}, 0x3f80
        v_lshlrev_b32 v{t0}, v{t0}, v{t1}
        v_lshrrev_b32 v{t1}, 1, v3
        """)
        for j in range(4):
            a(f"v_cmp_eq_u32 vcc, {j}, v{t1}\ns_nop 1\nv_cndmask_b32 v{vall+j}, 0, v{t0}, vcc")
        if vA is not None:
            a(f"v_and_b32 v{t0}, 1, v1\nv_cmp_eq_u32 vcc, v{t0}, v4\ns_nop 1")
            for j in range(4): a(f"v_cndmask_b32 v{vA+j}, 0, v{vall+j}, vcc")
        if vLo is not None:
            a(f"v_cmp_gt_u32 vcc, 2, v1\ns_nop 1")
            for j in range(4): a(f"v_cndmask_b32 v{vLo+j}, 0, v{vA+j}, vcc")
            a(f"v_cmp_le_u32 vcc, 2, v1\ns_nop 1")
            for j in range(4): a(f"v_cndmask_b32 v{vHi+j}, 0, v{vA+j}, vcc")

    def build_selm(vM, t0=6, t1=7):
        a(f"""
        v_and_b32 v{t0}, 1, v0
        v_lshlrev_b32 v{t0}, 4, v{t0}
        v_mov_b32 v{t1}, 0x3f80
        v_lshlrev_b32 v{t0}, v{t0}, v{t1}
        v_bfe_u32 v{t1}, v0, 1, 3
        """)
        for j in range(4):
            a(f"v_cmp_eq_u32 vcc, {2*j}, v{t1}\ns_nop 1\nv_cndmask_b32 v{vM+j}, 0, v{t0}, vcc")

    def xlane(op, v, t):
        a(f"""
        v_mov_b32 v{t}, v{v}
        s_nop 1
        v_permlane32_swap_b32 v{t}, v{v}
        {op} v{v}, v{v}, v{t}
        v_mov_b32 v{t}, v{v}
        s_nop 1
        v_permlane16_swap_b32 v{t}, v{v}
        {op} v{v}, v{v}, v{t}
        """)

    def read_mode():
        a(f"""
        v_mov_b32 v6, {LDS_MISC}
        ds_read_b32 v6, v6 offset:8
        s_waitcnt lgkmcnt(0)
        v_readfirstlane_b32 s{S_MODE}, v6
        """)

    def poll_counters():
        lp, dn = a.label('pc'), a.label('pcd')
        a(f"""
        v_and_b32 v6, 7, v0
        v_lshlrev_b32 v6, 5, v6
        s_mov_b32 s{S_CNT}, s{S_LIM}
        {lp}:
        global_load_dword v7, v6, s[22:23] sc1
        s_waitcnt vmcnt(0)
        """)
        for x in range(8): a(f"v_readlane_b32 s{24+x}, v7, {x}")
        a("s_add_u32 s21, s24, s25")
        for x in range(2, 8): a(f"s_add_u32 s21, s21, s{24+x}")
        a(f"s_cmp_ge_u32 s21, 256\ns_cbranch_scc1 {dn}")
        timeout(dn)
        a(f"s_sleep 2\ns_branch {lp}\n{dn}:")

    def mode_wave():
        poll_counters()
        a("s_mov_b32 s21, 0")
        for x in range(8):
            a(f"s_cmp_lg_u32 s{24+x}, 32\ns_cselect_b32 s21, 1, s21")
        a(f"""
        v_mov_b32 v6, {LDS_MISC}
        v_mov_b32 v7, s21
        ds_write_b32 v6, v7 offset:8
        s_waitcnt lgkmcnt(0)
        """)

    def stamp(e):
        if cfg.trace: a(f"s_memrealtime s[{70+2*e}:{71+2*e}]")
    def stampc(e):
        if cfg.trace: a(f"s_memtime s[{70+2*e}:{71+2*e}]")
    def stamp_commit(evs, vbase):
        if cfg.trace:
            a(f"s_waitcnt lgkmcnt(0)\ns_mov_b32 m0, s{S_S}\ns_nop 0")
            for e in evs: a(f"v_writelane_b32 v{vbase+e}, s{70+2*e}, m0")
    def stamp_dump(evs, vbase, slot0):
        if cfg.trace:
            a(f"""
            s_lshl_b32 s21, s{S_X}, 5
            s_add_u32 s21, s21, s{S_C}
            s_lshl_b32 s21, s21, 13
            s_add_u32 s21, s21, {WS_DBG + (1<<20)}
            v_lshlrev_b32 v6, 2, v0
            """)
            for e in evs:
                a(f"s_add_u32 s24, s21, {(slot0+e)*256}\nbuffer_store_dword v{vbase+e}, v6, {WS}, s24 offen")
            a("s_waitcnt vmcnt(0)")

    def pstamp(i, wait=True):
        if not cfg.ptrace: return
        a(f"""
        s_memrealtime s[90:91]
        s_lshl_b32 s92, s2, 3
        s_add_u32 s92, s92, s{S_WAVE}
        s_lshl_b32 s92, s92, 7
        s_add_u32 s92, s92, {WS_DBG + (3<<20) + 4*i}
        s_waitcnt lgkmcnt(0)
        v_mov_b32 v6, s90
        v_mov_b32 v7, 0
        buffer_store_dword v6, v7, {WS}, s92 offen
        """)
        if wait: a("s_waitcnt vmcnt(0)")
    def dst(j):
        if cfg.dtrace: a(f"s_memrealtime s[{76+2*j}:{77+2*j}]")
    a(f"""
    s_cmp_ge_u32 s2, 256
    s_cbranch_scc1 LM_end
    s_load_dwordx2 s[4:5], s[0:1], {KA['ws']}
    s_load_dwordx2 s[22:23], s[0:1], {KA['dbg']}
    s_getreg_b32 s{S_X}, hwreg(HW_REG_XCC_ID, 0, 4)
    v_lshrrev_b32 v1, 6, v0
    s_mov_b32 s6, {WS_SIZE}
    v_readfirstlane_b32 s{S_WAVE}, v1
    v_mov_b32 v89, v0
    v_and_b32 v0, 63, v0
    s_mov_b32 s7, 0x20000
    s_and_b32 s{S_X}, s{S_X}, 7
    s_mov_b32 s{S_LIM}, {BIG}
    s_mov_b32 s{S_MODE}, 0
    """)
    if cfg.fake_xcc:
        a(f"s_mul_i32 s{S_X}, s2, 7\ns_lshr_b32 s{S_X}, s{S_X}, 8")
    a(f"""
    s_waitcnt lgkmcnt(0)
    """)
    if cfg.ptrace: a("s_memrealtime s[94:95]")
    dst(0)
    a(f"""
    s_cmp_lg_u32 s{S_WAVE}, 0
    s_cbranch_scc1 LM_notick0
    v_mov_b32 v90, 1
    s_lshl_b32 s21, s{S_X}, 5
    v_mov_b32 v91, s21
    s_mov_b64 exec, 1
    global_atomic_add v92, v91, v90, s[22:23] sc0 sc1
    s_mov_b64 exec, -1
    LM_notick0:
    """)
    def warm(o):
        o(f"""
        s_cmp_lt_u32 s{S_WAVE}, 4
        s_cselect_b32 s29, {KA['Wv']}, {KA['Wo']}
        s_load_dwordx2 s[12:13], s[0:1], s29
        s_mov_b32 s14, {640*12288}
        s_mov_b32 s15, 0x20000
        v_and_b32 v80, 255, v89
        v_min_u32 v80, 239, v80
        v_mul_u32_u24 v81, 5462, v80
        v_lshrrev_b32 v81, 16, v81
        v_mul_u32_u24 v82, {12288 - 12*128}, v81
        s_lshr_b32 s30, s2, 3
        s_cmp_lt_u32 s{S_WAVE}, 4
        s_cbranch_scc1 LM_wv
        v_mov_b32 v82, 0
        s_mul_i32 s30, s30, 30720
        s_mul_i32 s29, s{S_X}, {4*245760}
        s_branch LM_wj
        LM_wv:
        s_mul_i32 s30, s30, {20*12288}
        s_mul_i32 s29, s{S_X}, 1536
        LM_wj:
        s_add_u32 s30, s30, s29
        v_lshl_add_u32 v82, v80, 7, v82
        s_waitcnt lgkmcnt(0)
        s_barrier
        buffer_load_dword v83, v82, s[12:15], s30 offen{NT(cfg.ntW)}
        """)
    if cfg.fuse_ln: gen_aux.ln1_body(a, S_WAVE, warm if cfg.warm else None)
    else: a("s_waitcnt vmcnt(0)")
    a(f"""
    s_cmp_lg_u32 s{S_WAVE}, 0
    s_cbranch_scc1 LM_notick
    v_readfirstlane_b32 s{S_C}, v92
    v_mov_b32 v2, 1
    s_cmp_lt_u32 s{S_C}, 32
    s_cbranch_scc1 LM_haverole
    v_mov_b32 v3, 8
    s_mov_b64 exec, 1
    global_atomic_add v4, v3, v2, s[22:23] sc0 sc1
    s_waitcnt vmcnt(0)
    v_readfirstlane_b32 s32, v4
    s_mov_b64 exec, -1
    """)
    poll_counters()
    a(f"s_mov_b32 s{S_X}, 0\ns_mov_b32 s{S_C}, 0")
    for x in range(8):
        nx = a.label('nx')
        a(f"""
        s_min_u32 s21, s{24+x}, 32
        s_sub_u32 s33, 32, s21
        s_cmp_ge_u32 s32, s33
        s_cbranch_scc1 {nx}
        s_mov_b32 s{S_X}, {x}
        s_add_u32 s{S_C}, s21, s32
        s_branch LM_haverole
        {nx}:
        s_sub_u32 s32, s32, s33
        """)
    a(f"""
    LM_haverole:
    v_mov_b32 v5, {LDS_MISC}
    v_mov_b32 v6, s{S_X}
    v_mov_b32 v7, s{S_C}
    ds_write_b64 v5, v[6:7]
    v_mov_b32 v6, 0
    v_lshl_add_u32 v5, v0, 2, v5
    s_mov_b32 exec_hi, 0
    ds_write_b32 v5, v6 offset:16
    s_mov_b64 exec, -1
    s_waitcnt lgkmcnt(0)
    LM_notick:
    s_barrier
    v_mov_b32 v5, {LDS_MISC}
    ds_read_b64 v[6:7], v5
    s_waitcnt lgkmcnt(0)
    v_readfirstlane_b32 s{S_X}, v6
    v_readfirstlane_b32 s{S_C}, v7
    s_nop 1
    s_and_b32 s{S_X}, s{S_X}, 7
    s_and_b32 s{S_C}, s{S_C}, 31
    """)
    if cfg.ptrace:
        pstamp(1, wait=False)
        a(f"v_mov_b32 v6, s94\ns_sub_u32 s92, s92, 4\nbuffer_store_dword v6, v7, {WS}, s92 offen")
        a(f"v_mov_b32 v6, s{S_C}\ns_add_u32 s92, s92, 60\nbuffer_store_dword v6, v7, {WS}, s92 offen")
    lanes()
    a(f"""
    s_cmp_lt_u32 s{S_C}, 20
    s_cbranch_scc1 LM_VO
    """)

    VW = 96; VA = 56; ACC = 40; VIDX = 39; VG = 24
    V_MG, V_ML, V_TOK, V_CHK, V_SC, V_OUT, V_OUT2, V_DMA = 8, 9, 10, 11, 12, 13, 14, 15
    V_MISC, V_MGL = 38, 37
    F_HO, F_MST, F_L1D, F_GST, F_MW, F_Y, F_TD, F_D2, F_D3, F_GIS = 16, 20, 24, 28, 32, 48, 64, 80, 84, 88
    def w_setup():
        a(f"""
        s_lshl_b32 s21, s{S_WAVE}, 10
        v_add_u32 v{V_MG}, s21, v5
        v_add_u32 v{V_ML}, {LDS_M}, v5
        v_mov_b32 v{VIDX}, 0x4444
        v_mov_b32 v6, 0xeeee
        v_and_b32 v7, 2, v0
        v_cmp_ne_u32 vcc, 0, v7
        s_mul_i32 s21, s{S_WAVE}, 10240
        s_nop 0
        v_cndmask_b32 v{VIDX}, v{VIDX}, v6, vcc
        v_mov_b32 v{V_MISC}, {LDS_MISC}
        v_add_u32 v{V_DMA}, s21, v5
        s_mul_i32 s40, s{S_X}, 10240
        s_add_u32 s40, s40, {WS_MR}
        """)
    def dma_tokens(sseg):
        a(f"""
        s_mul_i32 s24, s{sseg}, 40960
        s_add_u32 s24, s24, {WS_H}
        s_and_b32 s25, s{sseg}, 1
        s_mul_i32 s25, s25, 40960
        s_mul_i32 s26, s{S_WAVE}, 10240
        s_add_u32 s25, s25, s26
        """)
        for blk in range(3):
            a(f"s_add_u32 m0, s25, {LDS_TOK + blk*4096}")
            if blk: a("s_add_u32 s24, s24, 4096")
            else: a("s_nop 0")
            for i in range(4 if blk < 2 else 2):
                a(f"buffer_load_dwordx4 v{V_DMA}, {WS}, s24 offen offset:{i*1024} lds")
    def dma_tokens_all(sseg, lo=0, hi=40960):
        lp = a.label('dma')
        a(f"""
        s_mul_i32 s28, s{sseg}, 40960
        s_add_u32 s28, s28, {WS_H + lo}
        s_and_b32 s29, s{sseg}, 1
        s_mul_i32 s29, s29, 40960
        s_add_u32 s30, s29, {LDS_TOK + hi}
        s_add_u32 s29, s29, {LDS_TOK + lo}
        {lp}:
        s_mov_b32 m0, s29
        s_add_u32 s29, s29, 4096
        """)
        for i in range(4):
            a(f"buffer_load_dwordx4 v5, {WS}, s28 offen offset:{i*1024} lds")
        a(f"""
        s_add_u32 s28, s28, 4096
        s_cmp_lt_u32 s29, s30
        s_cbranch_scc1 {lp}
        """)
    def m_addr():
        a(f"""
        s_and_b32 s21, s{S_S}, 3
        s_mul_i32 s21, s21, {MSLOT}
        s_add_u32 s24, s21, s40
        s_add_u32 s25, s24, 4096
        s_add_u32 s26, s24, 8192
        """)
        for i in range(8): a(f"v_mov_b32 v{ACC+i}, 0")
    def smf(k):
        for t in range(2):
            w = VW + 80*t + 8*k
            a(f"v_smfmac_f32_16x16x64_bf16 v[{ACC+4*t}:{ACC+4*t+3}], v[{VA+4*k}:{VA+4*k+3}], v[{w}:{w+7}], v{VIDX}")
    def halfsum():
        for t in range(2):
            a(f"v_pk_add_f32 v[{ACC+4*t}:{ACC+4*t+1}], v[{ACC+4*t}:{ACC+4*t+1}], v[{ACC+4*t+2}:{ACC+4*t+3}]")
    def token_pass(w_is_A, pause_at=None, pause=None):
        def rd(k):
            for tt in range(2):
                s = VA + 4*((2*k+tt) % 10)
                a(f"ds_read_b128 v[{s}:{s+3}], v{V_TOK} offset:{tt*20480 + k*1024}")
        for k in range(4): rd(k)
        for k in range(20):
            if k == pause_at: pause()
            if k + 4 < 20:
                rd(k+4); a("s_waitcnt lgkmcnt(8)")
            else:
                a(f"s_waitcnt lgkmcnt({2*(19-k)})")
            for tt in range(2):
                s = VA + 4*((2*k+tt) % 10)
                for t in range(2):
                    w = VW + 80*t + 4*k
                    d = ACC + 8*t + 4*tt
                    if cfg.nomfma and k: continue
                    if w_is_A: mfma32(d, w, s, d if k else None)
                    else: mfma32(d, s, w, d if k else None)
        nop(8)
    def tok_base():
        a(f"""
        s_add_u32 s21, s{S_S}, 1
        s_and_b32 s27, s21, 1
        s_mul_i32 s24, s27, 40960
        v_add_u32 v{V_TOK}, s24, v5
        """)

    a(f"""
    s_sub_u32 s21, s{S_C}, 20
    s_mul_i32 s24, s21, 11
    s_lshr_b32 s24, s24, 5
    s_mul_i32 s25, s24, 3
    s_sub_u32 s42, s21, s25
    s_lshl_b32 s41, s{S_X}, 2
    s_add_u32 s41, s41, s24
    """)
    a(f"""
    v_lshrrev_b32 v8, 3, v0
    s_mul_i32 s21, s{S_WAVE}, 80
    v_add_u32 v8, s21, v8
    s_mov_b32 s21, 12288
    v_mul_lo_u32 v8, v8, s21
    s_mul_i32 s24, s41, 384
    s_lshl_b32 s25, s42, 7
    s_add_u32 s24, s24, s25
    v_lshl_add_u32 v8, v3, 4, v8
    v_add_u32 v8, s24, v8
    """)
    a(f"""
    v_lshrrev_b32 v6, 1, v1
    v_lshlrev_b32 v9, 4, v6
    v_and_b32 v6, 1, v1
    v_lshl_add_u32 v9, v6, 2, v9
    v_bfe_u32 v6, v0, 2, 1
    v_add_u32 v9, v9, v6
    v_lshl_add_u32 v9, v4, 3, v9
    v_lshlrev_b32 v9, 7, v9
    v_and_b32 v6, 3, v0
    v_lshl_add_u32 v9, v6, 3, v9
    s_lshl_b32 s21, s{S_WAVE}, 5
    v_add_u32 v9, s21, v9
    v_add_u32 v10, 40960, v9
    """)
    a("s_waitcnt vmcnt(0)\ns_barrier")
    set_h(0)
    for mat, key in enumerate(('Wq', 'Wk')):
        srd(8, KA[key], 640*12288)
        lp = a.label('stg'); sk = a.label('stgs')
        a(f"""
        s_mul_i32 s24, s{S_WAVE}, 10240
        s_mov_b32 s25, 0
        {lp}:
        s_mov_b32 m0, s24
        s_add_u32 s24, s24, 1024
        buffer_load_dwordx4 v8, {SA}, s25 offen{NT(cfg.ntQ)} lds
        s_add_u32 s25, s25, 98304
        s_cmp_lt_u32 s25, {98304*10}
        s_cbranch_scc1 {lp}
        s_waitcnt vmcnt(0)
        s_barrier
        s_cmp_ge_u32 s{S_WAVE}, 4
        s_cbranch_scc1 {sk}
        """)
        for k in range(20):
            for d in range(2):
                r = VW + 80*mat + 4*k + 2*d
                a(f"ds_read_b64_tr_b16 v[{r}:{r+1}], v{9 if k < 10 else 10} offset:{(k % 10)*4096 + d*256}")
        a(f"s_waitcnt lgkmcnt(0)\n{sk}:\ns_barrier")
    a(f"""
    s_cmp_eq_u32 s{S_WAVE}, 4
    s_cbranch_scc1 LQ_C0
    s_cmp_eq_u32 s{S_WAVE}, 5
    s_cbranch_scc1 LQ_C1
    s_cmp_eq_u32 s{S_WAVE}, 6
    s_cbranch_scc1 LQ_C2
    s_cmp_eq_u32 s{S_WAVE}, 7
    s_cbranch_scc1 LQ_C3
    """)
    pstamp(2)
    w_setup()
    wait_h()
    a(f"""
    s_mov_b32 s28, 0
    """)
    dma_tokens(28)
    a("s_mov_b32 s28, 1")
    dma_tokens(28)
    a(f"""
    v_mul_u32_u24 v{V_OUT}, 384, v1
    v_lshl_add_u32 v{V_OUT}, v2, 4, v{V_OUT}
    s_mul_i32 s21, s{S_WAVE}, 1536
    s_add_u32 s21, s21, {LDS_QKM}
    v_add_u32 v{V_OUT}, s21, v{V_OUT}
    s_lshr_b32 s21, s{S_WAVE}, 1
    s_lshl_b32 s21, s21, 11
    s_and_b32 s24, s{S_WAVE}, 1
    s_lshl_b32 s24, s24, 3
    s_add_u32 s21, s21, s24
    s_add_u32 s21, s21, {LDS_QX}
    v_add_u32 v{V_OUT2}, s21, v5
    v_lshrrev_b32 v6, 1, v0
    v_lshlrev_b32 v6, 3, v6
    v_and_b32 v7, 1, v0
    v_add_u32 v6, v6, v7
    s_lshl_b32 s21, s{S_WAVE}, 1
    v_add_u32 v6, s21, v6
    s_lshl_b32 s21, s{S_X}, 5
    s_add_u32 s21, s21, s{S_C}
    s_lshl_b32 s21, s21, 7
    s_add_u32 s21, s21, {WS_NL}
    v_lshlrev_b32 v6, 2, v6
    v_add_u32 v36, s21, v6
    s_cmp_lt_u32 s{S_WAVE}, 2
    s_cselect_b32 s44, 63, 15
    s_mov_b32 s45, 0
    s_waitcnt vmcnt(0)
    s_barrier
    s_mov_b32 s{S_S}, -1
    s_branch LQ_Wtok
    LQ_Wloop:
    """)
    a("s_setprio 2")
    m_addr()
    stamp(4)
    for w in range(1, 4):
        a(f"s_cmp_eq_u32 s{S_WAVE}, {w}\ns_cbranch_scc1 LQ_W{w}")
    for w in range(4):
        own = [w, w+4] + ([w+8] if w < 2 else [])
        a(f"LQ_W{w}:")
        if cfg.nM: nscout(V_SC, 36, S_S, 44)
        else: scout(V_SC, V_MG, 24)
        stamp(3)
        if cfg.g2M: gather2([(VA+4*k, V_MG, 24+i, 0) for i, k in enumerate(own)], V_CHK, pad=cfg.g2M)
        else: gather([(VA+4*k, V_MG, 24+i, 0) for i, k in enumerate(own)], V_CHK, depth=cfg.depthM)
        for k in own: a(f"ds_write_b128 v{V_ML}, v[{VA+4*k}:{VA+4*k+3}] offset:{k*1024}")
        for k in own[:-1]: smf(k)
        a("s_waitcnt lgkmcnt(0)")
        stamp(0)
        a("s_barrier")
        if cfg.trace: a("s_waitcnt lgkmcnt(0)")
        oth = [k for k in range(10) if k not in own]
        for k in oth: a(f"ds_read_b128 v[{VA+4*k}:{VA+4*k+3}], v{V_ML} offset:{k*1024}")
        smf(own[-1])
        for i, k in enumerate(oth):
            a(f"s_waitcnt lgkmcnt({len(oth)-1-i})")
            smf(k)
        if w < 3: a("s_nop 5\ns_branch LQ_Wjoin")
        else: a("s_nop 6")
    a("LQ_Wjoin:")
    halfsum()
    cvt(ACC+8, ACC, ACC+1); cvt(ACC+9, ACC, ACC+1); cvt(ACC+10, ACC+4, ACC+5); cvt(ACC+11, ACC+4, ACC+5)
    a(f"""
    ds_write_b128 v{V_OUT}, v[{ACC+8}:{ACC+11}]
    s_waitcnt lgkmcnt(0)
    s_barrier
    s_setprio 0
    s_waitcnt vmcnt(0)
    """)
    after_wait()
    stamp_commit([0, 1, 2, 3, 4], 16)
    a(f"""
    s_cmp_eq_u32 s{S_S}, 63
    s_cbranch_scc1 LQ_Wend
    s_sleep {cfg.slQW}
    LQ_Wtok:
    """)
    tok_base()
    stampc(1)
    if cfg.trace: a("s_waitcnt lgkmcnt(0)")
    token_pass(True)
    stampc(2)
    a(f"s_lshl_b32 s27, s27, 13\nv_add_u32 v6, s27, v{V_OUT2}")
    for t in range(2):
        for tt in range(2):
            d = ACC + 8*t + 4*tt
            cvt(d, d, d+1); cvt(d+1, d+2, d+3)
            a(f"ds_write_b64 v6, v[{d}:{d+1}] offset:{t*4096 + tt*1024}")
    a(f"""
    s_waitcnt vmcnt(0) lgkmcnt(0)
    s_add_u32 s{S_S}, s{S_S}, 1
    s_branch LQ_Wloop
    LQ_Wend:
    """)
    if cfg.trace:
        a(f"s_cmp_lg_u32 s{S_WAVE}, 0\ns_cbranch_scc1 LM_tail")
        stamp_dump([0, 3, 4], 16, 0); stamp_dump([1, 2], 16, 8)
    a("s_branch LM_tail")

    KX, QM, KM, S0, S1, SM = 16, 32, 40, 48, 52, 56
    V_TR, V_A1, V_A2, V_QXR = 8, 9, 10, 11
    def trbase(v):
        a(f"""
        v_and_b32 v6, 3, v0
        v_mul_u32_u24 v{v}, 384, v6
        v_lshrrev_b32 v6, 2, v0
        v_lshl_add_u32 v{v}, v6, 4, v{v}
        v_add_u32 v{v}, {LDS_QKM}, v{v}
        """)
    a("LQ_C0:\ns_setprio 3")
    trbase(V_TR)
    a(f"""
    v_bfe_u32 v12, v0, 2, 2
    v_and_b32 v6, 1, v0
    v_lshl_add_u32 v12, v12, 1, v6
    v_bfe_u32 v13, v0, 1, 1
    v_lshlrev_b32 v{V_A2}, 4, v12
    s_and_b32 s21, s41, 1
    s_lshl_b32 s21, s21, 7
    v_add_u32 v{V_A2}, s21, v{V_A2}
    v_and_b32 v6, 1, v1
    v_lshl_add_u32 v{V_A1}, v6, 3, v{V_A2}
    v_lshl_add_u32 v{V_A2}, v1, 2, v{V_A2}
    v_lshrrev_b32 v6, 1, v1
    v_lshl_add_u32 v{V_A1}, v6, 8, v{V_A1}
    s_cmp_eq_u32 s42, 2
    s_cselect_b32 s24, 9, 10
    s_lshl_b32 s25, s42, 9
    s_cmp_eq_u32 s42, 2
    s_cselect_b32 s25, 2048, s25
    v_lshlrev_b32 v6, s24, v13
    v_add_u32 v{V_A1}, v{V_A1}, v6
    v_add_u32 v{V_A1}, s25, v{V_A1}
    s_lshl_b32 s25, s42, 8
    s_add_u32 s25, s25, 3072
    v_add_u32 v{V_A2}, s25, v{V_A2}
    s_lshl_b32 s43, s{S_X}, 13
    s_bfe_u32 s21, s41, 0x10001
    s_lshl_b32 s21, s21, 12
    s_add_u32 s43, s43, s21
    s_add_u32 s43, s43, {WS_L1R}
    v_cmp_eq_u32 s[44:45], 1, v13
    v_mov_b32 v60, -1
    v_mov_b32 v61, -1
    s_lshl_b32 s21, s{S_X}, 12
    s_sub_u32 s24, s{S_C}, 20
    s_lshl_b32 s24, s24, 2
    s_add_u32 s21, s21, s24
    s_add_u32 s21, s21, {WS_NL}
    v_lshlrev_b32 v14, 7, v0
    v_add_u32 v14, s21, v14
    v_mov_b32 v6, 0x40000000
    v_cmp_gt_u32 vcc, 20, v0
    s_nop 1
    v_cndmask_b32 v14, v6, v14, vcc
    s_barrier
    """)
    read_mode()
    a(f"""
    s_mov_b32 s{S_S}, 0
    LQ_C0loop:
    s_and_b32 s21, s{S_S}, 1
    s_lshl_b32 s21, s21, 13
    s_add_u32 s21, s21, {LDS_QX + 4096}
    v_add_u32 v{V_QXR}, s21, v5
    s_and_b32 s21, s{S_S}, 3
    s_mul_i32 s24, s21, {L1SLOT}
    s_add_u32 s24, s24, s43
    s_xor_b32 s21, s21, 2
    s_mul_i32 s25, s21, {L1SLOT}
    s_add_u32 s25, s25, s43
    s_add_u32 s21, s{S_S}, 1
    v_mov_b32 v15, s21
    s_barrier
    """)
    for tt in range(2):
        for p in range(2):
            r = KX + 8*tt + 4*p
            a(f"ds_read_b128 v[{r}:{r+3}], v{V_QXR} offset:{p*2048 + tt*1024}")
    a("s_waitcnt vmcnt(0) lgkmcnt(0)")
    if cfg.nL1 == 2:
        nop(cfg.dN1*4)
        lstore(f"buffer_store_dword v15, v14, {WS}, 0 offen")
    a("s_barrier")
    stamp(1)
    if cfg.trace: a("s_waitcnt lgkmcnt(0)")
    for w in range(4): a(f"ds_read_b64_tr_b16 v[{QM+2*w}:{QM+2*w+1}], v{V_TR} offset:{w*1536}")
    for w in range(4): a(f"ds_read_b64_tr_b16 v[{KM+2*w}:{KM+2*w+1}], v{V_TR} offset:{w*1536+8}")
    if cfg.nL1 == 1: lstore(f"buffer_store_dword v15, v14, {WS}, 0 offen")
    a(f"s_waitcnt lgkmcnt(6)")
    mfma32(S0, KX, QM, None); mfma32(S1, KX+8, QM, None)
    a(f"s_waitcnt lgkmcnt(4)")
    mfma32(S0, KX+4, QM+4, S0); mfma32(S1, KX+12, QM+4, S1)
    a(f"s_waitcnt lgkmcnt(2)")
    mfma32(SM, KM, QM, None)
    a("s_waitcnt lgkmcnt(0)")
    mfma32(SM, KM+4, QM+4, SM)
    nop(4)
    cvt(S0, S0, S0+1); cvt(S0+1, S0+2, S0+3); cvt(S1, S1, S1+1); cvt(S1+1, S1+2, S1+3)
    cvt(SM, SM, SM+1)
    for i in range(2): a(f"v_cndmask_b32 v{S0+i}, v{S0+i}, v{S1+i}, s[44:45]")
    san(S0); san(S0+1); san(SM)
    lstore([f"buffer_store_dwordx2 v[{S0}:{S0+1}], v{V_A1}, {WS}, s24 offen",
            f"buffer_store_dword v{SM}, v{V_A2}, {WS}, s24 offen"])
    stamp(2)
    lstore([f"buffer_store_dwordx2 v[60:61], v{V_A1}, {WS}, s25 offen",
            f"buffer_store_dword v60, v{V_A2}, {WS}, s25 offen"])
    stamp_commit([1, 2], 64)
    a(f"""
    s_add_u32 s27, s{S_S}, 2
    s_cmp_gt_u32 s27, 63
    s_cbranch_scc1 LQ_C0nd
    s_sleep {cfg.slQD}
    """)
    if not cfg.nold: dma_tokens_all(27)
    a("LQ_C0nd:")
    if cfg.trace:
        a("s_waitcnt vmcnt(0)")
        stamp(6)
        stamp_commit([6], 64)
    a(f"""
    s_add_u32 s{S_S}, s{S_S}, 1
    s_cmp_lt_u32 s{S_S}, 63
    s_cbranch_scc1 LQ_C0loop
    s_waitcnt vmcnt(0)
    """)
    stamp_dump([1, 2, 6], 64, 0)
    a("s_endpgm")

    QX_, KX_, KM_, T = 16, 32, 48, 56
    a("LQ_C1:")
    if not cfg.tokpath: a("s_barrier\ns_endpgm")
    trbase(V_TR)
    a(f"""
    s_mul_i32 s43, s41, 3
    s_add_u32 s43, s43, s42
    s_lshl_b32 s44, s43, 7
    s_add_u32 s44, s44, {FL1}
    s_mul_i32 s43, s43, 5120
    s_add_u32 s43, s43, {WS_T1R}
    v_mov_b32 v9, 0
    v_lshlrev_b32 v12, 3, v0
    s_barrier
    """)
    read_mode()
    a(f"""
    s_mov_b32 s{S_S}, 0
    LQ_C1loop:
    s_and_b32 s21, s{S_S}, 1
    s_lshl_b32 s21, s21, 13
    s_add_u32 s21, s21, {LDS_QX}
    v_add_u32 v{V_QXR}, s21, v5
    s_and_b32 s21, s{S_S}, 3
    s_mul_i32 s24, s21, {T1SLOT}
    s_add_u32 s24, s24, s43
    s_add_u32 s25, s24, 4096
    s_add_u32 s26, s{S_S}, 1
    v_mov_b32 v10, s26
    s_barrier
    s_barrier
    s_cmp_eq_u32 s{S_S}, 63
    s_cbranch_scc1 LQ_C1ns
    s_sleep {cfg.slQC}
    LQ_C1ns:
    """)
    for tt in range(2):
        for p in range(2):
            a(f"ds_read_b128 v[{QX_+8*tt+4*p}:{QX_+8*tt+4*p+3}], v{V_QXR} offset:{p*2048 + tt*1024}")
            a(f"ds_read_b128 v[{KX_+8*tt+4*p}:{KX_+8*tt+4*p+3}], v{V_QXR} offset:{4096 + p*2048 + tt*1024}")
    for w in range(4): a(f"ds_read_b64_tr_b16 v[{KM_+2*w}:{KM_+2*w+1}], v{V_TR} offset:{w*1536+8}")
    a("s_waitcnt lgkmcnt(0)")
    tl = [(KX_, QX_), (KM_, QX_), (KX_, QX_+8), (KX_+8, QX_+8), (KM_, QX_+8)]
    for p in range(2):
        for i, (A_, B_) in enumerate(tl):
            mfma32(T+4*i, A_+4*p, B_+4*p, T+4*i if p else None)
    nop(8)
    lstore([(f"buffer_store_dwordx2 v[{T+4*i}:{T+4*i+1}], v12, {WS}, " if i in (1, 4) else f"buffer_store_dwordx4 v[{T+4*i}:{T+4*i+3}], v5, {WS}, ")
            + (f"s24 offen offset:{i*1024}" if i < 4 else "s25 offen") for i in range(5)])
    a("s_waitcnt vmcnt(0)\ns_mov_b64 exec, 1")
    lstore(f"buffer_store_dword v10, v9, {WS}, s44 offen")
    a(f"""
    s_mov_b64 exec, -1
    s_add_u32 s{S_S}, s{S_S}, 1
    s_cmp_lt_u32 s{S_S}, 64
    s_cbranch_scc1 LQ_C1loop
    s_waitcnt vmcnt(0)
    s_endpgm
    """)

    X0 = 16
    a("LQ_C2:")
    if not cfg.tokpath: a("s_barrier\ns_endpgm")
    a(f"""
    s_cmp_eq_u32 s42, 2
    s_cbranch_scc1 LQ_exit1
    s_mul_i32 s43, s41, {3*5120}
    s_add_u32 s43, s43, {WS_T1R}
    s_mul_i32 s21, s41, {3*128}
    s_add_u32 s21, s21, {FL1}
    v_min_u32 v8, 2, v0
    v_lshlrev_b32 v8, 7, v8
    v_add_u32 v8, s21, v8
    s_lshl_b32 s44, s41, 1
    s_add_u32 s44, s44, s42
    s_lshl_b32 s45, s44, 7
    s_add_u32 s45, s45, {FL2}
    s_mul_i32 s44, s44, 1536
    s_add_u32 s44, s44, {WS_PR}
    s_lshl_b32 s46, s42, 11
    s_mul_i32 s47, s42, 3072
    s_add_u32 s48, s47, 1024
    v_lshlrev_b32 v9, 3, v0
    v_mov_b32 v10, 0
    v_lshlrev_b32 v6, 2, v1
    s_lshl_b32 s21, s42, 4
    v_add_u32 v7, s21, v2
    """)
    for i in range(8):
        a(f"v_add_u32 v11, {16*(i>>2) + (i&3)}, v6\nv_cmp_le_u32 s[{50+2*i}:{51+2*i}], v11, v7")
    a(f"""
    v_mov_b32 v12, {NEGBIG}
    v_lshlrev_b32 v14, 2, v0
    s_mov_b32 s66, {CSC}
    s_mov_b32 s67, {CSC}
    s_barrier
    """)
    read_mode()
    a(f"""
    s_barrier
    s_barrier
    s_mov_b32 s{S_S}, 1
    LQ_C2loop:
    s_cmp_gt_u32 s{S_S}, 63
    s_cbranch_scc1 LQ_C2nb
    s_barrier
    s_barrier
    s_cmp_eq_u32 s{S_S}, 63
    s_cbranch_scc1 LQ_C2nb
    s_sleep {cfg.slQC}
    LQ_C2nb:
    s_sub_u32 s21, s{S_S}, 1
    s_and_b32 s21, s21, 3
    s_mul_i32 s24, s21, {T1SLOT}
    s_add_u32 s24, s24, s43
    s_mul_i32 s30, s21, {PSLOT}
    s_add_u32 s30, s30, s44
    v_mov_b32 v13, s{S_S}
    """)
    wait_flags(11, 8, S_S)
    for pp in range(3):
        for j, so in enumerate((46, 47, 48)):
            r = X0 + 12*pp + 4*j
            a(f"s_add_u32 s25, s24, s{so}")
            if j < 2: a(f"buffer_load_dwordx4 v[{r}:{r+3}], v5, {WS}, s25 offen sc1")
            else: a(f"buffer_load_dwordx2 v[{r}:{r+1}], v9, {WS}, s25 offen sc1")
        if pp < 2: a("s_add_u32 s24, s24, 5120")
    a("s_waitcnt vmcnt(3)")
    for i in range(0, 10, 2): a(f"v_pk_add_f32 v[{X0+i}:{X0+i+1}], v[{X0+i}:{X0+i+1}], v[{X0+12+i}:{X0+13+i}]")
    a("s_waitcnt vmcnt(0)")
    for i in range(0, 10, 2): a(f"v_pk_add_f32 v[{X0+i}:{X0+i+1}], v[{X0+i}:{X0+i+1}], v[{X0+24+i}:{X0+25+i}]")
    for i in range(8): a(f"v_cndmask_b32 v{X0+i}, v12, v{X0+i}, s[{50+2*i}:{51+2*i}]")
    def softmax_max(X, mx, t, sc):
        a(f"v_max3_f32 v{mx}, v{X}, v{X+1}, v{X+2}")
        for i in range(3, 9, 2): a(f"v_max3_f32 v{mx}, v{mx}, v{X+i}, v{X+i+1}")
        a(f"v_max_f32 v{mx}, v{mx}, v{X+9}")
        xlane("v_max_f32", mx, t)
        a(f"v_mul_f32 v{mx}, s{sc}, v{mx}")
    def pkarg(x, mx, sc):
        a(f"v_pk_fma_f32 v[{x}:{x+1}], v[{x}:{x+1}], s[{sc}:{sc+1}], v[{mx}:{mx+1}] op_sel_hi:[1,1,0] neg_lo:[0,0,1] neg_hi:[0,0,1]")
    softmax_max(X0, 52, 53, 66)
    for i in range(0, 10, 2): pkarg(X0+i, 52, 66)
    for i in range(10): a(f"v_exp_f32 v{X0+i}, v{X0+i}")
    a(f"v_pk_add_f32 v[52:53], v[{X0}:{X0+1}], v[{X0+2}:{X0+3}]")
    for i in range(4, 10, 2): a(f"v_pk_add_f32 v[52:53], v[52:53], v[{X0+i}:{X0+i+1}]")
    a("v_add_f32 v52, v52, v53")
    xlane("v_add_f32", 52, 53)
    a("v_rcp_f32 v52, v52\ns_nop 0")
    for i in range(0, 10, 2): a(f"v_pk_mul_f32 v[{X0+i}:{X0+i+1}], v[{X0+i}:{X0+i+1}], v[52:53] op_sel_hi:[1,0]")
    for i in range(5): cvt(X0+12+i, X0+2*i, X0+2*i+1)
    lstore([f"buffer_store_dwordx4 v[{X0+12}:{X0+15}], v5, {WS}, s30 offen",
            f"buffer_store_dword v{X0+16}, v14, {WS}, s30 offen offset:1024"])
    a("s_waitcnt vmcnt(0)\ns_mov_b64 exec, 1")
    lstore(f"buffer_store_dword v13, v10, {WS}, s45 offen")
    a(f"""
    s_mov_b64 exec, -1
    s_add_u32 s{S_S}, s{S_S}, 1
    s_cmp_lt_u32 s{S_S}, 65
    s_cbranch_scc1 LQ_C2loop
    s_waitcnt vmcnt(0)
    s_endpgm
    LQ_exit1:
    s_barrier
    s_endpgm
    """)

    a("LQ_C3:")
    mode_wave()
    a(f"""
    s_sub_u32 s21, s{S_C}, 20
    s_cmp_ge_u32 s21, 10
    s_cbranch_scc1 LM_end
    s_lshl_b32 s43, s21, 12
    s_add_u32 s43, s43, {WS_H + 2*40960}
    v_lshlrev_b32 v8, 6, v0
    s_mul_i32 s24, s{S_X}, 10
    s_add_u32 s24, s24, s21
    s_lshl_b32 s44, s24, 12
    s_add_u32 s44, s44, {WS_O}
    s_lshr_b32 s45, s24, 2
    s_and_b32 s46, s24, 3
    """)
    build_sel(16, 20)
    srd(8, KA['x'], 2048*1280)
    a(f"""
    v_and_b32 v6, 3, v2
    v_lshlrev_b32 v10, 3, v6
    v_and_b32 v6, 1, v1
    v_lshl_add_u32 v10, v6, 2, v10
    s_lshl_b32 s21, s45, 5
    v_add_u32 v10, s21, v10
    v_lshlrev_b32 v11, 2, v10
    v_lshrrev_b32 v6, 1, v1
    v_lshlrev_b32 v6, 2, v6
    v_lshrrev_b32 v7, 2, v2
    v_add_u32 v6, v6, v7
    s_lshl_b32 s21, s46, 3
    v_add_u32 v6, s21, v6
    ; x1 fragment offset v15 = (T>>4)*20480 + kappa*1024 + (16gc + (T&15))*16 + (g&1)*8
    v_and_b32 v7, 15, v6
    v_lshlrev_b32 v15, 4, v7
    v_and_b32 v7, 3, v2
    v_lshl_add_u32 v15, v7, 8, v15
    v_and_b32 v7, 1, v1
    v_lshl_add_u32 v15, v7, 3, v15
    s_lshr_b32 s21, s46, 1
    s_mul_i32 s21, s21, 20480
    s_lshl_b32 s24, s45, 10
    s_add_u32 s21, s21, s24
    v_add_u32 v15, s21, v15
    v_mul_u32_u24 v6, 1280, v6
    v_lshl_add_u32 v10, v10, 1, v6
    v_mov_b32 v28, -1
    v_mov_b32 v29, -1
    v_mov_b32 v30, -1
    v_mov_b32 v31, -1
    s_mov_b32 s21, s44
    s_add_u32 s24, s44, {8*OSLOT}
    LQ_armo:
    buffer_store_dwordx4 v[28:31], v5, {WS}, s21 offen sc1
    buffer_store_dwordx4 v[28:31], v5, {WS}, s21 offen offset:1024 sc1
    buffer_store_dwordx4 v[28:31], v5, {WS}, s21 offen offset:2048 sc1
    buffer_store_dwordx4 v[28:31], v5, {WS}, s21 offen offset:3072 sc1
    s_add_u32 s21, s21, {OSLOT}
    s_cmp_lt_u32 s21, s24
    s_cbranch_scc1 LQ_armo
    s_mov_b32 s21, {WS_X1 + 59*40960}
    LQ_armx:
    buffer_store_dwordx2 v[28:29], v15, {WS}, s21 offen sc1
    s_add_u32 s21, s21, 40960
    s_cmp_lt_u32 s21, {WS_X1 + 64*40960}
    s_cbranch_scc1 LQ_armx
    s_sub_u32 s47, s44, {WS_O}
    s_lshr_b32 s47, s47, 1
    s_add_u32 s47, s47, {WS_G + 4*GSLOT}
    s_mov_b32 s24, {WS_MOD + 2*640*4}
    s_waitcnt vmcnt(0)
    s_barrier
    buffer_load_dwordx4 v[24:27], v11, {WS}, s24 offen sc1
    buffer_load_dword v9, v8, {WS}, s43 offen
    s_mov_b32 s{S_S}, 0
    LQ_C3loop:
    s_cmp_gt_u32 s{S_S}, 63
    s_cbranch_scc1 LQ_C3nb
    s_barrier
    s_barrier
    s_sleep {cfg.slQ3}
    s_cmp_lt_u32 s{S_S}, 59
    s_cbranch_scc1 LQ_C3np
    s_cmp_eq_u32 s{S_S}, 63
    s_cbranch_scc1 LQ_C3nb
    s_sub_u32 s21, s{S_S}, 59
    s_mul_i32 s21, s21, 10
    s_add_u32 s21, s21, s{S_C}
    s_mul_i32 s21, s21, 49152
    s_add_u32 s21, s21, {WS_W1F - 20*49152}
    s_add_u32 s24, s21, 49152
    v_lshlrev_b32 v57, 7, v0
    LQ_pf:
    buffer_load_dword v56, v57, {WS}, s21 offen
    s_add_u32 s21, s21, 8192
    s_cmp_lt_u32 s21, s24
    s_cbranch_scc1 LQ_pf
    s_getpc_b64 s[48:49]
    LQ_pc:
    s_add_u32 s48, s48, LM_tail-LQ_pc
    s_addc_u32 s49, s49, 0
    s_sub_u32 s21, s{S_S}, 59
    s_lshl_b32 s21, s21, 13
    v_add_u32 v57, s21, v57
    v_min_u32 v57, LM_codeend-LM_tail, v57
    global_load_dword v56, v57, s[48:49]
    LQ_C3np:
    s_cmp_gt_u32 s{S_S}, 60
    s_cbranch_scc1 LQ_C3nb
    s_add_u32 s43, s43, 40960
    buffer_load_dword v9, v8, {WS}, s43 offen
    s_cmp_gt_u32 s{S_S}, 58
    s_cbranch_scc1 LQ_C3nb
    buffer_store_dwordx4 v[28:31], v5, {WS}, s47 offen sc1
    buffer_store_dwordx4 v[28:31], v5, {WS}, s47 offen offset:1024 sc1
    s_add_u32 s47, s47, {GSLOT}
    LQ_C3nb:
    """)
    if cfg.tokpath:
        a(f"""
        s_cmp_lt_u32 s{S_S}, 3
        s_cbranch_scc1 LQ_C3skip
        s_sub_u32 s26, s{S_S}, 3
        s_and_b32 s21, s26, 7
        s_mul_i32 s28, s21, {OSLOT}
        s_add_u32 s28, s28, s44
        s_mul_i32 s29, s26, {32*1280}
        s_add_u32 s30, s29, {WS_X1}
        buffer_load_dwordx2 v[12:13], v10, {SA}, s29 offen
        s_add_u32 s21, s26, 7
        s_and_b32 s21, s21, 7
        s_mul_i32 s31, s21, {OSLOT}
        s_add_u32 s31, s31, s44
        """)
        for i in range(4): a(f"buffer_store_dwordx4 v[28:31], v5, {WS}, s31 offen offset:{1024*i} sc1")
        def comp3(o, i): mfma32(48, 20, 32+4*i, 48 if i else None, o)
        gather([(32+4*i, 5, 28, 1024*i) for i in range(4)], 14, comp3, depth=1)
        a("""
        s_nop 1
        v_lshlrev_b32 v52, 16, v12
        v_and_b32 v53, 0xffff0000, v12
        v_lshlrev_b32 v54, 16, v13
        v_and_b32 v55, 0xffff0000, v13
        """)
        for i in range(4): a(f"v_fma_f32 v{52+i}, v{48+i}, v{24+i}, v{52+i}")
        cvt(52, 52, 53); cvt(53, 54, 55); san(52); san(53)
        a(f"buffer_store_dwordx2 v[52:53], v15, {WS}, s30 offen sc1\nLQ_C3skip:")
    a(f"""
    s_waitcnt vmcnt(0)
    """)
    _t = cfg.trace; cfg.trace = cfg.trace or cfg.light
    stamp(0)
    stamp_commit([0], 60)
    a(f"""
    s_add_u32 s{S_S}, s{S_S}, 1
    s_cmp_lt_u32 s{S_S}, {67 if cfg.tokpath else 61}
    s_cbranch_scc1 LQ_C3loop
    """)
    stamp_dump([0], 60, 5)
    pstamp(11)
    cfg.trace = _t
    a("s_endpgm")

    a(f"""
    LM_VO:
    """)
    BP, AP, AC = 8, 56, 104
    a(f"""
    s_and_b32 s41, s{S_WAVE}, 3
    s_mul_i32 s42, s41, 36864
    s_lshl_b32 s21, s{S_X}, 2
    s_add_u32 s41, s41, s21
    s_cmp_lt_u32 s{S_WAVE}, 4
    s_cbranch_scc1 LV_Wpro
    """)
    srd(8, KA['Wo'], 32*192*1280)
    srd(12, KA['Wv'], 640*12288)
    a(f"""
    v_lshrrev_b32 v6, 2, v0
    v_mul_u32_u24 v12, 1280, v6
    v_and_b32 v7, 3, v0
    v_lshl_add_u32 v12, v7, 4, v12
    s_mul_i32 s21, s41, 245760
    s_lshl_b32 s24, s{S_C}, 6
    s_add_u32 s21, s21, s24
    v_add_u32 v12, s21, v12
    s_add_u32 s24, s42, 24576
    s_mov_b32 s25, 0
    LV_wo:
    s_mov_b32 m0, s24
    s_add_u32 s24, s24, 1024
    buffer_load_dwordx4 v12, {SA}, s25 offen{NT(cfg.ntO)} lds
    s_add_u32 s25, s25, {16*1280}
    s_cmp_lt_u32 s25, {192*1280}
    s_cbranch_scc1 LV_wo
    v_lshrrev_b32 v6, 3, v0
    s_mov_b32 s21, 12288
    v_mul_lo_u32 v6, v6, s21
    s_mul_i32 s21, s41, 384
    v_add_u32 v6, s21, v6
    v_lshrrev_b32 v7, 5, v0
    v_lshlrev_b32 v7, 1, v7
    v_xor_b32 v7, v7, v3
    """)
    for ro in range(4):
        a(f"v_xor_b32 v13, {4*(ro>>1) + (ro&1)}, v7\nv_lshl_add_u32 v{8+ro}, v13, 4, v6\nv_add_u32 v{8+ro}, {8*ro*12288}, v{8+ro}")
    a(f"""
    s_mov_b32 s28, 0
    s_mov_b32 s29, 0
    LV_ld:
    s_mul_i32 s24, s{S_C}, {1 if cfg.rotV else 0}
    s_add_u32 s24, s24, s28
    s_sub_u32 s21, s24, 20
    s_cmp_ge_u32 s24, 20
    s_cselect_b32 s24, s21, s24
    s_mul_i32 s24, s24, {32*12288}
    s_add_u32 s25, s29, s42
    """)
    for ro in range(4):
        for jl in range(3):
            a(f"s_add_u32 m0, s25, {ro*3072 + jl*1024 - jl*128}\ns_nop 0")
            a(f"buffer_load_dwordx4 v{8+ro}, {SB}, s24 offen offset:{jl*128}{NT(cfg.ntV)} lds")
    a(f"""
    s_add_u32 s29, s29, 12288
    s_cmp_eq_u32 s29, 36864
    s_cselect_b32 s29, 0, s29
    s_add_u32 s28, s28, 1
    s_cmp_eq_u32 s28, 1
    s_cbranch_scc1 LV_ld
    s_waitcnt vmcnt(12)
    s_cmp_lg_u32 s28, 2
    s_cbranch_scc1 LV_ld2
    s_barrier
    LV_ld2:
    s_barrier
    s_cmp_lt_u32 s28, 20
    s_cbranch_scc1 LV_ld
    s_waitcnt vmcnt(0)
    s_barrier
    """)
    wait_h()
    a(f"""
    s_barrier
    s_cmp_eq_u32 s{S_WAVE}, 6
    s_cbranch_scc1 LV_C2
    s_cmp_eq_u32 s{S_WAVE}, 7
    s_cbranch_scc1 LV_C3
    s_branch LV_C01
    LV_Wpro:
    v_bfe_u32 v6, v0, 2, 2
    v_lshl_add_u32 v94, v1, 3, v6
    v_lshlrev_b32 v94, 6, v94
    v_and_b32 v7, 3, v0
    v_lshl_add_u32 v94, v7, 4, v94
    s_add_u32 s21, s42, 24576
    v_add_u32 v94, s21, v94
    v_bfe_u32 v6, v0, 1, 1
    v_lshl_add_u32 v6, v4, 1, v6
    v_mul_u32_u24 v6, 3072, v6
    v_bfe_u32 v7, v0, 2, 1
    v_lshl_add_u32 v6, v7, 9, v6
    v_and_b32 v7, 1, v0
    v_lshl_add_u32 v6, v7, 7, v6
    v_bfe_u32 v7, v0, 1, 3
    v_xor_b32 v7, v7, v1
    v_lshl_add_u32 v6, v7, 4, v6
    v_add_u32 v6, s42, v6
    v_xor_b32 v7, 64, v6
    s_waitcnt vmcnt(0)
    s_barrier
    """)
    set_h(0)
    for t in range(2):
        for e in range(6):
            for d in range(2):
                r = BP + 24*t + 4*e + 2*d
                a(f"ds_read_b64_tr_b16 v[{r}:{r+1}], v94 offset:{e*2048 + d*256 + t*8}")
    if cfg.ptrace: a("s_memrealtime s[96:97]")
    a(f"""
    s_mov_b32 s28, 0
    s_mov_b32 s29, 0
    s_waitcnt lgkmcnt(0)
    LV_it:
    s_barrier
    v_add_u32 v2, s29, v6
    v_add_u32 v3, s29, v7
    """)
    AC = 80
    def rdA(d, e): a(f"ds_read_b128 v[{AP+4*e}:{AP+4*e+3}], v{2 + (e&1)} offset:{(e>>1)*1024 + d*256}")
    for e in range(6): rdA(0, e)
    a(f"""
    s_mul_i32 s26, s{S_C}, {1 if cfg.rotV else 0}
    s_add_u32 s26, s26, s28
    s_sub_u32 s21, s26, 20
    s_cmp_ge_u32 s26, 20
    s_cselect_b32 s26, s21, s26
    s_lshl_b32 s26, s26, 2
    s_add_u32 s29, s29, 12288
    s_cmp_eq_u32 s29, 36864
    s_cselect_b32 s29, 0, s29
    """)
    for e in range(6):
        a(f"s_waitcnt lgkmcnt(5)")
        for t in range(2): mfma32(AC+8*t, AP+4*e, BP+24*t+4*e, AC+8*t if e else None)
        rdA(1, e)
    for e in range(6):
        a(f"s_waitcnt lgkmcnt({5-e})")
        for t in range(2): mfma32(AC+8*t+4, AP+4*e, BP+24*t+4*e, AC+8*t+4 if e else None)
    a("s_add_u32 s28, s28, 1")
    nop(7)
    for t in range(2):
        for i in range(4): cvt(AC+8*t+i, AC+8*t+2*i, AC+8*t+2*i+1)
    a("s_set_gpr_idx_on s26, gpr_idx(DST)\ns_nop 0")
    for t in range(2):
        for i in range(4): a(f"v_mov_b32 v{VW+80*t+i}, v{AC+8*t+i}")
    a(f"""
    s_set_gpr_idx_off
    s_cmp_lt_u32 s28, 20
    s_cbranch_scc1 LV_it
    s_barrier
    """)
    lanes()
    if cfg.ptrace:
        pstamp(3)
        a(f"v_mov_b32 v6, s96\ns_sub_u32 s92, s92, 4\nbuffer_store_dword v6, v7, {WS}, s92 offen\ns_waitcnt vmcnt(0)")
    w_setup()
    a("s_mov_b32 s28, 0")
    dma_tokens(28)
    a("s_mov_b32 s28, 1")
    dma_tokens(28)
    a(f"""
    s_lshl_b32 s21, s{S_WAVE}, 9
    s_add_u32 s21, s21, {LDS_Y}
    v_lshlrev_b32 v6, 3, v0
    v_add_u32 v{V_OUT}, s21, v6
    s_lshl_b32 s21, s{S_WAVE}, 11
    s_add_u32 s21, s21, {LDS_U}
    v_add_u32 v{V_OUT2}, s21, v5
    v_add_u32 v{V_MGL}, {LDS_M}, v{V_MG}
    s_lshl_b32 s21, s{S_WAVE}, 2
    s_add_u32 s21, s21, {LDS_MISC}
    v_mov_b32 v36, s21
    s_waitcnt vmcnt(10)
    s_barrier
    s_mov_b32 s{S_S}, -1
    """)
    pstamp(4)
    dst(1)
    if cfg.dtrace: a("s_waitcnt lgkmcnt(0)")
    a(f"""
    s_branch LV_Wtok
    LV_Wloop:
    """)
    if cfg.ptrace:
        a(f"s_cmp_gt_u32 s{S_S}, 3\ns_cbranch_scc1 LV_nps")
        a(f"s_memrealtime s[90:91]\ns_waitcnt lgkmcnt(0)\nv_mov_b32 v6, s90\nv_mov_b32 v7, 0\ns_add_u32 s92, s92, 4\nbuffer_store_dword v6, v7, {WS}, s92 offen\nLV_nps:")
    a(f"""
    s_add_u32 s27, s{S_S}, 1
    v_mov_b32 v7, s27
    """)
    m_addr()
    stamp(0)
    lds_wait(V_MISC, F_MST, 1, 16, S_S, sleep=1)
    stamp(1)
    a(f"s_cmp_ge_u32 s{S_WAVE}, 2\ns_cbranch_scc1 LV_W2")
    gather([(VG, V_MG, 24, 0), (VG+4, V_MG, 25, 0), (VG+8, V_MG, 26, 0)], V_CHK, depth=1)
    a(f"ds_write_b128 v{V_MGL}, v[{VG+8}:{VG+11}] offset:8192\ns_branch LV_W3\nLV_W2:")
    gather([(VG, V_MG, 24, 0), (VG+4, V_MG, 25, 0)], V_CHK, depth=1)
    a(f"""
    LV_W3:
    ds_write_b128 v{V_MGL}, v[{VG}:{VG+3}]
    ds_write_b128 v{V_MGL}, v[{VG+4}:{VG+7}] offset:4096
    ds_write_b32 v36, v7 offset:{F_MW}
    """)
    stamp(2)
    lds_wait(V_MISC, F_MW, 4, 16, 27)
    stamp(3)
    if cfg.trace: a("s_waitcnt lgkmcnt(0)")
    for k in range(10): a(f"ds_read_b128 v[{VA+4*k}:{VA+4*k+3}], v{V_ML} offset:{k*1024}")
    for k in range(10):
        a(f"s_waitcnt lgkmcnt({9-k})")
        smf(k)
    a(f"s_and_b32 s21, s{S_S}, 3\ns_lshl_b32 s21, s21, 11\nv_add_u32 v6, s21, v{V_OUT}")
    nop(6)
    halfsum()
    cvt(ACC, ACC, ACC+1); cvt(ACC+1, ACC+4, ACC+5)
    a(f"""
    ds_write_b64 v6, v[{ACC}:{ACC+1}]
    ds_write_b32 v36, v7 offset:{F_Y}
    s_cmp_eq_u32 s{S_S}, 63
    s_cbranch_scc1 LV_Wend
    """)
    stamp_commit([0, 1, 2, 3], 20)
    lds_wait(V_MISC, F_D2, 2, 16, S_S, sleep=1)
    a("LV_Wtok:")
    tok_base()
    token_pass(False, cfg.n1, lambda: lds_wait(V_MISC, F_GST, 1, 16, 21, sleep=1))
    a(f"s_add_u32 s24, s21, 1\nv_mov_b32 v7, s24\nds_write_b32 v36, v7 offset:{F_TD}")
    a(f"s_and_b32 s21, s21, 3\ns_lshl_b32 s21, s21, 13\nv_add_u32 v6, s21, v{V_OUT2}")
    for t in range(2):
        d = ACC + 8*t
        cvt(d, d, d+1); cvt(d+1, d+2, d+3); cvt(d+2, d+4, d+5); cvt(d+3, d+6, d+7)
        a(f"ds_write_b128 v6, v[{d}:{d+3}] offset:{t*1024}")
    a(f"""
    s_waitcnt lgkmcnt(0)
    """)
    after_wait()
    a(f"""
    s_add_u32 s{S_S}, s{S_S}, 1
    s_branch LV_Wloop
    LV_Wend:
    s_waitcnt vmcnt(0) lgkmcnt(0)
    """)
    pstamp(10)
    dst(2)
    if cfg.trace:
        a(f"s_cmp_lg_u32 s{S_WAVE}, 0\ns_cbranch_scc1 LM_tail")
        stamp_dump([0, 1, 2, 3], 20, 16)
    a("s_branch LM_tail")

    SELM, SELA, SLO, SHI = 16, 20, 24, 28
    LD = 32
    D_ = 48
    PT, PMA, PMB = 60, 64, 66
    UF, YF = 68, 84
    ONES = 88
    OA = 92
    KEEP, SEND = 108, 112
    HO = 116
    LS = 128
    LG = 132
    MX = 14
    V_L3, V_UR, V_YR, V_GS, V_MS, V_HO, V_FL = 8, 9, 10, 120, 121, 122, 123
    a("LV_C01:\ns_setprio 3")
    build_sel(SELM, SELA, SLO, SHI)
    build_selm(SELM)
    a(f"""
    s_sub_u32 s41, s{S_WAVE}, 4
    v_cmp_eq_u32 vcc, 3, v1
    v_mov_b32 v6, 0x40000000
    s_nop 0
    v_cndmask_b32 v{V_L3}, v5, v6, vcc
    s_lshl_b32 s43, s{S_X}, 13
    s_lshl_b32 s21, s41, 12
    s_add_u32 s43, s43, s21
    s_add_u32 s43, s43, {WS_L1R}
    v_cmp_eq_u32 s[44:45], 1, v4
    v_cmp_eq_u32 s[64:65], 0, v4
    s_mov_b32 s66, {CSC}
    s_mov_b32 s67, {CSC}
    v_mov_b32 v{ONES}, 0x3f803f80
    v_mov_b32 v{ONES+1}, 0x3f803f80
    v_mov_b32 v{ONES+2}, 0x3f803f80
    v_mov_b32 v{ONES+3}, 0x3f803f80
    v_mov_b32 v{PMA+1}, 0
    v_mov_b32 v{PMB}, 0
    v_lshl_add_u32 v6, v1, 3, v3
    v_lshlrev_b32 v{V_GS}, 4, v6
    v_lshl_add_u32 v{V_GS}, v4, 3, v{V_GS}
    v_lshrrev_b32 v6, 1, v1
    v_lshlrev_b32 v{V_MS}, 4, v6
    v_bfe_u32 v6, v0, 1, 2
    v_lshl_add_u32 v{V_MS}, v6, 2, v{V_MS}
    v_lshl_add_u32 v{V_MS}, v4, 1, v{V_MS}
    v_and_b32 v6, 1, v0
    v_add_u32 v{V_MS}, v{V_MS}, v6
    v_lshlrev_b32 v{V_MS}, 4, v{V_MS}
    v_and_b32 v6, 1, v1
    v_lshl_add_u32 v{V_MS}, v6, 3, v{V_MS}
    v_add_u32 v{V_HO}, {LDS_HO}, v5
    v_mov_b32 v{V_FL}, {LDS_MISC}
    s_lshr_b32 s21, s{S_C}, 1
    s_lshl_b32 s46, s21, 14
    s_and_b32 s21, s{S_C}, 1
    s_lshl_b32 s21, s21, 12
    s_add_u32 s46, s46, s21
    s_add_u32 s46, s46, {WS_G}
    s_lshl_b32 s47, s{S_X}, 9
    s_mul_i32 s48, s{S_X}, 10240
    s_lshl_b32 s21, s{S_C}, 9
    s_add_u32 s48, s48, s21
    s_add_u32 s48, s48, {WS_MR}
    v_mov_b32 v124, -1
    v_mov_b32 v125, -1
    s_lshl_b32 s21, s{S_X}, 12
    s_add_u32 s21, s21, {WS_NL}
    s_lshl_b32 s24, s{S_C}, 7
    s_add_u32 s24, s24, s21
    s_mul_i32 s25, s41, {0 if cfg.all12 else 24}
    s_add_u32 s24, s24, s25
    v_lshlrev_b32 v6, 2, v0
    v_add_u32 v148, s24, v6
    s_mov_b64 s[68:69], {0xfff if cfg.all12 else 63}
    s_lshl_b32 s24, s{S_C}, 2
    s_add_u32 s24, s24, s21
    s_add_u32 s24, s24, {20*128}
    v_lshlrev_b32 v149, 7, v0
    v_add_u32 v149, s24, v149
    v_mov_b32 v7, 0x40000000
    v_cmp_gt_u32 vcc, 12, v0
    s_mul_i32 s24, s{S_X}, 20
    s_add_u32 s24, s24, s{S_C}
    v_cndmask_b32 v149, v7, v149, vcc
    s_lshr_b32 s51, s24, 6
    s_lshl_b32 s51, s51, 14
    s_and_b32 s24, s24, 63
    s_lshl_b32 s24, s24, 7
    s_add_u32 s51, s51, s24
    s_add_u32 s51, s51, {WS_NG}
    v_mul_u32_u24 v6, 20, v3
    v_add_u32 v6, s{S_C}, v6
    v_lshrrev_b32 v150, 6, v6
    v_lshlrev_b32 v150, 14, v150
    v_and_b32 v6, 63, v6
    v_lshl_add_u32 v150, v6, 7, v150
    v_lshl_add_u32 v150, v4, 13, v150
    s_add_u32 s24, s{S_X}, {WS_NG}
    v_add_u32 v150, s24, v150
    v_cmp_gt_u32 vcc, 16, v0
    s_nop 1
    v_cndmask_b32 v150, v7, v150, vcc
    s_barrier
    s_mov_b32 s50, 0
    s_cmp_eq_u32 s41, 0
    s_cbranch_scc1 LV_nocal
    s_lshl_b32 s21, s{S_X}, 5
    s_add_u32 s21, s21, s{S_C}
    s_lshr_b32 s24, s21, 6
    s_lshl_b32 s24, s24, 14
    s_and_b32 s21, s21, 63
    s_lshl_b32 s21, s21, 7
    s_add_u32 s24, s24, s21
    s_add_u32 s24, s24, {WS_CAL}
    s_add_u32 s25, s24, 8192
    v_mov_b32 v6, 0
    buffer_store_dword v6, v6, {WS}, s24 offen sc1
    buffer_store_dword v6, v6, {WS}, s25 offen sc1
    s_waitcnt vmcnt(0)
    s_memtime s[52:53]
    s_waitcnt lgkmcnt(0)
    buffer_load_dword v7, v6, {WS}, s24 offen sc1
    s_waitcnt vmcnt(0)
    s_memtime s[54:55]
    s_waitcnt lgkmcnt(0)
    buffer_load_dword v7, v6, {WS}, s25 offen sc1
    s_waitcnt vmcnt(0)
    s_memtime s[56:57]
    s_waitcnt lgkmcnt(0)
    s_sub_u32 s56, s56, s54
    s_sub_u32 s54, s54, s52
    s_cmp_lt_u32 s56, s54
    s_cselect_b32 s50, 8192, 0
    LV_nocal:
    """)
    read_mode()
    a(f"""
    s_add_u32 s51, s51, s50
    s_mov_b32 s{S_S}, 0
    s_cmp_lg_u32 s41, 0
    s_cbranch_scc1 LV_Cloop1
    """)
    for cw in range(2):
        a(f"""
        LV_Cloop{cw}:
        s_and_b32 s21, s{S_S}, 3
        s_mul_i32 s24, s21, {L1SLOT}
        s_add_u32 s24, s24, s43
        s_lshl_b32 s25, s21, 13
        s_add_u32 s25, s25, {LDS_U + cw*4096}
        v_add_u32 v{V_UR}, s25, v5
        s_lshl_b32 s25, s21, 11
        s_add_u32 s25, s25, {LDS_Y + cw*1024}
        v_lshlrev_b32 v6, 3, v0
        v_add_u32 v{V_YR}, s25, v6
        s_add_u32 s27, s{S_S}, 1
        v_mov_b32 v126, s27
        s_mul_i32 s32, s{S_S}, {GSLOT}
        s_add_u32 s32, s32, s46
        """)
        if cw == 0:
            a("s_add_u32 s32, s32, s47\ns_add_u32 s33, s32, 8192")
        else:
            a(f"""
            s_lshr_b32 s21, s32, 8
            s_and_b32 s21, s21, 8192
            s_xor_b32 s21, s21, s50
            s_add_u32 s34, s32, s21
            s_and_b32 s21, s27, 3
            s_mul_i32 s35, s21, {MSLOT}
            s_add_u32 s35, s35, s48
            s_xor_b32 s21, s21, 2
            s_mul_i32 s36, s21, {MSLOT}
            s_add_u32 s36, s36, s48
            s_and_b32 s21, s{S_S}, 1
            s_mul_i32 s58, s21, 49152
            s_add_u32 s59, s58, s51
            s_mul_i32 s62, s27, 0x01010101
            s_mov_b32 s63, s62
            """)
        lds_wait(V_FL, F_MW, 4, HO, 27, sleep=1)
        a("s_waitcnt vmcnt(0)")
        if cw == 1: a("s_mov_b64 s[60:61], 0")
        if cfg.nL1: nscout(11, 148, 27, 68)
        else: scout(11, 5, 24)
        nop(cfg.padL1)
        stamp(4)
        def rduy():
            for j in range(4): a(f"ds_read_b128 v[{UF+4*j}:{UF+4*j+3}], v{V_UR} offset:{j*1024}")
            for j in range(2): a(f"ds_read_b64 v[{YF+2*j}:{YF+2*j+1}], v{V_YR} offset:{j*512}")
            return 0
        def shadow1():
            if cw == 0: a(f"ds_write_b32 v{V_FL}, v126 offset:{F_L1D}")
            lds_wait(V_FL, F_Y, 4, HO, 27, extra=rduy)
            if cw == 1 and cfg.nG and cfg.posG == -1: a(f"buffer_store_byte v126, v150, {WS}, s58 offen sc1")
            stamp(3)
        def comp1(o, i):
            if i == 0: mfma32(D_+8, SELM, LD+12, None, o)
            if i == 1: mfma32(D_, SELA, LD, None, o)
            if i == 2: mfma32(D_+4, SELA, LD+4, None, o)
            if i == 3: mfma32(D_, SLO, LD+8, D_, o); mfma32(D_+4, SHI, LD+8, D_+4, o)
        l1loads = [(LD+12, V_L3, 24, 3072), (LD, 5, 24, 0), (LD+4, 5, 24, 1024), (LD+8, 5, 24, 2048)]
        if cfg.g2L: gather2(l1loads, 12, comp1, shadow=shadow1, pad=cfg.g2L-1)
        else: gather(l1loads, 12, comp1, shadow=shadow1, depth=cfg.depthL1, young=int(cw == 1 and cfg.nG and cfg.posG == -1))
        stamp(0)
        def notice(pos):
            if cw == 1 and cfg.nG and cfg.posG == pos:
                a(f"buffer_store_byte v126, v150, {WS}, s58 offen sc1")
        def spoll(pos):
            if cw == 1 and cfg.nG and (cfg.early >> pos) & 1:
                a("s_load_dwordx2 s[60:61], s[4:5], s59 glc")
        notice(0)
        nop(5)
        softmax_max(D_, MX, MX+1, 66)
        notice(1)
        ex = lambda i: a(f"v_exp_f32 v{D_+i}, v{D_+i}")
        pkarg(D_+8, MX, 66)
        pkarg(D_, MX, 66)
        ex(8); ex(9)
        pkarg(D_+2, MX, 66)
        cvt(PMA, D_+8, D_+9); cvt(PMB+1, D_+8, D_+9)
        pkarg(D_+4, MX, 66); pkarg(D_+6, MX, 66)
        mfma16(LS, ONES, PMA, None)
        ex(0); ex(1)
        mfma16(OA, YF, PMA, None)
        notice(2)
        ex(2); ex(3)
        mfma16(OA+4, YF, PMB, None)
        ex(4); ex(5)
        mfma16(OA+8, YF+2, PMA, None)
        ex(6); ex(7)
        mfma16(OA+12, YF+2, PMB, None)
        notice(3)
        spoll(0)
        for i in range(4): cvt(PT+i, D_+2*i, D_+2*i+1)
        a("s_nop 1")
        mfma32(LS, ONES, PT, LS)
        for j in range(4): mfma32(OA+4*j, UF+4*j, PT, OA+4*j)
        notice(4)
        spoll(1)
        a(f"s_nop 3\nv_rcp_f32 v{LS}, v{LS}\ns_mov_b64 exec, s[64:65]")
        pm = lambda d, x: a(f"v_pk_mul_f32 v[{d}:{d+1}], v[{x}:{x+1}], v[{LS}:{LS+1}] op_sel_hi:[1,0]")
        pm(KEEP, OA); pm(KEEP+2, OA+2); pm(SEND, OA+4); pm(SEND+2, OA+6)
        a("s_mov_b64 exec, s[44:45]")
        pm(SEND, OA+8); pm(SEND+2, OA+10); pm(KEEP, OA+12); pm(KEEP+2, OA+14)
        a("s_mov_b64 exec, -1")
        for i in range(4): a(f"v_add_f32_dpp v{KEEP+i}, v{SEND+i}, v{KEEP+i} row_ror:8 row_mask:0xf bank_mask:0xf")
        if cw == 0:
            def rdho():
                a(f"ds_read_b128 v[{HO}:{HO+3}], v{V_HO}")
                return 0
            lds_wait(V_FL, F_HO, 1, 15, 27, extra=rdho)
            for i in range(0, 4, 2): a(f"v_pk_add_f32 v[{KEEP+i}:{KEEP+i+1}], v[{KEEP+i}:{KEEP+i+1}], v[{HO+i}:{HO+i+1}]")
            cvt(KEEP, KEEP, KEEP+1); cvt(KEEP+1, KEEP+2, KEEP+3); san(KEEP); san(KEEP+1)
            a(f"""
            buffer_store_dwordx2 v[{KEEP}:{KEEP+1}], v{V_GS}, {WS}, s32 offen sc1
            buffer_store_dwordx2 v[{KEEP}:{KEEP+1}], v{V_GS}, {WS}, s33 offen sc1
            ds_write_b32 v{V_FL}, v126 offset:{F_GST}
            """)
            stamp(1)
        else:
            a(f"""
            ds_write_b128 v{V_HO}, v[{KEEP}:{KEEP+3}]
            ds_write_b32 v{V_FL}, v126 offset:{F_HO}
            """)
            if cfg.nG:
                a(f"""
                s_mov_b32 s{S_CNT}, s{S_LIM}
                LV_np:
                s_load_dwordx2 s[60:61], s[4:5], s59 glc
                s_sub_u32 s{S_CNT}, s{S_CNT}, 1
                s_cbranch_scc1 LV_npd
                s_waitcnt lgkmcnt({cfg.lgN})
                """)
                for _ in range(cfg.chkN):
                    a("s_cmp_eq_u64 s[60:61], s[62:63]\ns_cbranch_scc1 LV_npd\ns_nop 1")
                a("""
                s_cmp_eq_u64 s[60:61], s[62:63]
                s_cbranch_scc0 LV_np
                LV_npd:
                """)
            else:
                lds_wait(V_FL, F_GST, 1, 15, 27)
            nop(cfg.dG*4)
            stamp(2)
            def comp2(o, i): mfma32(D_, SELA, LG+4*i, D_ if i else None, o)
            def shadow2():
                a(f"ds_write_b32 v{V_FL}, v126 offset:{F_GIS}")
                if cfg.nM:
                    nop(cfg.dM*4)
                    lstore(f"buffer_store_dword v126, v149, {WS}, 0 offen")
            gather([(LG+4*i, 5, 34, 1024*i) for i in range(4)], 12, comp2, depth=cfg.depthG, shadow=shadow2, young=cfg.nM)
            nop(6)
            cvt(D_, D_, D_+1); cvt(D_+1, D_+2, D_+3); san(D_); san(D_+1)
            lstore(f"buffer_store_dwordx2 v[{D_}:{D_+1}], v{V_MS}, {WS}, s35 offen")
            a(f"ds_write_b32 v{V_FL}, v126 offset:{F_MST}")
            stamp(1)
            lstore(f"buffer_store_dwordx2 v[124:125], v{V_MS}, {WS}, s36 offen")
            if cfg.dbg:
                a(f"""
                s_cmp_lg_u32 s{S_X}, 0
                s_cbranch_scc1 LV_Cnd
                s_mul_i32 s21, s27, 10240
                s_lshl_b32 s25, s{S_C}, 9
                s_add_u32 s21, s21, s25
                s_add_u32 s21, s21, {WS_DBG}
                buffer_store_dwordx2 v[{D_}:{D_+1}], v{V_MS}, {WS}, s21 offen
                LV_Cnd:
                """)
        stamp(5)
        if cfg.trace: a("s_memtime s[82:83]")
        after_wait()
        stamp_commit([0, 1, 2, 3, 4, 5, 6], 160)
        a(f"""
        s_add_u32 s{S_S}, s{S_S}, 1
        s_cmp_lt_u32 s{S_S}, 63
        s_cbranch_scc1 LV_Cloop{cw}
        s_waitcnt vmcnt(0) lgkmcnt(0)
        """)
        stamp_dump([0, 1, 2, 3, 4, 5, 6], 160, 8*cw)
        a("s_endpgm")

    PTK, PMM, UU, YY, OO = 16, 48, 80, 112, 120
    a("LV_C2:")
    a(f"""
    s_lshl_b32 s21, s{S_X}, 10
    s_add_u32 s21, s21, {FL2}
    v_lshlrev_b32 v8, 7, v3
    v_add_u32 v8, s21, v8
    s_mul_i32 s43, s{S_X}, {8*1536}
    s_add_u32 s43, s43, {WS_PR}
    v_lshlrev_b32 v9, 2, v0
    v_lshlrev_b32 v10, 12, v4
    v_lshl_add_u32 v6, v3, 2, v1
    v_lshl_add_u32 v10, v6, 4, v10
    s_lshl_b32 s44, s{S_C}, 14
    s_lshl_b32 s21, s{S_X}, 9
    s_add_u32 s44, s44, s21
    s_add_u32 s44, s44, {WS_O}
    v_mov_b32 v7, {LDS_MISC}
    """)
    for j in range(8): a(f"v_mov_b32 v{PMM+4*j+1}, 0\nv_mov_b32 v{PMM+4*j+2}, 0")
    a(f"""
    s_barrier
    s_mov_b32 s{S_S}, 0
    LV_C2loop:
    s_add_u32 s27, s{S_S}, 1
    v_mov_b32 v15, s27
    s_cmp_lt_u32 s{S_S}, {2 if cfg.tokpath else 100}
    s_cbranch_scc0 LV_C2a
    ds_write_b32 v7, v15 offset:{F_D2}
    s_branch LV_C2c
    LV_C2a:
    s_sub_u32 s26, s{S_S}, 2
    s_add_u32 s30, s26, 1
    s_and_b32 s21, s26, 3
    s_mul_i32 s24, s21, {PSLOT}
    s_add_u32 s24, s24, s43
    s_lshl_b32 s25, s21, 13
    s_add_u32 s25, s25, {LDS_U}
    v_add_u32 v11, s25, v5
    s_lshl_b32 s25, s21, 11
    s_add_u32 s25, s25, {LDS_Y}
    v_lshlrev_b32 v6, 3, v0
    v_add_u32 v12, s25, v6
    s_and_b32 s21, s26, 7
    s_mul_i32 s28, s21, {OSLOT}
    s_add_u32 s28, s28, s44
    s_add_u32 s29, s28, 8192
    s_min_u32 s31, s27, 64
    s_min_u32 s32, s27, 63
    """)
    lds_wait(7, F_Y, 4, 136, 30, sleep=1)
    for j in range(8): a(f"ds_read_b128 v[{UU+4*j}:{UU+4*j+3}], v11 offset:{j*1024}")
    for j in range(4): a(f"ds_read_b64 v[{YY+2*j}:{YY+2*j+1}], v12 offset:{j*512}")
    a("s_waitcnt lgkmcnt(0)")
    lds_wait(7, F_MW, 4, 136, 31, sleep=1)
    wait_flags(13, 8, 30)
    for j in range(8):
        o = (j % 2)*1536
        a(f"buffer_load_dwordx4 v[{PTK+4*j}:{PTK+4*j+3}], v5, {WS}, s24 offen offset:{o} sc1")
        a(f"buffer_load_dword v{PMM+4*j}, v9, {WS}, s24 offen offset:{o+1024} sc1")
        if j % 2 == 1 and j < 7: a("s_add_u32 s24, s24, 3072")
    for h in range(4):
        a(f"s_waitcnt vmcnt({12-4*h})")
        for tau in range(2): a(f"v_mov_b32 v{PMM+8*h+4*tau+3}, v{PMM+8*h+4*tau}")
        if h == 3: a(f"ds_write_b32 v7, v15 offset:{F_D2}")
        for tau in range(2):
            for t in range(2):
                d = OO + 8*tau + 4*t
                mfma32(d, UU+8*h+4*t, PTK+8*h+4*tau, d if h else None)
        for tau in range(2):
            for t in range(2):
                d = OO + 8*tau + 4*t
                mfma16(d, YY+2*h, PMM+8*h+4*tau+2*t, d)
    nop(8)
    for tau in range(2):
        d = OO + 8*tau
        cvt(d, d, d+1); cvt(d+1, d+2, d+3); cvt(d+2, d+4, d+5); cvt(d+3, d+6, d+7)
        for i in range(4): san(d+i)
    lds_wait(7, F_GIS, 1, 13, 32, sleep=cfg.slO)
    a(f"""
    buffer_store_dwordx4 v[{OO}:{OO+3}], v10, {WS}, s28 offen sc1
    buffer_store_dwordx4 v[{OO+8}:{OO+11}], v10, {WS}, s29 offen sc1
    LV_C2c:
    s_add_u32 s{S_S}, s{S_S}, 1
    s_cmp_lt_u32 s{S_S}, 66
    s_cbranch_scc1 LV_C2loop
    s_waitcnt vmcnt(0) lgkmcnt(0)
    s_endpgm
    """)

    a("LV_C3:")
    mode_wave()
    a(f"""
    v_mov_b32 v7, {LDS_MISC}
    s_and_b32 s21, s{S_C}, 1
    s_mul_i32 s21, s21, 20480
    v_add_u32 v9, s21, v5
    s_sub_u32 s21, 20480, s21
    v_add_u32 v11, s21, v5
    s_barrier
    s_mov_b32 s{S_S}, 0
    LV_C3loop:
    s_add_u32 s27, s{S_S}, 1
    v_mov_b32 v15, s27
    """)
    a(f"""
    s_add_u32 s26, s{S_S}, 2
    s_cmp_gt_u32 s26, 63
    s_cbranch_scc1 LV_C3b
    """)
    a(f"""
    s_mul_i32 s28, s26, 40960
    s_add_u32 s28, s28, {WS_H}
    s_and_b32 s29, s26, 1
    s_mul_i32 s29, s29, 40960
    s_add_u32 s29, s29, {LDS_TOK}
    v_add_u32 v8, s29, v9
    v_add_u32 v10, s29, v11
    """)
    def tld(i):
        if cfg.nold: return
        a(f"buffer_load_dwordx4 v[{32+4*i}:{35+4*i}], v{9 if i < 20 else 11}, {WS}, s28 offen offset:{(i%4)*1024}")
        if i % 4 == 3: a("s_add_u32 s28, s28, 4096" if i != 19 else "s_sub_u32 s28, s28, 16384")
        if cfg.pace: nop(cfg.pace)
    def twr(i):
        a(f"ds_write_b128 v{8 if i < 20 else 10}, v[{32+4*i}:{35+4*i}] offset:{(i%20)*1024}")
    lds_wait(7, F_MW, 4, 16, 27, sleep=1)
    for i in range(cfg.nA): tld(i)
    if cfg.wA:
        for i in range(cfg.wA):
            a(f"s_waitcnt vmcnt({cfg.nA-1-i})")
            twr(i)
    if cfg.trace: a("s_waitcnt vmcnt(0)")
    stamp(2)
    if cfg.nA < 40:
        lds_wait(7, F_L1D, 1, 16, 27, sleep=1)
        for i in range(cfg.nA, 40): tld(i)
    a("s_waitcnt vmcnt(0)")
    stamp(3)
    lds_wait(7, F_GST, 1, 16, 27, sleep=1)
    for i in range(cfg.wA, 40):
        if not cfg.nowr: twr(i)
    a("LV_C3b:")
    stamp(0)
    a(f"""
    s_waitcnt vmcnt(0)
    ds_write_b32 v7, v15 offset:{F_D3}
    """)
    stamp(1)
    stamp_commit([0, 1, 2, 3], 20)
    after_wait()
    a(f"""
    s_add_u32 s{S_S}, s{S_S}, 1
    s_cmp_lt_u32 s{S_S}, 63
    s_cbranch_scc1 LV_C3loop
    s_waitcnt vmcnt(0) lgkmcnt(0)
    """)
    stamp_dump([0, 1, 2, 3], 20, 20)
    a(f"""
    LM_end:
    s_endpgm
    """)
    a("LM_tail:")
    if not cfg.tail: a("s_endpgm")
    F_TS = 96
    nsync = [0]
    def wsync():
        a("s_waitcnt lgkmcnt(0)\ns_barrier")
    def tst(j, cyc=False):
        if cfg.ptrace: a(f"{'s_memtime' if cyc else 's_memrealtime'} s[{62+2*j}:{63+2*j}]\ns_waitcnt lgkmcnt(0)")
    X = 16; AC1 = 96; XF = 144; BR = 176; T = 144
    lanes()
    read_mode()
    srd(8, KA['b1'], 3072)
    a(f"""
    s_setprio 0
    v_mov_b32 v8, {LDS_MISC}
    s_lshl_b32 s21, s{S_WAVE}, 2
    v_add_u32 v9, s21, v8
    s_lshr_b32 s40, s{S_C}, 3
    s_sub_u32 s40, 3, s40
    s_lshl_b32 s21, s{S_X}, 2
    s_add_u32 s40, s40, s21
    s_and_b32 s41, s{S_C}, 7
    s_lshl_b32 s21, s40, 2
    s_add_u32 s21, s21, s{S_WAVE}
    s_mul_i32 s24, s21, 20480
    s_add_u32 s24, s24, {WS_X1}
    s_add_u32 s25, s24, 4096
    s_add_u32 s26, s25, 4096
    s_add_u32 s27, s26, 4096
    s_add_u32 s28, s27, 4096
    s_lshl_b32 s42, s41, 2
    s_add_u32 s42, s42, s{S_WAVE}
    s_mul_i32 s42, s42, 3
    s_mul_i32 s44, s42, 20480
    s_add_u32 s44, s44, {WS_W1F}
    s_add_u32 s45, s44, 20480
    s_add_u32 s46, s45, 20480
    s_mov_b32 s29, {WS_MOD + 3*2560}
    s_add_u32 s30, s29, 4096
    s_lshl_b32 s47, s{S_C}, 2
    s_add_u32 s47, s47, s{S_WAVE}
    s_mul_i32 s47, s47, 15360
    s_add_u32 s47, s47, {WS_W2F}
    s_add_u32 s43, s47, 7168
    v_lshlrev_b32 v9, 7, v0
    s_barrier
    """)
    tst(0); tst(10, True)
    dst(3)
    for i in range(5):
        a(f"buffer_load_dwordx4 v[{AC1+4*i}:{AC1+4*i+3}], v5, {WS}, s{29 if i < 4 else 30} offen offset:{(i%4)*1024} sc1")
    a(f"v_lshlrev_b32 v10, 3, v1\ns_lshl_b32 s31, s42, 5")
    for n in range(3): a(f"buffer_load_dwordx2 v[{250+2*n}:{251+2*n}], v10, {SA}, s31 offen offset:{n*32}")
    def bslot(k): k %= 12; return (BR + 12*k) if k < 6 else (X + 12*(k-6))
    def ldB(k):
        for n in range(3):
            r = bslot(k) + 4*n
            a(f"buffer_load_dwordx4 v[{r}:{r+3}], v5, {WS}, s{44+n} offen offset:{(k%4)*1024}")
        if k % 4 == 3: a("s_add_u32 s44, s44, 4096\ns_add_u32 s45, s45, 4096\ns_add_u32 s46, s46, 4096")
    def shadowx():
        for k in range(6): ldB(k)
        a(f"buffer_load_dword v248, v9, {WS}, s47 offen\nbuffer_load_dword v249, v9, {WS}, s43 offen")
        a(f"s_waitcnt vmcnt({3+20+20})\nv_add_u32 v11, {LDS_PAR}, v5\nv_cmp_le_u32 vcc, 32, v0\nv_mov_b32 v6, 1.0\ns_nop 0\nv_cndmask_b32 v6, 0, v6, vcc")
        for j in range(4): a(f"v_add_f32 v{AC1+8+j}, v6, v{AC1+8+j}")
        for j in range(8): a(f"v_add_f32 v{AC1+12+j}, 1.0, v{AC1+12+j}")
        for i in range(5): a(f"ds_write_b128 v11, v[{AC1+4*i}:{AC1+4*i+3}] offset:{i*1024}")
        for j in range(4): a(f"v_mov_b32 v{T+8+j}, 0x3f803f80")
    def compx(o, i):
        mfma32(T, T+8, X+4*i, T if i else None, o)
        mfma32(T+4, X+4*i, X+4*i, T+4 if i else None, o)
    gather([(X+4*k, 5, 24 + k//4, (k%4)*1024) for k in range(20)], 12, compx, depth=1, shadow=shadowx, young=20, rsleep=4)
    tst(1)
    a(f"""
    v_lshlrev_b32 v6, 2, v1
    v_sub_u32 v6, v2, v6
    v_mov_b32 v{T+12}, 0
    s_nop 2
    """)
    for j in range(4): a(f"v_cmp_eq_u32 vcc, {j}, v6\ns_nop 1\nv_cndmask_b32 v{T+12}, v{T+12}, v{T+4+j}, vcc")
    xlane("v_add_f32", T+12, T+13)
    a(f"""
    v_mul_f32 v{T}, {hex(f2u(1/640))}, v{T}
    v_mul_f32 v{T+12}, {hex(f2u(1/640))}, v{T+12}
    v_fma_f32 v{T+12}, -v{T}, v{T}, v{T+12}
    v_max_f32 v{T+12}, 0, v{T+12}
    v_add_f32 v{T+12}, {hex(f2u(1e-5))}, v{T+12}
    v_rsq_f32 v{T+2}, v{T+12}
    v_lshlrev_b32 v11, 5, v1
    v_add_u32 v11, {LDS_PAR}, v11
    v_mul_f32 v{T}, v{T}, v{T+2}
    s_mul_i32 s31, s{S_WAVE}, 20480
    v_add_u32 v13, s31, v5
    """)
    P = AC1
    def rdP(k):
        p = P + 16*(k % 3)
        a(f"""
        ds_read_b128 v[{p}:{p+3}], v11 offset:{k*128}
        ds_read_b128 v[{p+4}:{p+7}], v11 offset:{k*128+16}
        ds_read_b128 v[{p+8}:{p+11}], v11 offset:{2560+k*128}
        ds_read_b128 v[{p+12}:{p+15}], v11 offset:{2560+k*128+16}
        """)
    rdP(0); rdP(1)
    for k in range(20):
        p = P + 16*(k % 3)
        for j in range(4):
            a(f"v_lshlrev_b32 v{T+8+2*j}, 16, v{X+4*k+j}\nv_and_b32 v{T+9+2*j}, 0xffff0000, v{X+4*k+j}")
        for j in range(4):
            a(f"v_pk_fma_f32 v[{T+8+2*j}:{T+9+2*j}], v[{T+8+2*j}:{T+9+2*j}], v[{T+2}:{T+3}], v[{T}:{T+1}] op_sel_hi:[1,0,0] neg_lo:[0,0,1] neg_hi:[0,0,1]")
        a(f"s_waitcnt lgkmcnt({(4 if k < 19 else 0) + min(k, 2)})")
        for j in range(4):
            a(f"v_pk_fma_f32 v[{T+8+2*j}:{T+9+2*j}], v[{T+8+2*j}:{T+9+2*j}], v[{p+8+2*j}:{p+9+2*j}], v[{p+2*j}:{p+2*j+1}]")
        for j in range(4): cvt(X+4*k+j, T+8+2*j, T+9+2*j)
        if k + 2 < 20: rdP(k+2)
        a(f"ds_write_b128 v13, v[{X+4*k}:{X+4*k+3}] offset:{k*1024}")
    a("s_waitcnt lgkmcnt(0)")
    tst(2)
    for k in range(6, 12): ldB(k)
    wsync()
    tst(3)
    a("v_add_u32 v14, 40960, v5")
    def rdA(k):
        for tt in range(4):
            r = XF + 16*(k % 2) + 4*tt
            a(f"ds_read_b128 v[{r}:{r+3}], v{5 if tt < 2 else 14} offset:{(tt%2)*20480 + k*1024}")
    rdA(0)
    for k in range(20):
        if k < 19: rdA(k+1)
        a(f"s_waitcnt vmcnt({3*min(11, 19-k) + (2 if k < 6 else 0)}) lgkmcnt({4 if k < 19 else 0})")
        for n in range(3):
            for tt in range(4):
                d = AC1 + 16*n + 4*tt
                mfma32(d, bslot(k) + 4*n, XF + 16*(k % 2) + 4*tt, d if k else None)
        if k + 12 < 20: ldB(k + 12)
    tst(4)
    WB, HB, AC2 = 16, 176, 96
    a(f"""
    s_mul_i32 s21, s{S_WAVE}, 12288
    s_mul_i32 s48, s40, {4*49152}
    s_add_u32 s48, s48, {WS_HID}
    s_add_u32 s52, s48, s21
    s_mul_i32 s56, s41, {5*49152}
    s_add_u32 s56, s56, s21
    s_add_u32 s56, s56, {WS_W2F}
    """)
    for i in range(1, 4): a(f"s_add_u32 s{52+i}, s{51+i}, 49152")
    for i in range(1, 5): a(f"s_add_u32 s{56+i}, s{55+i}, 49152")
    def ldW(k):
        for j in range(5):
            r = WB + 20*(k % 4) + 4*j
            a(f"buffer_load_dwordx4 v[{r}:{r+3}], v5, {WS}, s{56+j} offen offset:{(k%4)*1024}")
        if k % 4 == 3:
            for j in range(5): a(f"s_add_u32 s{56+j}, s{56+j}, 4096")
    def ldH(k):
        for j in range(4):
            r = HB + 16*(k % 4) + 4*j
            a(f"buffer_load_dwordx4 v[{r}:{r+3}], v5, {WS}, s{52+j} offen offset:{(k%4)*1024} sc1")
        if k % 4 == 3:
            for j in range(4): a(f"s_add_u32 s{52+j}, s{52+j}, 4096")
    for k in range(4): ldW(k)
    K1 = 2*math.sqrt(2/math.pi)*math.log2(math.e)
    a(f"""
    s_mov_b32 s32, {hex(f2u(-K1*0.044715))}
    s_mov_b32 s33, s32
    v_mov_b32 v{T+16}, {hex(f2u(-K1))}
    """)
    sts = []
    for n in range(3):
        a(f"""
        v_lshlrev_b32 v{T+20}, 16, v{250+2*n}
        v_and_b32 v{T+21}, 0xffff0000, v{250+2*n}
        v_lshlrev_b32 v{T+22}, 16, v{251+2*n}
        v_and_b32 v{T+23}, 0xffff0000, v{251+2*n}
        s_add_u32 s34, s42, {n}
        s_lshr_b32 s35, s34, 1
        s_lshl_b32 s35, s35, 10
        s_and_b32 s34, s34, 1
        s_lshl_b32 s34, s34, 3
        s_add_u32 s35, s35, s34
        s_add_u32 s24, s35, s48
        s_add_u32 s25, s24, 49152
        s_add_u32 s26, s25, 49152
        s_add_u32 s27, s26, 49152
        """)
        d = AC1 + 16*n
        for h in range(8): a(f"v_pk_add_f32 v[{d+2*h}:{d+2*h+1}], v[{d+2*h}:{d+2*h+1}], v[{T+20+2*(h&1)}:{T+21+2*(h&1)}]")
        for h in range(8): a(f"v_pk_mul_f32 v[{T+2*h}:{T+2*h+1}], v[{d+2*h}:{d+2*h+1}], v[{d+2*h}:{d+2*h+1}]")
        for h in range(8): a(f"v_pk_fma_f32 v[{T+2*h}:{T+2*h+1}], v[{T+2*h}:{T+2*h+1}], s[32:33], v[{T+16}:{T+17}] op_sel_hi:[1,1,0]")
        for h in range(8): a(f"v_pk_mul_f32 v[{T+2*h}:{T+2*h+1}], v[{T+2*h}:{T+2*h+1}], v[{d+2*h}:{d+2*h+1}]")
        for h in range(16): a(f"v_exp_f32 v{T+h}, v{T+h}")
        for h in range(8): a(f"v_pk_add_f32 v[{T+2*h}:{T+2*h+1}], v[{T+2*h}:{T+2*h+1}], 1.0 op_sel_hi:[1,0]")
        for h in range(16): a(f"v_rcp_f32 v{T+h}, v{T+h}")
        for h in range(8): a(f"v_pk_mul_f32 v[{d+2*h}:{d+2*h+1}], v[{d+2*h}:{d+2*h+1}], v[{T+2*h}:{T+2*h+1}]")
        for tt in range(4):
            cvt(d+4*tt, d+4*tt, d+4*tt+1); cvt(d+4*tt+1, d+4*tt+2, d+4*tt+3)
        lstore([f"buffer_store_dwordx2 v[{d+4*tt}:{d+4*tt+1}], v5, {WS}, s{24+tt} offen" for tt in range(4)])
    tst(5)
    a(f"""
    s_lshl_b32 s21, s40, 9
    s_add_u32 s21, s21, {FLD}
    s_lshr_b32 s24, s41, 1
    s_lshl_b32 s24, s24, 7
    s_add_u32 s24, s24, s21
    s_and_b32 s25, s41, 1
    s_lshl_b32 s25, s25, 2
    s_add_u32 s25, s25, s{S_WAVE}
    s_lshl_b32 s25, s25, 2
    s_add_u32 s24, s24, s25
    s_lshl_b32 s25, s{S_WAVE}, 7
    s_add_u32 s21, s21, s25
    v_lshlrev_b32 v10, 2, v3
    v_add_u32 v10, s21, v10
    v_mov_b32 v6, 0
    v_mov_b32 v7, 1
    s_mov_b32 s26, 1
    s_waitcnt vmcnt(0)
    s_mov_b64 exec, 1
    """)
    lstore(f"buffer_store_dword v7, v6, {WS}, s24 offen")
    a("s_mov_b64 exec, -1")
    tst(6)
    wait_flags(11, 10, 26)
    tst(7)
    for k in range(4): ldH(k)
    srd(8, KA['b2'], 1280)
    srd(12, KA['out'], 2048*1280)
    for k in range(12):
        if k < 4: y = 4*(3-k) + 9*k
        else: y = 9*min(3, 11-k)
        a(f"s_waitcnt vmcnt({y})")
        for tt in range(4):
            for n in range(5):
                d = AC2 + 20*tt + 4*n
                mfma32(d, WB + 20*(k % 4) + 4*n, HB + 16*(k % 4) + 4*tt, d if k else None)
        if k + 4 < 12: ldW(k+4); ldH(k+4)
    tst(8)
    EA, EE = 16, 176
    a(f"""
    s_mul_i32 s24, s40, {4*20480}
    s_add_u32 s24, s24, {WS_X1}
    s_mov_b32 s25, {WS_MOD + 5*2560}
    s_mul_i32 s26, s41, 20
    s_lshl_b32 s27, s40, 6
    s_lshl_b32 s28, s{S_WAVE}, 6
    """)
    for i in range(5):
        b = EA + 2*i; e = EE + 8*i
        a(f"""
        s_add_u32 s21, s28, {256*i}
        v_add_u32 v30, s21, v0
        v_mul_u32_u24 v31, 3277, v30
        v_lshrrev_b32 v31, 16, v31
        v_mul_u32_u24 v32, 20, v31
        v_sub_u32 v32, v30, v32
        v_lshrrev_b32 v33, 4, v31
        v_and_b32 v34, 15, v31
        v_mul_u32_u24 v35, 20, v33
        v_add_u32 v35, v35, v32
        v_mul_u32_u24 v35, 272, v35
        v_lshl_add_u32 v{b}, v34, 4, v35
        v_add_u32 v32, s26, v32
        v_lshlrev_b32 v36, 3, v32
        v_add_u32 v35, s27, v31
        v_mul_u32_u24 v35, 1280, v35
        v_add_u32 v{b+1}, v35, v36
        v_mul_u32_u24 v35, 20480, v33
        v_lshl_add_u32 v35, v34, 4, v35
        v_lshrrev_b32 v37, 1, v32
        v_lshl_add_u32 v35, v37, 8, v35
        v_and_b32 v37, 1, v32
        v_lshl_add_u32 v35, v37, 3, v35
        v_lshlrev_b32 v37, 1, v36
        buffer_load_dwordx2 v[{e}:{e+1}], v35, {WS}, s24 offen sc1
        buffer_load_dwordx2 v[{e+2}:{e+3}], v36, {SA}, 0 offen
        buffer_load_dwordx4 v[{e+4}:{e+7}], v37, {WS}, s25 offen sc1
        """)
    wsync()
    a(f"""
    v_mul_u32_u24 v13, 272, v1
    v_lshl_add_u32 v13, v2, 4, v13
    s_mul_i32 s21, s{S_WAVE}, 21760
    v_add_u32 v13, s21, v13
    """)
    for j in range(20): a(f"ds_write_b128 v13, v[{AC2+4*j}:{AC2+4*j+3}] offset:{j*4*272}")
    wsync()
    for i in range(5):
        for w in range(4):
            r = AC2 + 16*i + 4*w
            a(f"ds_read_b128 v[{r}:{r+3}], v{EA+2*i} offset:{w*21760}")
        if i == 2: a("s_waitcnt lgkmcnt(4)")
    a("s_waitcnt vmcnt(0)")
    for i in range(5):
        r = AC2 + 16*i; e = EE + 8*i
        if i >= 2: a(f"s_waitcnt lgkmcnt({4*(4-i)})")
        for h in (0, 2):
            a(f"""
            v_pk_add_f32 v[{r+h}:{r+h+1}], v[{r+h}:{r+h+1}], v[{r+4+h}:{r+5+h}]
            v_pk_add_f32 v[{r+8+h}:{r+9+h}], v[{r+8+h}:{r+9+h}], v[{r+12+h}:{r+13+h}]
            v_lshlrev_b32 v30, 16, v{e+2+h//2}
            v_and_b32 v31, 0xffff0000, v{e+2+h//2}
            v_pk_add_f32 v[{r+h}:{r+h+1}], v[{r+h}:{r+h+1}], v[{r+8+h}:{r+9+h}]
            v_lshlrev_b32 v32, 16, v{e+h//2}
            v_and_b32 v33, 0xffff0000, v{e+h//2}
            v_pk_add_f32 v[{r+h}:{r+h+1}], v[{r+h}:{r+h+1}], v[30:31]
            v_pk_fma_f32 v[{r+h}:{r+h+1}], v[{r+h}:{r+h+1}], v[{e+4+h}:{e+5+h}], v[32:33]
            """)
        cvt(r, r, r+1); cvt(r+1, r+2, r+3)
        a(f"buffer_store_dwordx2 v[{r}:{r+1}], v{EA+2*i+1}, {SB}, 0 offen")
    a("s_waitcnt vmcnt(0)")
    tst(9); tst(11, True)
    if cfg.dtrace:
        dst(4)
        a(f"""
        s_load_dword s86, s[4:5], {WS_CAL - 64} glc
        s_waitcnt lgkmcnt(0)
        s_cmp_lg_u32 s{S_X}, 7
        s_cbranch_scc1 LM_end
        s_cmp_lg_u32 s{S_C}, 0
        s_cbranch_scc1 LM_end
        s_cmp_lg_u32 s{S_WAVE}, 0
        s_cbranch_scc1 LM_end
        v_mov_b32 v7, 0
        """)
        for j in range(5):
            a(f"s_sub_u32 s21, s{76+2*j}, s86\nv_mov_b32 v6, s21\nglobal_store_dword v7, v6, s[22:23] offset:{12+4*j}")
        a("s_waitcnt vmcnt(0)")
    if cfg.ptrace:
        pstamp(9)
        for j in range(12): a(f"v_mov_b32 v6, s{62+2*j}\nbuffer_store_dword v6, v7, {WS}, s92 offen offset:{4*(7+j)}")
        a("s_waitcnt vmcnt(0)")
    a("s_endpgm")

    for ls, lb, ins in slow:
        a(ls + ":")
        for i in ins: a(i)
        a(f"s_branch {lb}")
    for o in ool: a.lines += o.lines
    a('LM_codeend:\ns_endpgm')
    return kernel_head(name) + a.text(), kernel_desc(name, 256, 100, 256)
```

```python
import math, struct
from asmlib import *
from layout import *

def f2u(f): return struct.unpack('<I', struct.pack('<f', f))[0]
CSC = f2u(192 ** -0.5 * math.log2(math.e))
NEGBIG = f2u(-1e9 / (192 ** -0.5))
BIG = 1 << 20

S_WAVE, S_X, S_C, S_MODE, S_S = 16, 17, 18, 19, 20
S_CNT, S_LIM = 37, 38
WS = "s[4:7]"; SA = "s[8:11]"; SB = "s[12:15]"

def TRACE_EVENTS(vo, qk, qk10):
    return (('QK Wfree',qk,4),('QK scout',qk,3),('QK mready',qk,0),('QK B2',qk,1),('QK L1st',qk,2),('QK dmadone',qk,6),('QK C3done',qk10,5),
            ('VOW free',vo,16),('VOW mst',vo,17),('VOW gath',vo,18),('VOW MW',vo,19),('VO ldA',vo,22),('VO ldB',vo,23),('VO0 scout',vo,4),('VO Yseen',vo,3),
            ('VO0 L1done',vo,0),('VO1 L1done',vo,8),('VO wrdone',vo,21),('VO Gst',vo,1),('VO Gissue',vo,10),('VO Mst',vo,9))
def NT(x): return ' nt' if x else ''
class Cfg:
    dbg = 0
    trace = 0
    fake_xcc = 0
    tokpath = 1
    nomfma = 0
    slQW = 4; slQC = 10; slQD = 8; slO = 1; slQ3 = 5
    n1 = 6; nA = 16; wA = 0
    depthG = 2; depthL1 = 3; depthM = 3; depthN = 3
    nG = 1; posG = 2; early = 0; lgN = 8; chkN = 5; dG = 0
    nL1 = 1; padL1 = 0
    nM = 1; dM = 14; pace = 0; nowr = 0; nold = 0; ntQ = 0; ntO = 0; ntV = 0; rotV = 1; dtrace = 0; tail = 1; fuse_ln = 1; warm = 1; ntW = 0; ntP = 0; prewarm = 0; precode = 1; light = 0; ptrace = 0; g2M = 25; g2L = 0; all12 = 1; dN1 = 16

def gen_main(cfg, name):
    a = Asm()
    slow = []
    ool = []

    def nop(n):
        while n > 0:
            k = min(n, 16); a(f"s_nop {k-1}"); n -= k

    def lstore(instrs):
        if isinstance(instrs, str): instrs = [instrs]
        ls, lb = a.label('slow'), a.label('back')
        a(f"s_cmp_lg_u32 s{S_MODE}, 0\ns_cbranch_scc1 {ls}")
        for i in instrs: a(i)
        a(lb + ":")
        slow.append((ls, lb, [(i[:-3] + " sc1 nt" if i.endswith(" nt") else i + " sc1") for i in instrs]))

    def timeout(done):
        a(f"s_sub_u32 s{S_CNT}, s{S_CNT}, 1\ns_cbranch_scc1 {done}")

    def after_wait():
        a(f"s_cmp_lt_i32 s{S_CNT}, 0\ns_cselect_b32 s{S_LIM}, 4, s{S_LIM}")

    def scout(vs, voff, soff, imm=0):
        lp, dn = a.label('sc'), a.label('scd')
        a(f"""
        v_mov_b32 v{vs}, -1
        s_mov_b64 exec, 1
        s_mov_b32 s{S_CNT}, s{S_LIM}
        {lp}:
        buffer_load_dword v{vs}, v{voff}, {WS}, s{soff} offen offset:{imm} sc1
        """)
        timeout(dn)
        a(f"""
        s_waitcnt vmcnt(1)
        v_cmp_eq_u32 vcc, -1, v{vs}
        s_cbranch_vccnz {lp}
        {dn}:
        s_mov_b64 exec, -1
        """)

    def nscout(vs, voff, sneed, sexec):
        lp, dn = a.label('ns'), a.label('nsd')
        a(f"""
        v_mov_b32 v{vs}, 0
        s_mov_b64 exec, s[{sexec}:{sexec+1}]
        s_mov_b32 s{S_CNT}, s{S_LIM}
        {lp}:
        buffer_load_dword v{vs}, v{voff}, {WS}, 0 offen sc1
        """)
        timeout(dn)
        a(f"""
        s_waitcnt vmcnt({cfg.depthN-1})
        v_cmp_gt_u32 vcc, s{sneed}, v{vs}
        s_cbranch_vccnz {lp}
        {dn}:
        s_mov_b64 exec, -1
        """)

    def lds_wait(vaddr, off, nflags, vtmp, sneed, extra=None, sleep=0):
        lp, dn, st = a.label('lw'), a.label('lwd'), a.label('lws')
        a(f"s_mov_b32 s{S_CNT}, s{S_LIM}")
        if sleep: a(f"s_branch {st}\n{lp}:\ns_sleep {sleep}\n{st}:")
        else: a(f"{lp}:")
        if nflags == 1: a(f"ds_read_b32 v{vtmp}, v{vaddr} offset:{off}")
        elif nflags == 2: a(f"ds_read_b64 v[{vtmp}:{vtmp+1}], v{vaddr} offset:{off}")
        else: a(f"ds_read_b128 v[{vtmp}:{vtmp+3}], v{vaddr} offset:{off}")
        ne = extra() if extra else 0
        timeout(dn)
        a(f"s_waitcnt lgkmcnt({ne})")
        if nflags == 2:
            a(f"v_min_u32 v{vtmp}, v{vtmp}, v{vtmp+1}")
        if nflags == 4:
            a(f"v_min3_u32 v{vtmp}, v{vtmp}, v{vtmp+1}, v{vtmp+2}\nv_min_u32 v{vtmp}, v{vtmp}, v{vtmp+3}")
        a(f"v_cmp_gt_u32 vcc, s{sneed}, v{vtmp}\ns_cbranch_vccnz {lp}\n{dn}:")

    def gather(loads, vchk, compute=None, depth=2, shadow=None, young=0, rsleep=0):
        rt, lp, ex, dn = a.label('gr'), a.label('g'), a.label('gx'), a.label('gd')
        n = len(loads)
        def issue(o):
            for (d, vo, so, im) in loads:
                o(f"buffer_load_dwordx4 v[{d}:{d+3}], v{vo}, {WS}, s{so} offen offset:{im} sc1")
        def chk(o, i):
            d = loads[i][0]
            if i == 0:
                o(f"v_max3_u32 v{vchk}, v{d}, v{d+1}, v{d+2}\nv_max_u32 v{vchk}, v{vchk}, v{d+3}")
            else:
                o(f"v_max3_u32 v{vchk}, v{vchk}, v{d}, v{d+1}\nv_max3_u32 v{vchk}, v{vchk}, v{d+2}, v{d+3}")
        issue(a)
        if shadow: shadow()
        for i in range(n):
            a(f"s_waitcnt vmcnt({n-1-i+young})")
            chk(a, i)
            if compute: compute(a, i)
        a(f"v_cmp_eq_u32 vcc, -1, v{vchk}\ns_cbranch_vccnz {rt}\n{dn}:")
        o = Asm(); o.uid = a.uid + 1000
        o(f"{rt}:\ns_mov_b32 s{S_CNT}, s{S_LIM}\n{lp}:\ns_mov_b64 exec, vcc")
        if rsleep: o(f"s_sleep {rsleep}")
        issue(o)
        o(f"s_sub_u32 s{S_CNT}, s{S_CNT}, 1\ns_cbranch_scc1 {ex}\ns_waitcnt vmcnt({n*(depth-1)})")
        for i in range(n): chk(o, i)
        o(f"v_cmp_eq_u32 vcc, -1, v{vchk}\ns_cbranch_vccnz {lp}\n{ex}:\ns_mov_b64 exec, -1")
        o(f"s_cmp_lt_i32 s{S_CNT}, 0\ns_cselect_b32 s{S_LIM}, 4, s{S_LIM}")
        if compute:
            for i in range(n): compute(o, i)
            o("s_nop 1")
        o(f"s_branch {dn}")
        ool.append(o)

    def gather2(loads, vchk, compute=None, shadow=None, pad=0):
        lp, dn = a.label('g2'), a.label('g2d')
        n = len(loads)
        def issue():
            for (d, vo, so, im) in loads:
                a(f"buffer_load_dwordx4 v[{d}:{d+3}], v{vo}, {WS}, s{so} offen offset:{im} sc1")
        issue()
        if shadow: shadow()
        nop(pad)
        a(f"s_mov_b32 s{S_CNT}, s{S_LIM}\n{lp}:")
        issue()
        timeout(dn)
        for i in range(n):
            d = loads[i][0]
            a(f"s_waitcnt vmcnt({2*n-1-i})")
            if i == 0: a(f"v_max3_u32 v{vchk}, v{d}, v{d+1}, v{d+2}\nv_max_u32 v{vchk}, v{vchk}, v{d+3}")
            else: a(f"v_max3_u32 v{vchk}, v{vchk}, v{d}, v{d+1}\nv_max3_u32 v{vchk}, v{vchk}, v{d+2}, v{d+3}")
            if compute: compute(a, i)
        a(f"v_cmp_eq_u32 vcc, -1, v{vchk}\ns_cbranch_vccnz {lp}\n{dn}:")

    def gather_blind(loads, vchk, compute, depth, pad=0):
        lp, ex = a.label('gb'), a.label('gbx')
        n = len(loads)
        for (d, vo, so, im) in loads:
            for j in range(4): a(f"v_mov_b32 v{d+j}, -1")
        a(f"s_mov_b32 s{S_CNT}, s{S_LIM}\ns_mov_b64 vcc, -1\n{lp}:\ns_mov_b64 exec, vcc")
        for (d, vo, so, im) in loads:
            a(f"buffer_load_dwordx4 v[{d}:{d+3}], v{vo}, {WS}, s{so} offen offset:{im} sc1")
        a(f"s_sub_u32 s{S_CNT}, s{S_CNT}, 1\ns_cbranch_scc1 {ex}")
        if pad: nop(pad)
        a(f"s_waitcnt vmcnt({min(63, n*(depth-1))})")
        for i in range(n):
            d = loads[i][0]
            if i == 0: a(f"v_max3_u32 v{vchk}, v{d}, v{d+1}, v{d+2}\nv_max_u32 v{vchk}, v{vchk}, v{d+3}")
            else: a(f"v_max3_u32 v{vchk}, v{vchk}, v{d}, v{d+1}\nv_max3_u32 v{vchk}, v{vchk}, v{d+2}, v{d+3}")
        a(f"v_cmp_eq_u32 vcc, -1, v{vchk}\ns_cbranch_vccnz {lp}\n{ex}:\ns_mov_b64 exec, -1")
        for i in range(n): compute(a, i)
        a("s_nop 1")

    def wait_flags(vtmp, voff, sneed, sleep=1):
        lp, dn = a.label('f'), a.label('fd')
        a(f"""
        s_mov_b32 s{S_CNT}, s{S_LIM}
        {lp}:
        buffer_load_dword v{vtmp}, v{voff}, {WS}, 0 offen sc1
        s_waitcnt vmcnt(0)
        v_cmp_gt_u32 vcc, s{sneed}, v{vtmp}
        s_cbranch_vccz {dn}
        """)
        timeout(dn)
        a(f"s_sleep {sleep}\ns_branch {lp}\n{dn}:")
        after_wait()

    def set_h(wave):
        sk = a.label('nohf')
        a(f"""
        s_cmp_lg_u32 s{S_WAVE}, {wave}
        s_cbranch_scc1 {sk}
        s_cmp_ge_u32 s46, 16
        s_cbranch_scc1 {sk}
        s_lshl_b32 s21, s46, 7
        s_add_u32 s21, s21, {FLH}
        v_mov_b32 v90, 0
        v_mov_b32 v91, 1
        s_mov_b64 exec, 1
        buffer_store_dword v91, v90, {WS}, s21 offen sc1
        s_mov_b64 exec, -1
        {sk}:
        """)
    def wait_h():
        a(f"""
        v_lshlrev_b32 v16, 7, v2
        v_add_u32 v16, {FLH}, v16
        s_mov_b32 s21, 1
        """)
        wait_flags(17, 16, 21)

    def srd(dst, karg, size):
        a(f"""
        s_load_dwordx2 s[{dst}:{dst+1}], s[0:1], {karg}
        s_mov_b32 s{dst+2}, {size}
        s_mov_b32 s{dst+3}, 0x20000
        s_waitcnt lgkmcnt(0)
        """)

    def mfma32(d, x, y, c, a=a): a(f"v_mfma_f32_16x16x32_bf16 v[{d}:{d+3}], v[{x}:{x+3}], v[{y}:{y+3}], " + (f"v[{c}:{c+3}]" if c is not None else "0"))
    def mfma16(d, x, y, c, a=a): a(f"v_mfma_f32_16x16x16_bf16 v[{d}:{d+3}], v[{x}:{x+1}], v[{y}:{y+1}], " + (f"v[{c}:{c+3}]" if c is not None else "0"))
    def cvt(d, x, y): a(f"v_cvt_pk_bf16_f32 v{d}, v{x}, v{y}")
    def san(d): a(f"v_min_u32 v{d}, -2, v{d}")

    def lanes():
        a("""
        v_lshrrev_b32 v1, 4, v0
        v_and_b32 v2, 15, v0
        v_and_b32 v3, 7, v0
        v_bfe_u32 v4, v0, 3, 1
        v_lshlrev_b32 v5, 4, v0
        """)

    def build_sel(vall, vA=None, vLo=None, vHi=None, t0=6, t1=7):
        a(f"""
        v_and_b32 v{t0}, 1, v0
        v_lshlrev_b32 v{t0}, 4, v{t0}
        v_mov_b32 v{t1}, 0x3f80
        v_lshlrev_b32 v{t0}, v{t0}, v{t1}
        v_lshrrev_b32 v{t1}, 1, v3
        """)
        for j in range(4):
            a(f"v_cmp_eq_u32 vcc, {j}, v{t1}\ns_nop 1\nv_cndmask_b32 v{vall+j}, 0, v{t0}, vcc")
        if vA is not None:
            a(f"v_and_b32 v{t0}, 1, v1\nv_cmp_eq_u32 vcc, v{t0}, v4\ns_nop 1")
            for j in range(4): a(f"v_cndmask_b32 v{vA+j}, 0, v{vall+j}, vcc")
        if vLo is not None:
            a(f"v_cmp_gt_u32 vcc, 2, v1\ns_nop 1")
            for j in range(4): a(f"v_cndmask_b32 v{vLo+j}, 0, v{vA+j}, vcc")
            a(f"v_cmp_le_u32 vcc, 2, v1\ns_nop 1")
            for j in range(4): a(f"v_cndmask_b32 v{vHi+j}, 0, v{vA+j}, vcc")

    def build_selm(vM, t0=6, t1=7):
        a(f"""
        v_and_b32 v{t0}, 1, v0
        v_lshlrev_b32 v{t0}, 4, v{t0}
        v_mov_b32 v{t1}, 0x3f80
        v_lshlrev_b32 v{t0}, v{t0}, v{t1}
        v_bfe_u32 v{t1}, v0, 1, 3
        """)
        for j in range(4):
            a(f"v_cmp_eq_u32 vcc, {2*j}, v{t1}\ns_nop 1\nv_cndmask_b32 v{vM+j}, 0, v{t0}, vcc")

    def xlane(op, v, t):
        a(f"""
        v_mov_b32 v{t}, v{v}
        s_nop 1
        v_permlane32_swap_b32 v{t}, v{v}
        {op} v{v}, v{v}, v{t}
        v_mov_b32 v{t}, v{v}
        s_nop 1
        v_permlane16_swap_b32 v{t}, v{v}
        {op} v{v}, v{v}, v{t}
        """)

    def read_mode():
        a(f"""
        v_mov_b32 v6, {LDS_MISC}
        ds_read_b32 v6, v6 offset:8
        s_waitcnt lgkmcnt(0)
        v_readfirstlane_b32 s{S_MODE}, v6
        """)

    def poll_counters(armed=True):
        lp, dn = a.label('pc'), a.label('pcd')
        a(f"""
        v_and_b32 v6, 7, v0
        v_lshlrev_b32 v6, 5, v6
        s_mov_b32 s{S_CNT}, s{S_LIM}
        {lp}:
        global_load_dword v7, v6, s[22:23] sc1
        s_waitcnt vmcnt(0)
        """)
        for x in range(8): a(f"v_readlane_b32 s{24+x}, v7, {x}")
        a("s_add_u32 s21, s24, s25")
        for x in range(2, 8): a(f"s_add_u32 s21, s21, s{24+x}")
        if armed: a("s_lshr_b32 s21, s21, 16")
        else: a("s_and_b32 s21, s21, 0xffff")
        a(f"s_cmp_ge_u32 s21, 256\ns_cbranch_scc1 {dn}")
        timeout(dn)
        a(f"s_sleep 8\ns_branch {lp}\n{dn}:")
        for x in range(8): a(f"s_and_b32 s{24+x}, s{24+x}, 0xffff")

    def mode_wave():
        poll_counters()
        a("s_mov_b32 s21, 0")
        for x in range(8):
            a(f"s_cmp_lg_u32 s{24+x}, 32\ns_cselect_b32 s21, 1, s21")
        a(f"""
        v_mov_b32 v6, {LDS_MISC}
        v_mov_b32 v7, s21
        ds_write_b32 v6, v7 offset:8
        s_waitcnt lgkmcnt(0)
        """)

    def stamp(e):
        if cfg.trace: a(f"s_memrealtime s[{70+2*e}:{71+2*e}]")
    def stampc(e):
        if cfg.trace: a(f"s_memtime s[{70+2*e}:{71+2*e}]")
    def stamp_commit(evs, vbase):
        if cfg.trace:
            a(f"s_waitcnt lgkmcnt(0)\ns_mov_b32 m0, s{S_S}\ns_nop 0")
            for e in evs: a(f"v_writelane_b32 v{vbase+e}, s{70+2*e}, m0")
    def stamp_dump(evs, vbase, slot0):
        if cfg.trace:
            a(f"""
            s_lshl_b32 s21, s{S_X}, 5
            s_add_u32 s21, s21, s{S_C}
            s_lshl_b32 s21, s21, 13
            s_add_u32 s21, s21, {WS_DBG + (1<<20)}
            v_lshlrev_b32 v6, 2, v0
            """)
            for e in evs:
                a(f"s_add_u32 s24, s21, {(slot0+e)*256}\nbuffer_store_dword v{vbase+e}, v6, {WS}, s24 offen")
            a("s_waitcnt vmcnt(0)")

    def pstamp(i, wait=True):
        if not cfg.ptrace: return
        a(f"""
        s_memrealtime s[90:91]
        s_lshl_b32 s92, s2, 3
        s_add_u32 s92, s92, s{S_WAVE}
        s_lshl_b32 s92, s92, 7
        s_add_u32 s92, s92, {WS_DBG + (3<<20) + 4*i}
        s_waitcnt lgkmcnt(0)
        v_mov_b32 v6, s90
        v_mov_b32 v7, 0
        buffer_store_dword v6, v7, {WS}, s92 offen
        """)
        if wait: a("s_waitcnt vmcnt(0)")
    def dst(j):
        if cfg.dtrace: a(f"s_memrealtime s[{76+2*j}:{77+2*j}]")
    a(f"""
    s_cmp_ge_u32 s2, 256
    s_cbranch_scc1 LM_end
    s_load_dwordx2 s[4:5], s[0:1], {KA['ws']}
    s_load_dwordx2 s[22:23], s[0:1], {KA['dbg']}
    s_getreg_b32 s{S_X}, hwreg(HW_REG_XCC_ID, 0, 4)
    v_lshrrev_b32 v1, 6, v0
    s_mov_b32 s6, {WS_SIZE}
    v_readfirstlane_b32 s{S_WAVE}, v1
    v_mov_b32 v89, v0
    v_and_b32 v0, 63, v0
    s_mov_b32 s7, 0x20000
    s_and_b32 s{S_X}, s{S_X}, 7
    s_mov_b32 s{S_LIM}, {BIG}
    s_mov_b32 s{S_MODE}, 0
    """)
    if cfg.fake_xcc:
        a(f"s_mul_i32 s{S_X}, s2, 7\ns_lshr_b32 s{S_X}, s{S_X}, 8")
    a(f"""
    s_waitcnt lgkmcnt(0)
    """)
    if cfg.ptrace: a("s_memrealtime s[94:95]")
    dst(0)
    a(f"""
    v_mov_b32 v90, 1
    s_lshl_b32 s21, s{S_X}, 5
    v_mov_b32 v91, s21
    s_cmp_lg_u32 s{S_WAVE}, 0
    s_cbranch_scc1 LM_notick0
    s_mov_b64 exec, 1
    global_atomic_add v92, v91, v90, s[22:23] sc0 sc1
    s_mov_b64 exec, -1
    LM_notick0:
    """)
    def warm(o):
        o(f"""
        s_cmp_lt_u32 s{S_WAVE}, 4
        s_cselect_b32 s29, {KA['Wv']}, {KA['Wo']}
        s_load_dwordx2 s[12:13], s[0:1], s29
        s_mov_b32 s14, {640*12288}
        s_mov_b32 s15, 0x20000
        v_and_b32 v80, 255, v89
        v_min_u32 v80, 239, v80
        v_mul_u32_u24 v81, 5462, v80
        v_lshrrev_b32 v81, 16, v81
        v_mul_u32_u24 v82, {12288 - 12*128}, v81
        s_lshr_b32 s30, s2, 3
        s_cmp_lt_u32 s{S_WAVE}, 4
        s_cbranch_scc1 LM_wv
        v_mov_b32 v82, 0
        s_mul_i32 s30, s30, 30720
        s_mul_i32 s29, s{S_X}, {4*245760}
        s_branch LM_wj
        LM_wv:
        s_mul_i32 s30, s30, {20*12288}
        s_mul_i32 s29, s{S_X}, 1536
        LM_wj:
        s_add_u32 s30, s30, s29
        v_lshl_add_u32 v82, v80, 7, v82
        s_waitcnt lgkmcnt(0)
        s_barrier
        buffer_load_dword v83, v82, s[12:15], s30 offen{NT(cfg.ntW)}
        """)
    NZ = (WS_L1R - WS_NG) // 1024; NM0 = (WS_MR - WS_NG) // 1024; NA = (WS_PR - WS_NG) // 1024
    srd(8, KA['mem0'], 10240)
    a(f"""
    s_lshl_b32 s24, s{S_WAVE}, 8
    s_add_u32 s24, s24, s2
    s_lshl_b32 s25, s24, 10
    s_add_u32 s26, s25, {WS_G - NA*1024}
    s_add_u32 s25, s25, {WS_NG}
    s_cmp_ge_u32 s24, {NA}
    s_cselect_b32 s25, s26, s25
    s_cmp_ge_u32 s24, {NA + 4*GSLOT//1024}
    s_cselect_b32 s25, {WS_SIZE}, s25
    s_cmp_ge_u32 s24, {NZ}
    s_cselect_b32 s26, -1, 0
    v_mov_b32 v8, s26
    v_mov_b32 v9, s26
    v_mov_b32 v10, s26
    v_mov_b32 v11, s26
    v_lshlrev_b32 v5, 4, v0
    s_sub_u32 s26, s24, {NM0}
    s_cmp_ge_u32 s26, 80
    s_cbranch_scc1 LM_nom0
    ; mem0 piece j = id%10 : chunk P = 64j + lane ; row = 2*((P>>2)&3) + (P&1) ; col = 16*(P>>4) + 8*((P>>1)&1)
    s_mul_i32 s27, s26, 205
    s_lshr_b32 s27, s27, 11
    s_mul_i32 s27, s27, 10
    s_sub_u32 s27, s26, s27
    s_lshl_b32 s27, s27, 7
    v_bfe_u32 v6, v0, 2, 2
    v_and_b32 v7, 1, v0
    v_lshl_add_u32 v6, v6, 1, v7
    v_mul_u32_u24 v6, 1280, v6
    v_lshrrev_b32 v7, 4, v0
    v_lshl_add_u32 v6, v7, 5, v6
    v_bfe_u32 v7, v0, 1, 1
    v_lshl_add_u32 v6, v7, 4, v6
    buffer_load_dwordx4 v[8:11], v6, {SA}, s27 offen
    s_waitcnt vmcnt(0)
    v_min_u32 v8, -2, v8
    v_min_u32 v9, -2, v9
    v_min_u32 v10, -2, v10
    v_min_u32 v11, -2, v11
    LM_nom0:
    buffer_store_dwordx4 v[8:11], v5, {WS}, s25 offen sc1
    """)
    if cfg.warm: warm(a)
    a(f"""
    s_waitcnt vmcnt({1 if cfg.warm else 0})
    s_cmp_lg_u32 s{S_WAVE}, 0
    s_cbranch_scc1 LM_notick
    v_readfirstlane_b32 s{S_C}, v92
    v_mov_b32 v2, 1
    s_and_b32 s{S_C}, s{S_C}, 0xffff
    s_cmp_lt_u32 s{S_C}, 32
    s_cbranch_scc1 LM_haverole
    v_mov_b32 v3, 8
    s_mov_b64 exec, 1
    global_atomic_add v4, v3, v2, s[22:23] sc0 sc1
    s_waitcnt vmcnt(0)
    v_readfirstlane_b32 s32, v4
    s_mov_b64 exec, -1
    """)
    poll_counters(False)
    a(f"s_mov_b32 s{S_X}, 0\ns_mov_b32 s{S_C}, 0")
    for x in range(8):
        nx = a.label('nx')
        a(f"""
        s_min_u32 s21, s{24+x}, 32
        s_sub_u32 s33, 32, s21
        s_cmp_ge_u32 s32, s33
        s_cbranch_scc1 {nx}
        s_mov_b32 s{S_X}, {x}
        s_add_u32 s{S_C}, s21, s32
        s_branch LM_haverole
        {nx}:
        s_sub_u32 s32, s32, s33
        """)
    a(f"""
    LM_haverole:
    v_mov_b32 v5, {LDS_MISC}
    v_mov_b32 v6, s{S_X}
    v_mov_b32 v7, s{S_C}
    ds_write_b64 v5, v[6:7]
    v_mov_b32 v6, 0
    v_lshl_add_u32 v5, v0, 2, v5
    s_mov_b32 exec_hi, 0
    ds_write_b32 v5, v6 offset:16
    s_mov_b64 exec, -1
    s_waitcnt lgkmcnt(0)
    LM_notick:
    s_barrier
    s_cmp_lg_u32 s{S_WAVE}, 0
    s_cbranch_scc1 LM_noarm
    v_mov_b32 v90, 0x10000
    s_mov_b64 exec, 1
    global_atomic_add v91, v90, s[22:23] sc1
    s_mov_b64 exec, -1
    LM_noarm:
    v_mov_b32 v5, {LDS_MISC}
    ds_read_b64 v[6:7], v5
    s_waitcnt lgkmcnt(0)
    v_readfirstlane_b32 s{S_X}, v6
    v_readfirstlane_b32 s{S_C}, v7
    s_nop 1
    s_and_b32 s{S_X}, s{S_X}, 7
    s_and_b32 s{S_C}, s{S_C}, 31
    """)
    if cfg.ptrace:
        pstamp(1, wait=False)
        a(f"v_mov_b32 v6, s94\ns_sub_u32 s92, s92, 4\nbuffer_store_dword v6, v7, {WS}, s92 offen")
        a(f"v_mov_b32 v6, s{S_C}\ns_add_u32 s92, s92, 60\nbuffer_store_dword v6, v7, {WS}, s92 offen")
    lanes()
    a(f"""
    s_cmp_lt_u32 s{S_C}, 20
    s_cbranch_scc1 LM_VO
    """)

    VW = 96; VA = 56; ACC = 40; VIDX = 39; VG = 24
    V_MG, V_ML, V_TOK, V_CHK, V_SC, V_OUT, V_OUT2, V_DMA = 8, 9, 10, 11, 12, 13, 14, 15
    V_MISC, V_MGL = 38, 37
    F_HO, F_MST, F_L1D, F_GST, F_MW, F_Y, F_TD, F_D2, F_D3, F_GIS = 16, 20, 24, 28, 32, 48, 64, 80, 84, 88
    def w_setup():
        a(f"""
        s_lshl_b32 s21, s{S_WAVE}, 10
        v_add_u32 v{V_MG}, s21, v5
        v_add_u32 v{V_ML}, {LDS_M}, v5
        v_mov_b32 v{VIDX}, 0x4444
        v_mov_b32 v6, 0xeeee
        v_and_b32 v7, 2, v0
        v_cmp_ne_u32 vcc, 0, v7
        s_mul_i32 s21, s{S_WAVE}, 10240
        s_nop 0
        v_cndmask_b32 v{VIDX}, v{VIDX}, v6, vcc
        v_mov_b32 v{V_MISC}, {LDS_MISC}
        v_add_u32 v{V_DMA}, s21, v5
        s_mul_i32 s40, s{S_X}, 10240
        s_add_u32 s40, s40, {WS_MR}
        """)
    def dma_tokens(sseg):
        a(f"""
        s_mul_i32 s24, s{sseg}, 40960
        s_add_u32 s24, s24, {WS_H}
        s_and_b32 s25, s{sseg}, 1
        s_mul_i32 s25, s25, 40960
        s_mul_i32 s26, s{S_WAVE}, 10240
        s_add_u32 s25, s25, s26
        """)
        for blk in range(3):
            a(f"s_add_u32 m0, s25, {LDS_TOK + blk*4096}")
            if blk: a("s_add_u32 s24, s24, 4096")
            else: a("s_nop 0")
            for i in range(4 if blk < 2 else 2):
                a(f"buffer_load_dwordx4 v{V_DMA}, {WS}, s24 offen offset:{i*1024} lds")
    def dma_tokens_all(sseg, lo=0, hi=40960):
        lp = a.label('dma')
        a(f"""
        s_mul_i32 s28, s{sseg}, 40960
        s_add_u32 s28, s28, {WS_H + lo}
        s_and_b32 s29, s{sseg}, 1
        s_mul_i32 s29, s29, 40960
        s_add_u32 s30, s29, {LDS_TOK + hi}
        s_add_u32 s29, s29, {LDS_TOK + lo}
        {lp}:
        s_mov_b32 m0, s29
        s_add_u32 s29, s29, 4096
        """)
        for i in range(4):
            a(f"buffer_load_dwordx4 v5, {WS}, s28 offen offset:{i*1024} lds")
        a(f"""
        s_add_u32 s28, s28, 4096
        s_cmp_lt_u32 s29, s30
        s_cbranch_scc1 {lp}
        """)
    def m_addr():
        a(f"""
        s_and_b32 s21, s{S_S}, 3
        s_mul_i32 s21, s21, {MSLOT}
        s_add_u32 s24, s21, s40
        s_add_u32 s25, s24, 4096
        s_add_u32 s26, s24, 8192
        """)
        for i in range(8): a(f"v_mov_b32 v{ACC+i}, 0")
    def smf(k):
        for t in range(2):
            w = VW + 80*t + 8*k
            a(f"v_smfmac_f32_16x16x64_bf16 v[{ACC+4*t}:{ACC+4*t+3}], v[{VA+4*k}:{VA+4*k+3}], v[{w}:{w+7}], v{VIDX}")
    def halfsum():
        for t in range(2):
            a(f"v_pk_add_f32 v[{ACC+4*t}:{ACC+4*t+1}], v[{ACC+4*t}:{ACC+4*t+1}], v[{ACC+4*t+2}:{ACC+4*t+3}]")
    def token_pass(w_is_A, pause_at=None, pause=None):
        def rd(k):
            for tt in range(2):
                s = VA + 4*((2*k+tt) % 10)
                a(f"ds_read_b128 v[{s}:{s+3}], v{V_TOK} offset:{tt*20480 + k*1024}")
        for k in range(4): rd(k)
        for k in range(20):
            if k == pause_at: pause()
            if k + 4 < 20:
                rd(k+4); a("s_waitcnt lgkmcnt(8)")
            else:
                a(f"s_waitcnt lgkmcnt({2*(19-k)})")
            for tt in range(2):
                s = VA + 4*((2*k+tt) % 10)
                for t in range(2):
                    w = VW + 80*t + 4*k
                    d = ACC + 8*t + 4*tt
                    if cfg.nomfma and k: continue
                    if w_is_A: mfma32(d, w, s, d if k else None)
                    else: mfma32(d, s, w, d if k else None)
        nop(8)
    def tok_base():
        a(f"""
        s_add_u32 s21, s{S_S}, 1
        s_and_b32 s27, s21, 1
        s_mul_i32 s24, s27, 40960
        v_add_u32 v{V_TOK}, s24, v5
        """)

    a(f"""
    s_sub_u32 s21, s{S_C}, 20
    s_mul_i32 s24, s21, 11
    s_lshr_b32 s24, s24, 5
    s_mul_i32 s25, s24, 3
    s_sub_u32 s42, s21, s25
    s_lshl_b32 s41, s{S_X}, 2
    s_add_u32 s41, s41, s24
    """)
    a(f"""
    v_lshrrev_b32 v8, 3, v0
    s_mul_i32 s21, s{S_WAVE}, 80
    v_add_u32 v8, s21, v8
    s_mov_b32 s21, 12288
    v_mul_lo_u32 v8, v8, s21
    s_mul_i32 s24, s41, 384
    s_lshl_b32 s25, s42, 7
    s_add_u32 s24, s24, s25
    v_lshl_add_u32 v8, v3, 4, v8
    v_add_u32 v8, s24, v8
    """)
    a(f"""
    v_lshrrev_b32 v6, 1, v1
    v_lshlrev_b32 v9, 4, v6
    v_and_b32 v6, 1, v1
    v_lshl_add_u32 v9, v6, 2, v9
    v_bfe_u32 v6, v0, 2, 1
    v_add_u32 v9, v9, v6
    v_lshl_add_u32 v9, v4, 3, v9
    v_lshlrev_b32 v9, 7, v9
    v_and_b32 v6, 3, v0
    v_lshl_add_u32 v9, v6, 3, v9
    s_lshl_b32 s21, s{S_WAVE}, 5
    v_add_u32 v9, s21, v9
    v_add_u32 v10, 40960, v9
    """)
    def stage_w(key):
        srd(8, KA[key], 640*12288)
        lp = a.label('stg')
        a(f"""
        s_mul_i32 s24, s{S_WAVE}, 10240
        s_mov_b32 s25, 0
        {lp}:
        s_mov_b32 m0, s24
        s_add_u32 s24, s24, 1024
        buffer_load_dwordx4 v8, {SA}, s25 offen{NT(cfg.ntQ)} lds
        s_add_u32 s25, s25, 98304
        s_cmp_lt_u32 s25, {98304*10}
        s_cbranch_scc1 {lp}
        """)
    def read_w(mat):
        sk = a.label('stgs')
        a(f"s_cmp_ge_u32 s{S_WAVE}, 4\ns_cbranch_scc1 {sk}")
        for k in range(20):
            for d in range(2):
                r = VW + 80*mat + 4*k + 2*d
                a(f"ds_read_b64_tr_b16 v[{r}:{r+1}], v{9 if k < 10 else 10} offset:{(k % 10)*4096 + d*256}")
        a(f"s_waitcnt lgkmcnt(0)\n{sk}:")
    LRED, LPAR, LTR = 81920, 98304, 104448
    XR = 176
    srd(8, KA['wmod'], 640*7680)
    srd(12, KA['c'], 1280)
    a(f"""
    s_mul_i32 s46, s{S_X}, 12
    s_add_u32 s46, s46, s{S_C}
    s_sub_u32 s46, s46, 20
    v_lshrrev_b32 v11, 3, v89
    v_mul_u32_u24 v12, 7680, v11
    v_lshl_add_u32 v12, v3, 4, v12
    v_lshlrev_b32 v11, 1, v11
    s_lshl_b32 s24, s46, 7
    s_cmp_lt_u32 s46, 60
    s_cselect_b32 s24, s24, {640*7680}
    """)
    for i in range(10):
        a(f"buffer_load_dwordx4 v[{16+4*i}:{19+4*i}], v12, {SA}, s24 offen{NT(cfg.ntP)}")
        a(f"buffer_load_ushort v{56+i}, v11, {SB}, 0 offen offset:{i*128}")
        if i < 9: a(f"s_add_u32 s24, s24, {64*7680}")
    srd(12, KA['x'], 2048*1280)
    a(f"""
    v_mov_b32 v13, 0x40000000
    v_cmp_gt_u32 s[48:49], 40, v0
    v_lshlrev_b32 v14, 5, v0
    s_lshl_b32 s24, s46, 3
    s_add_u32 s24, s24, s{S_WAVE}
    s_mul_i32 s24, s24, 1280
    v_cndmask_b32 v14, v13, v14, s[48:49]
    """)
    for i in range(3):
        a(f"buffer_load_dwordx4 v[{XR+8*i}:{XR+8*i+3}], v14, {SB}, s24 offen")
        a(f"buffer_load_dwordx4 v[{XR+8*i+4}:{XR+8*i+7}], v14, {SB}, s24 offen offset:16")
        if i < 2: a(f"s_add_u32 s24, s24, {96*8*1280}")
    stage_w('Wq')
    a("s_waitcnt vmcnt(16)")
    for i in range(10): a(f"v_lshlrev_b32 v{56+i}, 16, v{56+i}\nv_mul_f32 v{66+i}, {hex(f2u(-math.log2(math.e)))}, v{56+i}")
    for i in range(10): a(f"v_exp_f32 v{66+i}, v{66+i}")
    for i in range(10): a(f"v_add_f32 v{66+i}, 1.0, v{66+i}")
    for i in range(10): a(f"v_rcp_f32 v{66+i}, v{66+i}")
    for i in range(10): a(f"v_mul_f32 v{56+i}, v{56+i}, v{66+i}")
    for i in range(10): a(f"v_cvt_pk_bf16_f32 v{56+i}, v{56+i}, v{56+i}\nv_lshlrev_b32 v{56+i}, 16, v{56+i}")
    for i in range(10):
        for j in range(4):
            w = 16 + 4*i + j
            a(f"v_lshlrev_b32 v66, 16, v{w}\nv_and_b32 v67, 0xffff0000, v{w}")
            if i == 0: a(f"v_mul_f32 v{76+2*j}, v66, v56\nv_mul_f32 v{77+2*j}, v67, v56")
            else: a(f"v_fmac_f32 v{76+2*j}, v66, v{56+i}\nv_fmac_f32 v{77+2*j}, v67, v{56+i}")
    for j in range(8): a(f"v_add_f32_dpp v{76+j}, v{76+j}, v{76+j} row_ror:8 row_mask:0xf bank_mask:0xf")
    a(f"""
    v_lshlrev_b32 v12, 5, v3
    v_lshl_add_u32 v12, v1, 8, v12
    s_lshl_b32 s21, s{S_WAVE}, 10
    s_add_u32 s21, s21, {LRED}
    v_add_u32 v12, s21, v12
    ds_write_b128 v12, v[76:79]
    ds_write_b128 v12, v[80:83] offset:16
    s_waitcnt lgkmcnt(0)
    s_barrier
    s_cmp_eq_u32 s{S_WAVE}, 7
    s_cbranch_scc1 LQ_mode
    s_cmp_lg_u32 s{S_WAVE}, 4
    s_cbranch_scc1 LQ_mj
    v_lshlrev_b32 v12, 2, v0
    v_add_u32 v11, {LRED}, v12
    """)
    for i in range(32): a(f"ds_read_b32 v{16+i}, v11 offset:{i*256}")
    a("s_waitcnt lgkmcnt(0)")
    for st in (16, 8, 4, 2):
        for i in range(0, st, 2): a(f"v_pk_add_f32 v[{16+i}:{17+i}], v[{16+i}:{17+i}], v[{16+st+i}:{17+st+i}]")
    a(f"""
    v_add_f32 v16, v16, v17
    v_cvt_pk_bf16_f32 v16, v16, v16
    v_lshlrev_b32 v16, 16, v16
    s_lshl_b32 s24, s46, 8
    s_add_u32 s24, s24, {WS_MOD}
    s_cmp_lt_u32 s46, 60
    s_cselect_b32 s24, s24, {WS_SIZE}
    buffer_store_dword v16, v12, {WS}, s24 offen sc1
    s_branch LQ_mj
    LQ_mode:
    """)
    mode_wave()
    a(f"""
    LQ_mj:
    s_waitcnt vmcnt(0)
    s_barrier
    s_cmp_lg_u32 s{S_WAVE}, 4
    s_cbranch_scc1 LQ_mf
    s_lshl_b32 s21, s46, 7
    s_add_u32 s21, s21, {FLM}
    s_cmp_lt_u32 s46, 60
    s_cselect_b32 s21, s21, {WS_SIZE}
    v_mov_b32 v16, 0
    v_mov_b32 v17, 1
    s_mov_b64 exec, 1
    buffer_store_dword v17, v16, {WS}, s21 offen sc1
    s_mov_b64 exec, -1
    v_min_u32 v16, 59, v0
    v_lshlrev_b32 v16, 7, v16
    v_add_u32 v16, {FLM}, v16
    s_mov_b32 s21, 1
    """)
    wait_flags(17, 16, 21, sleep=4)
    a(f"s_mov_b32 s24, {WS_MOD}\ns_mov_b32 s25, {WS_MOD + 4096}\nv_add_u32 v11, {LPAR}, v5")
    for i in range(5): a(f"buffer_load_dwordx4 v[{16+4*i}:{19+4*i}], v5, {WS}, s{24 if i < 4 else 25} offen offset:{(i%4)*1024} sc1")
    for i in range(5): a(f"s_waitcnt vmcnt({4-i})\nds_write_b128 v11, v[{16+4*i}:{19+4*i}] offset:{i*1024}")
    a("s_waitcnt lgkmcnt(0)\nLQ_mf:")
    read_w(0)
    a("s_barrier")
    stage_w('Wk')
    a(f"v_min_u32 v7, 39, v0\nv_lshlrev_b32 v7, 6, v7\nv_add_u32 v7, {LPAR}, v7")
    for i in range(4): a(f"ds_read_b128 v[{48+4*i}:{51+4*i}], v7 offset:{i*16}")
    for i in range(4): a(f"ds_read_b128 v[{64+4*i}:{67+4*i}], v7 offset:{2560+i*16}")
    a(f"""
    v_min_u32 v12, 39, v0
    v_lshlrev_b32 v12, 8, v12
    s_lshl_b32 s26, s{S_WAVE}, 4
    s_add_u32 s26, s26, {LTR}
    v_add_u32 v12, s26, v12
    s_mov_b32 s27, 0
    s_waitcnt lgkmcnt(0)
    """)
    for i in range(0, 16, 2): a(f"v_pk_add_f32 v[{64+i}:{65+i}], v[{64+i}:{65+i}], 1.0 op_sel_hi:[1,0]")
    def rowsum(v, t):
        for r in (8, 4, 2, 1):
            a(f"s_nop 1\nv_add_f32_dpp v{v}, v{v}, v{v} row_ror:{r} row_mask:0xf bank_mask:0xf")
        xlane("v_add_f32", v, t)
    a("LQ_ln:")
    for i in range(8):
        a(f"v_lshlrev_b32 v{16+2*i}, 16, v{XR+i}\nv_and_b32 v{17+2*i}, 0xffff0000, v{XR+i}")
    for i in range(16): a(f"v_mov_b32 v{XR+i}, v{XR+8+i}")
    a("v_pk_add_f32 v[32:33], v[16:17], v[18:19]")
    for i in range(20, 32, 2): a(f"v_pk_add_f32 v[32:33], v[32:33], v[{i}:{i+1}]")
    a("v_add_f32 v32, v32, v33")
    rowsum(32, 33)
    a(f"v_mul_f32 v32, {hex(f2u(1/640))}, v32")
    for i in range(16, 32, 2): a(f"v_pk_add_f32 v[{i}:{i+1}], v[{i}:{i+1}], v[32:33] op_sel_hi:[1,0] neg_lo:[0,1] neg_hi:[0,1]")
    a("v_pk_mul_f32 v[34:35], v[16:17], v[16:17]")
    for i in range(18, 32, 2): a(f"v_pk_fma_f32 v[34:35], v[{i}:{i+1}], v[{i}:{i+1}], v[34:35]")
    a("v_add_f32 v34, v34, v35\nv_cndmask_b32 v34, 0, v34, s[48:49]")
    rowsum(34, 35)
    a(f"""
    v_mov_b32 v35, {hex(f2u(1e-5))}
    v_fmac_f32 v35, {hex(f2u(1/640))}, v34
    v_rsq_f32 v34, v35
    s_nop 0
    """)
    for i in range(0, 16, 2): a(f"v_pk_mul_f32 v[{16+i}:{17+i}], v[{16+i}:{17+i}], v[34:35] op_sel_hi:[1,0]")
    for i in range(0, 16, 2): a(f"v_pk_fma_f32 v[{16+i}:{17+i}], v[{16+i}:{17+i}], v[{64+i}:{65+i}], v[{48+i}:{49+i}]")
    for j, d in enumerate([0, 4, 1, 5, 2, 6, 3, 7]): cvt(40+j, 16+2*d, 17+2*d)
    a(f"""
    s_mov_b64 exec, s[48:49]
    ds_write_b128 v12, v[40:43]
    ds_write_b128 v12, v[44:47] offset:128
    s_mov_b64 exec, -1
    v_add_u32 v12, 10240, v12
    s_add_u32 s27, s27, 1
    s_cmp_lt_u32 s27, 3
    s_cbranch_scc1 LQ_ln
    s_waitcnt lgkmcnt(0)
    s_barrier
    v_lshlrev_b32 v12, 4, v89
    v_add_u32 v12, {LTR}, v12
    """)
    for i in range(3):
        a(f"ds_read_b128 v[{16+8*i}:{19+8*i}], v12 offset:{i*10240}\nds_read_b128 v[{20+8*i}:{23+8*i}], v12 offset:{i*10240+8192}")
    a(f"""
    v_lshrrev_b32 v6, 3, v89
    v_lshlrev_b32 v6, 8, v6
    v_lshl_add_u32 v6, v3, 4, v6
    v_add_u32 v7, 16384, v6
    s_cmp_lt_u32 s{S_WAVE}, 2
    s_cselect_b32 s28, 0, 0x40000000
    v_add_u32 v7, s28, v7
    s_lshr_b32 s26, s46, 1
    s_mul_i32 s26, s26, 20480
    s_and_b32 s27, s46, 1
    s_lshl_b32 s27, s27, 7
    s_add_u32 s26, s26, s27
    s_add_u32 s26, s26, {WS_H}
    s_waitcnt lgkmcnt(0)
    """)
    for i in range(3):
        if i == 2: a("s_cmp_ge_u32 s46, 64\ns_cbranch_scc1 LQ_lnx")
        a(f"buffer_store_dwordx4 v[{16+8*i}:{19+8*i}], v6, {WS}, s26 offen sc1\nbuffer_store_dwordx4 v[{20+8*i}:{23+8*i}], v7, {WS}, s26 offen sc1")
        if i < 2: a(f"s_add_u32 s26, s26, {48*20480}")
    a("LQ_lnx:\ns_waitcnt vmcnt(0)\ns_barrier")
    set_h(4)
    read_w(1)
    a("s_barrier")
    a(f"""
    s_cmp_eq_u32 s{S_WAVE}, 4
    s_cbranch_scc1 LQ_C0
    s_cmp_eq_u32 s{S_WAVE}, 5
    s_cbranch_scc1 LQ_C1
    s_cmp_eq_u32 s{S_WAVE}, 6
    s_cbranch_scc1 LQ_C2
    s_cmp_eq_u32 s{S_WAVE}, 7
    s_cbranch_scc1 LQ_C3
    """)
    pstamp(2)
    w_setup()
    wait_h()
    a(f"""
    s_mov_b32 s28, 0
    """)
    dma_tokens(28)
    a("s_mov_b32 s28, 1")
    dma_tokens(28)
    a(f"""
    v_mul_u32_u24 v{V_OUT}, 384, v1
    v_lshl_add_u32 v{V_OUT}, v2, 4, v{V_OUT}
    s_mul_i32 s21, s{S_WAVE}, 1536
    s_add_u32 s21, s21, {LDS_QKM}
    v_add_u32 v{V_OUT}, s21, v{V_OUT}
    s_lshr_b32 s21, s{S_WAVE}, 1
    s_lshl_b32 s21, s21, 11
    s_and_b32 s24, s{S_WAVE}, 1
    s_lshl_b32 s24, s24, 3
    s_add_u32 s21, s21, s24
    s_add_u32 s21, s21, {LDS_QX}
    v_add_u32 v{V_OUT2}, s21, v5
    v_lshrrev_b32 v6, 1, v0
    v_lshlrev_b32 v6, 3, v6
    v_and_b32 v7, 1, v0
    v_add_u32 v6, v6, v7
    s_lshl_b32 s21, s{S_WAVE}, 1
    v_add_u32 v6, s21, v6
    s_lshl_b32 s21, s{S_X}, 5
    s_add_u32 s21, s21, s{S_C}
    s_lshl_b32 s21, s21, 7
    s_add_u32 s21, s21, {WS_NL}
    v_lshlrev_b32 v6, 2, v6
    v_add_u32 v36, s21, v6
    s_cmp_lt_u32 s{S_WAVE}, 2
    s_cselect_b32 s44, 63, 15
    s_mov_b32 s45, 0
    s_waitcnt vmcnt(0)
    s_barrier
    s_mov_b32 s{S_S}, -1
    s_branch LQ_Wtok
    LQ_Wloop:
    """)
    a("s_setprio 2")
    m_addr()
    stamp(4)
    for w in range(1, 4):
        a(f"s_cmp_eq_u32 s{S_WAVE}, {w}\ns_cbranch_scc1 LQ_W{w}")
    for w in range(4):
        own = [w, w+4] + ([w+8] if w < 2 else [])
        a(f"LQ_W{w}:")
        if cfg.nM: nscout(V_SC, 36, S_S, 44)
        else: scout(V_SC, V_MG, 24)
        stamp(3)
        if cfg.g2M: gather2([(VA+4*k, V_MG, 24+i, 0) for i, k in enumerate(own)], V_CHK, pad=cfg.g2M)
        else: gather([(VA+4*k, V_MG, 24+i, 0) for i, k in enumerate(own)], V_CHK, depth=cfg.depthM)
        for k in own: a(f"ds_write_b128 v{V_ML}, v[{VA+4*k}:{VA+4*k+3}] offset:{k*1024}")
        for k in own[:-1]: smf(k)
        a("s_waitcnt lgkmcnt(0)")
        stamp(0)
        a("s_barrier")
        if cfg.trace: a("s_waitcnt lgkmcnt(0)")
        oth = [k for k in range(10) if k not in own]
        for k in oth: a(f"ds_read_b128 v[{VA+4*k}:{VA+4*k+3}], v{V_ML} offset:{k*1024}")
        smf(own[-1])
        for i, k in enumerate(oth):
            a(f"s_waitcnt lgkmcnt({len(oth)-1-i})")
            smf(k)
        if w < 3: a("s_nop 5\ns_branch LQ_Wjoin")
        else: a("s_nop 6")
    a("LQ_Wjoin:")
    halfsum()
    cvt(ACC+8, ACC, ACC+1); cvt(ACC+9, ACC, ACC+1); cvt(ACC+10, ACC+4, ACC+5); cvt(ACC+11, ACC+4, ACC+5)
    a(f"""
    ds_write_b128 v{V_OUT}, v[{ACC+8}:{ACC+11}]
    s_waitcnt lgkmcnt(0)
    s_barrier
    s_setprio 0
    s_waitcnt vmcnt(0)
    """)
    after_wait()
    stamp_commit([0, 1, 2, 3, 4], 16)
    a(f"""
    s_cmp_eq_u32 s{S_S}, 63
    s_cbranch_scc1 LQ_Wend
    s_sleep {cfg.slQW}
    LQ_Wtok:
    """)
    tok_base()
    stampc(1)
    if cfg.trace: a("s_waitcnt lgkmcnt(0)")
    token_pass(True)
    stampc(2)
    a(f"s_lshl_b32 s27, s27, 13\nv_add_u32 v6, s27, v{V_OUT2}")
    for t in range(2):
        for tt in range(2):
            d = ACC + 8*t + 4*tt
            cvt(d, d, d+1); cvt(d+1, d+2, d+3)
            a(f"ds_write_b64 v6, v[{d}:{d+1}] offset:{t*4096 + tt*1024}")
    a(f"""
    s_waitcnt vmcnt(0) lgkmcnt(0)
    s_add_u32 s{S_S}, s{S_S}, 1
    s_branch LQ_Wloop
    LQ_Wend:
    """)
    if cfg.trace:
        a(f"s_cmp_lg_u32 s{S_WAVE}, 0\ns_cbranch_scc1 LM_tail")
        stamp_dump([0, 3, 4], 16, 0); stamp_dump([1, 2], 16, 8)
    a("s_branch LM_tail")

    KX, QM, KM, S0, S1, SM = 16, 32, 40, 48, 52, 56
    V_TR, V_A1, V_A2, V_QXR = 8, 9, 10, 11
    def trbase(v):
        a(f"""
        v_and_b32 v6, 3, v0
        v_mul_u32_u24 v{v}, 384, v6
        v_lshrrev_b32 v6, 2, v0
        v_lshl_add_u32 v{v}, v6, 4, v{v}
        v_add_u32 v{v}, {LDS_QKM}, v{v}
        """)
    a("LQ_C0:\ns_setprio 3")
    trbase(V_TR)
    a(f"""
    v_bfe_u32 v12, v0, 2, 2
    v_and_b32 v6, 1, v0
    v_lshl_add_u32 v12, v12, 1, v6
    v_bfe_u32 v13, v0, 1, 1
    v_lshlrev_b32 v{V_A2}, 4, v12
    s_and_b32 s21, s41, 1
    s_lshl_b32 s21, s21, 7
    v_add_u32 v{V_A2}, s21, v{V_A2}
    v_and_b32 v6, 1, v1
    v_lshl_add_u32 v{V_A1}, v6, 3, v{V_A2}
    v_lshl_add_u32 v{V_A2}, v1, 2, v{V_A2}
    v_lshrrev_b32 v6, 1, v1
    v_lshl_add_u32 v{V_A1}, v6, 8, v{V_A1}
    s_cmp_eq_u32 s42, 2
    s_cselect_b32 s24, 9, 10
    s_lshl_b32 s25, s42, 9
    s_cmp_eq_u32 s42, 2
    s_cselect_b32 s25, 2048, s25
    v_lshlrev_b32 v6, s24, v13
    v_add_u32 v{V_A1}, v{V_A1}, v6
    v_add_u32 v{V_A1}, s25, v{V_A1}
    s_lshl_b32 s25, s42, 8
    s_add_u32 s25, s25, 3072
    v_add_u32 v{V_A2}, s25, v{V_A2}
    s_lshl_b32 s43, s{S_X}, 13
    s_bfe_u32 s21, s41, 0x10001
    s_lshl_b32 s21, s21, 12
    s_add_u32 s43, s43, s21
    s_add_u32 s43, s43, {WS_L1R}
    v_cmp_eq_u32 s[44:45], 1, v13
    v_mov_b32 v60, -1
    v_mov_b32 v61, -1
    s_lshl_b32 s21, s{S_X}, 12
    s_sub_u32 s24, s{S_C}, 20
    s_lshl_b32 s24, s24, 2
    s_add_u32 s21, s21, s24
    s_add_u32 s21, s21, {WS_NL}
    v_lshlrev_b32 v14, 7, v0
    v_add_u32 v14, s21, v14
    v_mov_b32 v6, 0x40000000
    v_cmp_gt_u32 vcc, 20, v0
    s_nop 1
    v_cndmask_b32 v14, v6, v14, vcc
    s_barrier
    """)
    read_mode()
    a(f"""
    s_mov_b32 s{S_S}, 0
    LQ_C0loop:
    s_and_b32 s21, s{S_S}, 1
    s_lshl_b32 s21, s21, 13
    s_add_u32 s21, s21, {LDS_QX + 4096}
    v_add_u32 v{V_QXR}, s21, v5
    s_and_b32 s21, s{S_S}, 3
    s_mul_i32 s24, s21, {L1SLOT}
    s_add_u32 s24, s24, s43
    s_xor_b32 s21, s21, 2
    s_mul_i32 s25, s21, {L1SLOT}
    s_add_u32 s25, s25, s43
    s_add_u32 s21, s{S_S}, 1
    v_mov_b32 v15, s21
    s_barrier
    """)
    for tt in range(2):
        for p in range(2):
            r = KX + 8*tt + 4*p
            a(f"ds_read_b128 v[{r}:{r+3}], v{V_QXR} offset:{p*2048 + tt*1024}")
    a("s_waitcnt vmcnt(0) lgkmcnt(0)")
    if cfg.nL1 == 2:
        nop(cfg.dN1*4)
        lstore(f"buffer_store_dword v15, v14, {WS}, 0 offen")
    a("s_barrier")
    stamp(1)
    if cfg.trace: a("s_waitcnt lgkmcnt(0)")
    for w in range(4): a(f"ds_read_b64_tr_b16 v[{QM+2*w}:{QM+2*w+1}], v{V_TR} offset:{w*1536}")
    for w in range(4): a(f"ds_read_b64_tr_b16 v[{KM+2*w}:{KM+2*w+1}], v{V_TR} offset:{w*1536+8}")
    if cfg.nL1 == 1: lstore(f"buffer_store_dword v15, v14, {WS}, 0 offen")
    a(f"s_waitcnt lgkmcnt(6)")
    mfma32(S0, KX, QM, None); mfma32(S1, KX+8, QM, None)
    a(f"s_waitcnt lgkmcnt(4)")
    mfma32(S0, KX+4, QM+4, S0); mfma32(S1, KX+12, QM+4, S1)
    a(f"s_waitcnt lgkmcnt(2)")
    mfma32(SM, KM, QM, None)
    a("s_waitcnt lgkmcnt(0)")
    mfma32(SM, KM+4, QM+4, SM)
    nop(4)
    cvt(S0, S0, S0+1); cvt(S0+1, S0+2, S0+3); cvt(S1, S1, S1+1); cvt(S1+1, S1+2, S1+3)
    cvt(SM, SM, SM+1)
    for i in range(2): a(f"v_cndmask_b32 v{S0+i}, v{S0+i}, v{S1+i}, s[44:45]")
    san(S0); san(S0+1); san(SM)
    lstore([f"buffer_store_dwordx2 v[{S0}:{S0+1}], v{V_A1}, {WS}, s24 offen",
            f"buffer_store_dword v{SM}, v{V_A2}, {WS}, s24 offen"])
    stamp(2)
    lstore([f"buffer_store_dwordx2 v[60:61], v{V_A1}, {WS}, s25 offen",
            f"buffer_store_dword v60, v{V_A2}, {WS}, s25 offen"])
    stamp_commit([1, 2], 64)
    a(f"""
    s_add_u32 s27, s{S_S}, 2
    s_cmp_gt_u32 s27, 63
    s_cbranch_scc1 LQ_C0nd
    s_sleep {cfg.slQD}
    """)
    if not cfg.nold: dma_tokens_all(27)
    a("LQ_C0nd:")
    if cfg.trace:
        a("s_waitcnt vmcnt(0)")
        stamp(6)
        stamp_commit([6], 64)
    a(f"""
    s_add_u32 s{S_S}, s{S_S}, 1
    s_cmp_lt_u32 s{S_S}, 63
    s_cbranch_scc1 LQ_C0loop
    s_waitcnt vmcnt(0)
    """)
    stamp_dump([1, 2, 6], 64, 0)
    a("s_endpgm")

    QX_, KX_, KM_, T = 16, 32, 48, 56
    a("LQ_C1:")
    if not cfg.tokpath: a("s_barrier\ns_endpgm")
    trbase(V_TR)
    a(f"""
    s_mul_i32 s43, s41, 3
    s_add_u32 s43, s43, s42
    s_lshl_b32 s44, s43, 7
    s_add_u32 s44, s44, {FL1}
    s_mul_i32 s43, s43, 5120
    s_add_u32 s43, s43, {WS_T1R}
    v_mov_b32 v9, 0
    v_lshlrev_b32 v12, 3, v0
    s_barrier
    """)
    read_mode()
    a(f"""
    s_mov_b32 s{S_S}, 0
    LQ_C1loop:
    s_and_b32 s21, s{S_S}, 1
    s_lshl_b32 s21, s21, 13
    s_add_u32 s21, s21, {LDS_QX}
    v_add_u32 v{V_QXR}, s21, v5
    s_and_b32 s21, s{S_S}, 3
    s_mul_i32 s24, s21, {T1SLOT}
    s_add_u32 s24, s24, s43
    s_add_u32 s25, s24, 4096
    s_add_u32 s26, s{S_S}, 1
    v_mov_b32 v10, s26
    s_barrier
    s_barrier
    s_cmp_eq_u32 s{S_S}, 63
    s_cbranch_scc1 LQ_C1ns
    s_sleep {cfg.slQC}
    LQ_C1ns:
    """)
    for tt in range(2):
        for p in range(2):
            a(f"ds_read_b128 v[{QX_+8*tt+4*p}:{QX_+8*tt+4*p+3}], v{V_QXR} offset:{p*2048 + tt*1024}")
            a(f"ds_read_b128 v[{KX_+8*tt+4*p}:{KX_+8*tt+4*p+3}], v{V_QXR} offset:{4096 + p*2048 + tt*1024}")
    for w in range(4): a(f"ds_read_b64_tr_b16 v[{KM_+2*w}:{KM_+2*w+1}], v{V_TR} offset:{w*1536+8}")
    a("s_waitcnt lgkmcnt(0)")
    tl = [(KX_, QX_), (KM_, QX_), (KX_, QX_+8), (KX_+8, QX_+8), (KM_, QX_+8)]
    for p in range(2):
        for i, (A_, B_) in enumerate(tl):
            mfma32(T+4*i, A_+4*p, B_+4*p, T+4*i if p else None)
    nop(8)
    lstore([(f"buffer_store_dwordx2 v[{T+4*i}:{T+4*i+1}], v12, {WS}, " if i in (1, 4) else f"buffer_store_dwordx4 v[{T+4*i}:{T+4*i+3}], v5, {WS}, ")
            + (f"s24 offen offset:{i*1024}" if i < 4 else "s25 offen") for i in range(5)])
    a("s_waitcnt vmcnt(0)\ns_mov_b64 exec, 1")
    lstore(f"buffer_store_dword v10, v9, {WS}, s44 offen")
    a(f"""
    s_mov_b64 exec, -1
    s_add_u32 s{S_S}, s{S_S}, 1
    s_cmp_lt_u32 s{S_S}, 64
    s_cbranch_scc1 LQ_C1loop
    s_waitcnt vmcnt(0)
    s_endpgm
    """)

    X0 = 16
    a("LQ_C2:")
    if not cfg.tokpath: a("s_barrier\ns_endpgm")
    a(f"""
    s_cmp_eq_u32 s42, 2
    s_cbranch_scc1 LQ_exit1
    s_mul_i32 s43, s41, {3*5120}
    s_add_u32 s43, s43, {WS_T1R}
    s_mul_i32 s21, s41, {3*128}
    s_add_u32 s21, s21, {FL1}
    v_min_u32 v8, 2, v0
    v_lshlrev_b32 v8, 7, v8
    v_add_u32 v8, s21, v8
    s_lshl_b32 s44, s41, 1
    s_add_u32 s44, s44, s42
    s_lshl_b32 s45, s44, 7
    s_add_u32 s45, s45, {FL2}
    s_mul_i32 s44, s44, 1536
    s_add_u32 s44, s44, {WS_PR}
    s_lshl_b32 s46, s42, 11
    s_mul_i32 s47, s42, 3072
    s_add_u32 s48, s47, 1024
    v_lshlrev_b32 v9, 3, v0
    v_mov_b32 v10, 0
    v_lshlrev_b32 v6, 2, v1
    s_lshl_b32 s21, s42, 4
    v_add_u32 v7, s21, v2
    """)
    for i in range(8):
        a(f"v_add_u32 v11, {16*(i>>2) + (i&3)}, v6\nv_cmp_le_u32 s[{50+2*i}:{51+2*i}], v11, v7")
    a(f"""
    v_mov_b32 v12, {NEGBIG}
    v_lshlrev_b32 v14, 2, v0
    s_mov_b32 s66, {CSC}
    s_mov_b32 s67, {CSC}
    s_barrier
    """)
    read_mode()
    a(f"""
    s_barrier
    s_barrier
    s_mov_b32 s{S_S}, 1
    LQ_C2loop:
    s_cmp_gt_u32 s{S_S}, 63
    s_cbranch_scc1 LQ_C2nb
    s_barrier
    s_barrier
    s_cmp_eq_u32 s{S_S}, 63
    s_cbranch_scc1 LQ_C2nb
    s_sleep {cfg.slQC}
    LQ_C2nb:
    s_sub_u32 s21, s{S_S}, 1
    s_and_b32 s21, s21, 3
    s_mul_i32 s24, s21, {T1SLOT}
    s_add_u32 s24, s24, s43
    s_mul_i32 s30, s21, {PSLOT}
    s_add_u32 s30, s30, s44
    v_mov_b32 v13, s{S_S}
    """)
    wait_flags(11, 8, S_S)
    for pp in range(3):
        for j, so in enumerate((46, 47, 48)):
            r = X0 + 12*pp + 4*j
            a(f"s_add_u32 s25, s24, s{so}")
            if j < 2: a(f"buffer_load_dwordx4 v[{r}:{r+3}], v5, {WS}, s25 offen sc1")
            else: a(f"buffer_load_dwordx2 v[{r}:{r+1}], v9, {WS}, s25 offen sc1")
        if pp < 2: a("s_add_u32 s24, s24, 5120")
    a("s_waitcnt vmcnt(3)")
    for i in range(0, 10, 2): a(f"v_pk_add_f32 v[{X0+i}:{X0+i+1}], v[{X0+i}:{X0+i+1}], v[{X0+12+i}:{X0+13+i}]")
    a("s_waitcnt vmcnt(0)")
    for i in range(0, 10, 2): a(f"v_pk_add_f32 v[{X0+i}:{X0+i+1}], v[{X0+i}:{X0+i+1}], v[{X0+24+i}:{X0+25+i}]")
    for i in range(8): a(f"v_cndmask_b32 v{X0+i}, v12, v{X0+i}, s[{50+2*i}:{51+2*i}]")
    def softmax_max(X, mx, t, sc):
        a(f"v_max3_f32 v{mx}, v{X}, v{X+1}, v{X+2}")
        for i in range(3, 9, 2): a(f"v_max3_f32 v{mx}, v{mx}, v{X+i}, v{X+i+1}")
        a(f"v_max_f32 v{mx}, v{mx}, v{X+9}")
        xlane("v_max_f32", mx, t)
        a(f"v_mul_f32 v{mx}, s{sc}, v{mx}")
    def pkarg(x, mx, sc):
        a(f"v_pk_fma_f32 v[{x}:{x+1}], v[{x}:{x+1}], s[{sc}:{sc+1}], v[{mx}:{mx+1}] op_sel_hi:[1,1,0] neg_lo:[0,0,1] neg_hi:[0,0,1]")
    softmax_max(X0, 52, 53, 66)
    for i in range(0, 10, 2): pkarg(X0+i, 52, 66)
    for i in range(10): a(f"v_exp_f32 v{X0+i}, v{X0+i}")
    a(f"v_pk_add_f32 v[52:53], v[{X0}:{X0+1}], v[{X0+2}:{X0+3}]")
    for i in range(4, 10, 2): a(f"v_pk_add_f32 v[52:53], v[52:53], v[{X0+i}:{X0+i+1}]")
    a("v_add_f32 v52, v52, v53")
    xlane("v_add_f32", 52, 53)
    a("v_rcp_f32 v52, v52\ns_nop 0")
    for i in range(0, 10, 2): a(f"v_pk_mul_f32 v[{X0+i}:{X0+i+1}], v[{X0+i}:{X0+i+1}], v[52:53] op_sel_hi:[1,0]")
    for i in range(5): cvt(X0+12+i, X0+2*i, X0+2*i+1)
    lstore([f"buffer_store_dwordx4 v[{X0+12}:{X0+15}], v5, {WS}, s30 offen",
            f"buffer_store_dword v{X0+16}, v14, {WS}, s30 offen offset:1024"])
    a("s_waitcnt vmcnt(0)\ns_mov_b64 exec, 1")
    lstore(f"buffer_store_dword v13, v10, {WS}, s45 offen")
    a(f"""
    s_mov_b64 exec, -1
    s_add_u32 s{S_S}, s{S_S}, 1
    s_cmp_lt_u32 s{S_S}, 65
    s_cbranch_scc1 LQ_C2loop
    s_waitcnt vmcnt(0)
    s_endpgm
    LQ_exit1:
    s_load_dwordx2 s[48:49], s[0:1], {KA['w1']}
    s_load_dwordx2 s[50:51], s[0:1], {KA['w2']}
    s_mov_b32 s10, {640*3072}
    s_mov_b32 s11, 0x20000
    v_add_u32 v9, {LDS_RL}, v5
    v_bfe_u32 v6, v0, 2, 2
    v_lshlrev_b32 v12, 7, v6
    v_and_b32 v6, 3, v0
    v_lshl_add_u32 v12, v6, 3, v12
    v_add_u32 v12, {LDS_RL}, v12
    v_lshrrev_b32 v13, 3, v0
    s_waitcnt lgkmcnt(0)
    s_barrier
    s_mov_b32 s{S_S}, 0
    LQ_rl:
    ; tile id = 32*s + head ; <480: w1 (kappa = id/24, nb = id%24) else w2 (kappa = id'/10, nb = id'%10)
    s_lshl_b32 s21, s{S_S}, 5
    s_add_u32 s21, s21, s41
    s_cmp_lt_u32 s21, 480
    s_cbranch_scc0 LQ_rl2
    s_mul_i32 s24, s21, 2731
    s_lshr_b32 s24, s24, 16
    s_mul_i32 s25, s24, 24
    s_sub_u32 s25, s21, s25
    s_mov_b64 s[8:9], s[48:49]
    s_mov_b32 s26, 3072
    s_mov_b32 s28, {20*1024}
    s_mov_b32 s27, {WS_W1F}
    s_mov_b32 s29, 1024
    s_mov_b32 s30, 512
    s_branch LQ_rlj
    LQ_rl2:
    s_sub_u32 s21, s21, 480
    s_mul_i32 s24, s21, 6554
    s_lshr_b32 s24, s24, 16
    s_mul_i32 s25, s24, 10
    s_sub_u32 s25, s21, s25
    s_mov_b64 s[8:9], s[50:51]
    s_mov_b32 s26, 1280
    s_mov_b32 s28, {48*1024}
    s_mov_b32 s27, {WS_W2F}
    s_mov_b32 s29, 512
    s_mov_b32 s30, 2048
    LQ_rlj:
    s_mul_i32 s31, s25, s28
    s_lshl_b32 s31, s31, 2
    s_add_u32 s27, s27, s31
    s_lshl_b32 s31, s24, 10
    s_add_u32 s27, s27, s31
    s_lshl_b32 s31, s24, 5
    v_add_u32 v8, s31, v13
    v_mul_lo_u32 v8, v8, s26
    v_lshl_add_u32 v8, v3, 4, v8
    s_lshl_b32 s31, s25, 7
    s_lshl_b32 s32, s26, 3
    v_mul_lo_u32 v10, v1, s29
    v_add_u32 v10, v10, v12
    v_add_u32 v11, s30, v10
    s_barrier
    s_barrier
    s_sleep {cfg.slQ3}
    """)
    for i in range(4):
        a(f"buffer_load_dwordx4 v[{16+4*i}:{19+4*i}], v8, {SA}, s31 offen{NT(cfg.ntP)}")
        if i < 3: a("s_add_u32 s31, s31, s32")
    a(f"s_cmp_eq_u32 s{S_S}, 0\ns_cbranch_scc1 LQ_rl0")
    for n in range(4):
        a(f"buffer_store_dwordx4 v[{32+4*n}:{35+4*n}], v5, {WS}, s33 offen sc1")
        if n < 3: a("s_add_u32 s33, s33, s34")
    a(f"LQ_rl0:\ns_mov_b32 s33, s27\ns_mov_b32 s34, s28\ns_waitcnt vmcnt(0)")
    for i in range(4): a(f"ds_write_b128 v9, v[{16+4*i}:{19+4*i}] offset:{i*1024}")
    for n in range(4):
        a(f"ds_read_b64_tr_b16 v[{32+4*n}:{33+4*n}], v10 offset:{n*32}")
        a(f"ds_read_b64_tr_b16 v[{34+4*n}:{35+4*n}], v11 offset:{n*32}")
    a(f"""
    s_waitcnt lgkmcnt(0)
    s_add_u32 s{S_S}, s{S_S}, 1
    s_cmp_lt_u32 s{S_S}, 31
    s_cbranch_scc1 LQ_rl
    s_endpgm
    """)

    a("LQ_C3:")
    a(f"""
    s_sub_u32 s21, s{S_C}, 20
    s_cmp_ge_u32 s21, 10
    s_cbranch_scc1 LM_end
    s_lshl_b32 s43, s21, 12
    s_add_u32 s43, s43, {WS_H + 2*40960}
    v_lshlrev_b32 v8, 6, v0
    s_mul_i32 s24, s{S_X}, 10
    s_add_u32 s24, s24, s21
    s_lshl_b32 s44, s24, 12
    s_add_u32 s44, s44, {WS_O}
    s_lshr_b32 s45, s24, 2
    s_and_b32 s46, s24, 3
    """)
    build_sel(16, 20)
    srd(8, KA['x'], 2048*1280)
    a(f"""
    v_and_b32 v6, 3, v2
    v_lshlrev_b32 v10, 3, v6
    v_and_b32 v6, 1, v1
    v_lshl_add_u32 v10, v6, 2, v10
    s_lshl_b32 s21, s45, 5
    v_add_u32 v10, s21, v10
    v_lshlrev_b32 v11, 2, v10
    v_lshrrev_b32 v6, 1, v1
    v_lshlrev_b32 v6, 2, v6
    v_lshrrev_b32 v7, 2, v2
    v_add_u32 v6, v6, v7
    s_lshl_b32 s21, s46, 3
    v_add_u32 v6, s21, v6
    ; x1 fragment offset v15 = (T>>4)*20480 + kappa*1024 + (16gc + (T&15))*16 + (g&1)*8
    v_and_b32 v7, 15, v6
    v_lshlrev_b32 v15, 4, v7
    v_and_b32 v7, 3, v2
    v_lshl_add_u32 v15, v7, 8, v15
    v_and_b32 v7, 1, v1
    v_lshl_add_u32 v15, v7, 3, v15
    s_lshr_b32 s21, s46, 1
    s_mul_i32 s21, s21, 20480
    s_lshl_b32 s24, s45, 10
    s_add_u32 s21, s21, s24
    v_add_u32 v15, s21, v15
    v_mul_u32_u24 v6, 1280, v6
    v_lshl_add_u32 v10, v10, 1, v6
    v_mov_b32 v28, -1
    v_mov_b32 v29, -1
    v_mov_b32 v30, -1
    v_mov_b32 v31, -1
    s_mov_b32 s21, s44
    s_add_u32 s24, s44, {8*OSLOT}
    LQ_armo:
    buffer_store_dwordx4 v[28:31], v5, {WS}, s21 offen sc1
    buffer_store_dwordx4 v[28:31], v5, {WS}, s21 offen offset:1024 sc1
    buffer_store_dwordx4 v[28:31], v5, {WS}, s21 offen offset:2048 sc1
    buffer_store_dwordx4 v[28:31], v5, {WS}, s21 offen offset:3072 sc1
    s_add_u32 s21, s21, {OSLOT}
    s_cmp_lt_u32 s21, s24
    s_cbranch_scc1 LQ_armo
    s_mov_b32 s21, {WS_X1 + 59*40960}
    LQ_armx:
    buffer_store_dwordx2 v[28:29], v15, {WS}, s21 offen sc1
    s_add_u32 s21, s21, 40960
    s_cmp_lt_u32 s21, {WS_X1 + 64*40960}
    s_cbranch_scc1 LQ_armx
    s_sub_u32 s47, s44, {WS_O}
    s_lshr_b32 s47, s47, 1
    s_add_u32 s47, s47, {WS_G + 4*GSLOT}
    s_mov_b32 s24, {WS_MOD + 2*640*4}
    s_waitcnt vmcnt(0)
    s_barrier
    buffer_load_dwordx4 v[24:27], v11, {WS}, s24 offen sc1
    buffer_load_dword v9, v8, {WS}, s43 offen
    s_mov_b32 s{S_S}, 0
    LQ_C3loop:
    s_cmp_gt_u32 s{S_S}, 63
    s_cbranch_scc1 LQ_C3nb
    s_barrier
    s_barrier
    s_sleep {cfg.slQ3}
    s_cmp_lt_u32 s{S_S}, 59
    s_cbranch_scc1 LQ_C3np
    s_cmp_eq_u32 s{S_S}, 63
    s_cbranch_scc1 LQ_C3nb
    s_sub_u32 s21, s{S_S}, 59
    s_mul_i32 s21, s21, 10
    s_add_u32 s21, s21, s{S_C}
    s_mul_i32 s21, s21, 49152
    s_add_u32 s21, s21, {WS_W1F - 20*49152}
    s_add_u32 s24, s21, 49152
    v_lshlrev_b32 v57, 7, v0
    LQ_pf:
    buffer_load_dword v56, v57, {WS}, s21 offen
    s_add_u32 s21, s21, 8192
    s_cmp_lt_u32 s21, s24
    s_cbranch_scc1 LQ_pf
    s_getpc_b64 s[48:49]
    LQ_pc:
    s_add_u32 s48, s48, LM_tail-LQ_pc
    s_addc_u32 s49, s49, 0
    s_sub_u32 s21, s{S_S}, 59
    s_lshl_b32 s21, s21, 13
    v_add_u32 v57, s21, v57
    v_min_u32 v57, LM_codeend-LM_tail, v57
    global_load_dword v56, v57, s[48:49]
    LQ_C3np:
    s_cmp_gt_u32 s{S_S}, 60
    s_cbranch_scc1 LQ_C3nb
    s_add_u32 s43, s43, 40960
    buffer_load_dword v9, v8, {WS}, s43 offen
    s_cmp_gt_u32 s{S_S}, 58
    s_cbranch_scc1 LQ_C3nb
    buffer_store_dwordx4 v[28:31], v5, {WS}, s47 offen sc1
    buffer_store_dwordx4 v[28:31], v5, {WS}, s47 offen offset:1024 sc1
    s_add_u32 s47, s47, {GSLOT}
    LQ_C3nb:
    """)
    if cfg.tokpath:
        a(f"""
        s_cmp_lt_u32 s{S_S}, 3
        s_cbranch_scc1 LQ_C3skip
        s_sub_u32 s26, s{S_S}, 3
        s_and_b32 s21, s26, 7
        s_mul_i32 s28, s21, {OSLOT}
        s_add_u32 s28, s28, s44
        s_mul_i32 s29, s26, {32*1280}
        s_add_u32 s30, s29, {WS_X1}
        buffer_load_dwordx2 v[12:13], v10, {SA}, s29 offen
        s_add_u32 s21, s26, 7
        s_and_b32 s21, s21, 7
        s_mul_i32 s31, s21, {OSLOT}
        s_add_u32 s31, s31, s44
        """)
        for i in range(4): a(f"buffer_store_dwordx4 v[28:31], v5, {WS}, s31 offen offset:{1024*i} sc1")
        def comp3(o, i): mfma32(48, 20, 32+4*i, 48 if i else None, o)
        gather([(32+4*i, 5, 28, 1024*i) for i in range(4)], 14, comp3, depth=1)
        a("""
        s_nop 1
        v_lshlrev_b32 v52, 16, v12
        v_and_b32 v53, 0xffff0000, v12
        v_lshlrev_b32 v54, 16, v13
        v_and_b32 v55, 0xffff0000, v13
        """)
        for i in range(4): a(f"v_fma_f32 v{52+i}, v{48+i}, v{24+i}, v{52+i}")
        cvt(52, 52, 53); cvt(53, 54, 55); san(52); san(53)
        a(f"buffer_store_dwordx2 v[52:53], v15, {WS}, s30 offen sc1\nLQ_C3skip:")
    a(f"""
    s_waitcnt vmcnt(0)
    """)
    _t = cfg.trace; cfg.trace = cfg.trace or cfg.light
    stamp(0)
    stamp_commit([0], 60)
    a(f"""
    s_add_u32 s{S_S}, s{S_S}, 1
    s_cmp_lt_u32 s{S_S}, {67 if cfg.tokpath else 61}
    s_cbranch_scc1 LQ_C3loop
    """)
    stamp_dump([0], 60, 5)
    pstamp(11)
    cfg.trace = _t
    a("s_endpgm")

    a(f"""
    LM_VO:
    """)
    BP, AP, AC = 8, 56, 104
    a(f"""
    s_and_b32 s41, s{S_WAVE}, 3
    s_mul_i32 s42, s41, 36864
    s_lshl_b32 s21, s{S_X}, 2
    s_add_u32 s41, s41, s21
    s_cmp_lt_u32 s{S_WAVE}, 4
    s_cbranch_scc1 LV_Wpro
    """)
    srd(8, KA['Wo'], 32*192*1280)
    srd(12, KA['Wv'], 640*12288)
    a(f"""
    v_lshrrev_b32 v6, 2, v0
    v_mul_u32_u24 v12, 1280, v6
    v_and_b32 v7, 3, v0
    v_lshl_add_u32 v12, v7, 4, v12
    s_mul_i32 s21, s41, 245760
    s_lshl_b32 s24, s{S_C}, 6
    s_add_u32 s21, s21, s24
    v_add_u32 v12, s21, v12
    s_add_u32 s24, s42, 24576
    s_mov_b32 s25, 0
    LV_wo:
    s_mov_b32 m0, s24
    s_add_u32 s24, s24, 1024
    buffer_load_dwordx4 v12, {SA}, s25 offen{NT(cfg.ntO)} lds
    s_add_u32 s25, s25, {16*1280}
    s_cmp_lt_u32 s25, {192*1280}
    s_cbranch_scc1 LV_wo
    v_lshrrev_b32 v6, 3, v0
    s_mov_b32 s21, 12288
    v_mul_lo_u32 v6, v6, s21
    s_mul_i32 s21, s41, 384
    v_add_u32 v6, s21, v6
    v_lshrrev_b32 v7, 5, v0
    v_lshlrev_b32 v7, 1, v7
    v_xor_b32 v7, v7, v3
    """)
    for ro in range(4):
        a(f"v_xor_b32 v13, {4*(ro>>1) + (ro&1)}, v7\nv_lshl_add_u32 v{8+ro}, v13, 4, v6\nv_add_u32 v{8+ro}, {8*ro*12288}, v{8+ro}")
    a(f"""
    s_mov_b32 s28, 0
    s_mov_b32 s29, 0
    LV_ld:
    s_mul_i32 s24, s{S_C}, {1 if cfg.rotV else 0}
    s_add_u32 s24, s24, s28
    s_sub_u32 s21, s24, 20
    s_cmp_ge_u32 s24, 20
    s_cselect_b32 s24, s21, s24
    s_mul_i32 s24, s24, {32*12288}
    s_add_u32 s25, s29, s42
    """)
    for ro in range(4):
        for jl in range(3):
            a(f"s_add_u32 m0, s25, {ro*3072 + jl*1024 - jl*128}\ns_nop 0")
            a(f"buffer_load_dwordx4 v{8+ro}, {SB}, s24 offen offset:{jl*128}{NT(cfg.ntV)} lds")
    a(f"""
    s_add_u32 s29, s29, 12288
    s_cmp_eq_u32 s29, 36864
    s_cselect_b32 s29, 0, s29
    s_add_u32 s28, s28, 1
    s_cmp_eq_u32 s28, 1
    s_cbranch_scc1 LV_ld
    s_waitcnt vmcnt(12)
    s_cmp_lg_u32 s28, 2
    s_cbranch_scc1 LV_ld2
    s_barrier
    LV_ld2:
    s_barrier
    s_cmp_lt_u32 s28, 20
    s_cbranch_scc1 LV_ld
    s_waitcnt vmcnt(0)
    s_barrier
    s_cmp_lg_u32 s{S_WAVE}, 7
    s_cbranch_scc1 LV_nomode
    """)
    mode_wave()
    wait_h()
    a(f"""
    LV_nomode:
    s_barrier
    s_cmp_eq_u32 s{S_WAVE}, 6
    s_cbranch_scc1 LV_C2
    s_cmp_eq_u32 s{S_WAVE}, 7
    s_cbranch_scc1 LV_C3
    s_branch LV_C01
    LV_Wpro:
    v_bfe_u32 v6, v0, 2, 2
    v_lshl_add_u32 v94, v1, 3, v6
    v_lshlrev_b32 v94, 6, v94
    v_and_b32 v7, 3, v0
    v_lshl_add_u32 v94, v7, 4, v94
    s_add_u32 s21, s42, 24576
    v_add_u32 v94, s21, v94
    v_bfe_u32 v6, v0, 1, 1
    v_lshl_add_u32 v6, v4, 1, v6
    v_mul_u32_u24 v6, 3072, v6
    v_bfe_u32 v7, v0, 2, 1
    v_lshl_add_u32 v6, v7, 9, v6
    v_and_b32 v7, 1, v0
    v_lshl_add_u32 v6, v7, 7, v6
    v_bfe_u32 v7, v0, 1, 3
    v_xor_b32 v7, v7, v1
    v_lshl_add_u32 v6, v7, 4, v6
    v_add_u32 v6, s42, v6
    v_xor_b32 v7, 64, v6
    s_barrier
    """)
    for t in range(2):
        for e in range(6):
            for d in range(2):
                r = BP + 24*t + 4*e + 2*d
                a(f"ds_read_b64_tr_b16 v[{r}:{r+1}], v94 offset:{e*2048 + d*256 + t*8}")
    if cfg.ptrace: a("s_memrealtime s[96:97]")
    a(f"""
    s_mov_b32 s28, 0
    s_mov_b32 s29, 0
    s_waitcnt lgkmcnt(0)
    LV_it:
    s_barrier
    v_add_u32 v2, s29, v6
    v_add_u32 v3, s29, v7
    """)
    AC = 80
    def rdA(d, e): a(f"ds_read_b128 v[{AP+4*e}:{AP+4*e+3}], v{2 + (e&1)} offset:{(e>>1)*1024 + d*256}")
    for e in range(6): rdA(0, e)
    a(f"""
    s_mul_i32 s26, s{S_C}, {1 if cfg.rotV else 0}
    s_add_u32 s26, s26, s28
    s_sub_u32 s21, s26, 20
    s_cmp_ge_u32 s26, 20
    s_cselect_b32 s26, s21, s26
    s_lshl_b32 s26, s26, 2
    s_add_u32 s29, s29, 12288
    s_cmp_eq_u32 s29, 36864
    s_cselect_b32 s29, 0, s29
    """)
    for e in range(6):
        a(f"s_waitcnt lgkmcnt(5)")
        for t in range(2): mfma32(AC+8*t, AP+4*e, BP+24*t+4*e, AC+8*t if e else None)
        rdA(1, e)
    for e in range(6):
        a(f"s_waitcnt lgkmcnt({5-e})")
        for t in range(2): mfma32(AC+8*t+4, AP+4*e, BP+24*t+4*e, AC+8*t+4 if e else None)
    a("s_add_u32 s28, s28, 1")
    nop(7)
    for t in range(2):
        for i in range(4): cvt(AC+8*t+i, AC+8*t+2*i, AC+8*t+2*i+1)
    a("s_set_gpr_idx_on s26, gpr_idx(DST)\ns_nop 0")
    for t in range(2):
        for i in range(4): a(f"v_mov_b32 v{VW+80*t+i}, v{AC+8*t+i}")
    a(f"""
    s_set_gpr_idx_off
    s_cmp_lt_u32 s28, 20
    s_cbranch_scc1 LV_it
    s_barrier
    """)
    lanes()
    if cfg.ptrace:
        pstamp(3)
        a(f"v_mov_b32 v6, s96\ns_sub_u32 s92, s92, 4\nbuffer_store_dword v6, v7, {WS}, s92 offen\ns_waitcnt vmcnt(0)")
    w_setup()
    a("s_mov_b32 s28, 0")
    dma_tokens(28)
    a("s_mov_b32 s28, 1")
    dma_tokens(28)
    a(f"""
    s_lshl_b32 s21, s{S_WAVE}, 9
    s_add_u32 s21, s21, {LDS_Y}
    v_lshlrev_b32 v6, 3, v0
    v_add_u32 v{V_OUT}, s21, v6
    s_lshl_b32 s21, s{S_WAVE}, 11
    s_add_u32 s21, s21, {LDS_U}
    v_add_u32 v{V_OUT2}, s21, v5
    v_add_u32 v{V_MGL}, {LDS_M}, v{V_MG}
    s_lshl_b32 s21, s{S_WAVE}, 2
    s_add_u32 s21, s21, {LDS_MISC}
    v_mov_b32 v36, s21
    s_waitcnt vmcnt(10)
    s_barrier
    s_mov_b32 s{S_S}, -1
    """)
    pstamp(4)
    dst(1)
    if cfg.dtrace: a("s_waitcnt lgkmcnt(0)")
    a(f"""
    s_branch LV_Wtok
    LV_Wloop:
    """)
    if cfg.ptrace:
        a(f"s_cmp_gt_u32 s{S_S}, 3\ns_cbranch_scc1 LV_nps")
        a(f"s_memrealtime s[90:91]\ns_waitcnt lgkmcnt(0)\nv_mov_b32 v6, s90\nv_mov_b32 v7, 0\ns_add_u32 s92, s92, 4\nbuffer_store_dword v6, v7, {WS}, s92 offen\nLV_nps:")
    a(f"""
    s_add_u32 s27, s{S_S}, 1
    v_mov_b32 v7, s27
    """)
    m_addr()
    stamp(0)
    lds_wait(V_MISC, F_MST, 1, 16, S_S, sleep=1)
    stamp(1)
    a(f"s_cmp_ge_u32 s{S_WAVE}, 2\ns_cbranch_scc1 LV_W2")
    gather([(VG, V_MG, 24, 0), (VG+4, V_MG, 25, 0), (VG+8, V_MG, 26, 0)], V_CHK, depth=1)
    a(f"ds_write_b128 v{V_MGL}, v[{VG+8}:{VG+11}] offset:8192\ns_branch LV_W3\nLV_W2:")
    gather([(VG, V_MG, 24, 0), (VG+4, V_MG, 25, 0)], V_CHK, depth=1)
    a(f"""
    LV_W3:
    ds_write_b128 v{V_MGL}, v[{VG}:{VG+3}]
    ds_write_b128 v{V_MGL}, v[{VG+4}:{VG+7}] offset:4096
    ds_write_b32 v36, v7 offset:{F_MW}
    """)
    stamp(2)
    lds_wait(V_MISC, F_MW, 4, 16, 27)
    stamp(3)
    if cfg.trace: a("s_waitcnt lgkmcnt(0)")
    for k in range(10): a(f"ds_read_b128 v[{VA+4*k}:{VA+4*k+3}], v{V_ML} offset:{k*1024}")
    for k in range(10):
        a(f"s_waitcnt lgkmcnt({9-k})")
        smf(k)
    a(f"s_and_b32 s21, s{S_S}, 3\ns_lshl_b32 s21, s21, 11\nv_add_u32 v6, s21, v{V_OUT}")
    nop(6)
    halfsum()
    cvt(ACC, ACC, ACC+1); cvt(ACC+1, ACC+4, ACC+5)
    a(f"""
    ds_write_b64 v6, v[{ACC}:{ACC+1}]
    ds_write_b32 v36, v7 offset:{F_Y}
    s_cmp_eq_u32 s{S_S}, 63
    s_cbranch_scc1 LV_Wend
    """)
    stamp_commit([0, 1, 2, 3], 20)
    lds_wait(V_MISC, F_D2, 2, 16, S_S, sleep=1)
    a("LV_Wtok:")
    tok_base()
    token_pass(False, cfg.n1, lambda: lds_wait(V_MISC, F_GST, 1, 16, 21, sleep=1))
    a(f"s_add_u32 s24, s21, 1\nv_mov_b32 v7, s24\nds_write_b32 v36, v7 offset:{F_TD}")
    a(f"s_and_b32 s21, s21, 3\ns_lshl_b32 s21, s21, 13\nv_add_u32 v6, s21, v{V_OUT2}")
    for t in range(2):
        d = ACC + 8*t
        cvt(d, d, d+1); cvt(d+1, d+2, d+3); cvt(d+2, d+4, d+5); cvt(d+3, d+6, d+7)
        a(f"ds_write_b128 v6, v[{d}:{d+3}] offset:{t*1024}")
    a(f"""
    s_waitcnt lgkmcnt(0)
    """)
    after_wait()
    a(f"""
    s_add_u32 s{S_S}, s{S_S}, 1
    s_branch LV_Wloop
    LV_Wend:
    s_waitcnt vmcnt(0) lgkmcnt(0)
    """)
    pstamp(10)
    dst(2)
    if cfg.trace:
        a(f"s_cmp_lg_u32 s{S_WAVE}, 0\ns_cbranch_scc1 LM_tail")
        stamp_dump([0, 1, 2, 3], 20, 16)
    a("s_branch LM_tail")

    SELM, SELA, SLO, SHI = 16, 20, 24, 28
    LD = 32
    D_ = 48
    PT, PMA, PMB = 60, 64, 66
    UF, YF = 68, 84
    ONES = 88
    OA = 92
    KEEP, SEND = 108, 112
    HO = 116
    LS = 128
    LG = 132
    MX = 14
    V_L3, V_UR, V_YR, V_GS, V_MS, V_HO, V_FL = 8, 9, 10, 120, 121, 122, 123
    a("LV_C01:\ns_setprio 3")
    build_sel(SELM, SELA, SLO, SHI)
    build_selm(SELM)
    a(f"""
    s_sub_u32 s41, s{S_WAVE}, 4
    v_cmp_eq_u32 vcc, 3, v1
    v_mov_b32 v6, 0x40000000
    s_nop 0
    v_cndmask_b32 v{V_L3}, v5, v6, vcc
    s_lshl_b32 s43, s{S_X}, 13
    s_lshl_b32 s21, s41, 12
    s_add_u32 s43, s43, s21
    s_add_u32 s43, s43, {WS_L1R}
    v_cmp_eq_u32 s[44:45], 1, v4
    v_cmp_eq_u32 s[64:65], 0, v4
    s_mov_b32 s66, {CSC}
    s_mov_b32 s67, {CSC}
    v_mov_b32 v{ONES}, 0x3f803f80
    v_mov_b32 v{ONES+1}, 0x3f803f80
    v_mov_b32 v{ONES+2}, 0x3f803f80
    v_mov_b32 v{ONES+3}, 0x3f803f80
    v_mov_b32 v{PMA+1}, 0
    v_mov_b32 v{PMB}, 0
    v_lshl_add_u32 v6, v1, 3, v3
    v_lshlrev_b32 v{V_GS}, 4, v6
    v_lshl_add_u32 v{V_GS}, v4, 3, v{V_GS}
    v_lshrrev_b32 v6, 1, v1
    v_lshlrev_b32 v{V_MS}, 4, v6
    v_bfe_u32 v6, v0, 1, 2
    v_lshl_add_u32 v{V_MS}, v6, 2, v{V_MS}
    v_lshl_add_u32 v{V_MS}, v4, 1, v{V_MS}
    v_and_b32 v6, 1, v0
    v_add_u32 v{V_MS}, v{V_MS}, v6
    v_lshlrev_b32 v{V_MS}, 4, v{V_MS}
    v_and_b32 v6, 1, v1
    v_lshl_add_u32 v{V_MS}, v6, 3, v{V_MS}
    v_add_u32 v{V_HO}, {LDS_HO}, v5
    v_mov_b32 v{V_FL}, {LDS_MISC}
    s_lshr_b32 s21, s{S_C}, 1
    s_lshl_b32 s46, s21, 14
    s_and_b32 s21, s{S_C}, 1
    s_lshl_b32 s21, s21, 12
    s_add_u32 s46, s46, s21
    s_add_u32 s46, s46, {WS_G}
    s_lshl_b32 s47, s{S_X}, 9
    s_mul_i32 s48, s{S_X}, 10240
    s_lshl_b32 s21, s{S_C}, 9
    s_add_u32 s48, s48, s21
    s_add_u32 s48, s48, {WS_MR}
    v_mov_b32 v124, -1
    v_mov_b32 v125, -1
    s_lshl_b32 s21, s{S_X}, 12
    s_add_u32 s21, s21, {WS_NL}
    s_lshl_b32 s24, s{S_C}, 7
    s_add_u32 s24, s24, s21
    s_mul_i32 s25, s41, {0 if cfg.all12 else 24}
    s_add_u32 s24, s24, s25
    v_lshlrev_b32 v6, 2, v0
    v_add_u32 v148, s24, v6
    s_mov_b64 s[68:69], {0xfff if cfg.all12 else 63}
    s_lshl_b32 s24, s{S_C}, 2
    s_add_u32 s24, s24, s21
    s_add_u32 s24, s24, {20*128}
    v_lshlrev_b32 v149, 7, v0
    v_add_u32 v149, s24, v149
    v_mov_b32 v7, 0x40000000
    v_cmp_gt_u32 vcc, 12, v0
    s_mul_i32 s24, s{S_X}, 20
    s_add_u32 s24, s24, s{S_C}
    v_cndmask_b32 v149, v7, v149, vcc
    s_lshr_b32 s51, s24, 6
    s_lshl_b32 s51, s51, 14
    s_and_b32 s24, s24, 63
    s_lshl_b32 s24, s24, 7
    s_add_u32 s51, s51, s24
    s_add_u32 s51, s51, {WS_NG}
    v_mul_u32_u24 v6, 20, v3
    v_add_u32 v6, s{S_C}, v6
    v_lshrrev_b32 v150, 6, v6
    v_lshlrev_b32 v150, 14, v150
    v_and_b32 v6, 63, v6
    v_lshl_add_u32 v150, v6, 7, v150
    v_lshl_add_u32 v150, v4, 13, v150
    s_add_u32 s24, s{S_X}, {WS_NG}
    v_add_u32 v150, s24, v150
    v_cmp_gt_u32 vcc, 16, v0
    s_nop 1
    v_cndmask_b32 v150, v7, v150, vcc
    s_barrier
    s_mov_b32 s50, 0
    s_cmp_eq_u32 s41, 0
    s_cbranch_scc1 LV_nocal
    s_lshl_b32 s21, s{S_X}, 5
    s_add_u32 s21, s21, s{S_C}
    s_lshr_b32 s24, s21, 6
    s_lshl_b32 s24, s24, 14
    s_and_b32 s21, s21, 63
    s_lshl_b32 s21, s21, 7
    s_add_u32 s24, s24, s21
    s_add_u32 s24, s24, {WS_CAL}
    s_add_u32 s25, s24, 8192
    v_mov_b32 v6, 0
    buffer_store_dword v6, v6, {WS}, s24 offen sc1
    buffer_store_dword v6, v6, {WS}, s25 offen sc1
    s_waitcnt vmcnt(0)
    s_memtime s[52:53]
    s_waitcnt lgkmcnt(0)
    buffer_load_dword v7, v6, {WS}, s24 offen sc1
    s_waitcnt vmcnt(0)
    s_memtime s[54:55]
    s_waitcnt lgkmcnt(0)
    buffer_load_dword v7, v6, {WS}, s25 offen sc1
    s_waitcnt vmcnt(0)
    s_memtime s[56:57]
    s_waitcnt lgkmcnt(0)
    s_sub_u32 s56, s56, s54
    s_sub_u32 s54, s54, s52
    s_cmp_lt_u32 s56, s54
    s_cselect_b32 s50, 8192, 0
    LV_nocal:
    """)
    read_mode()
    a(f"""
    s_add_u32 s51, s51, s50
    s_mov_b32 s{S_S}, 0
    s_cmp_lg_u32 s41, 0
    s_cbranch_scc1 LV_Cloop1
    """)
    for cw in range(2):
        a(f"""
        LV_Cloop{cw}:
        s_and_b32 s21, s{S_S}, 3
        s_mul_i32 s24, s21, {L1SLOT}
        s_add_u32 s24, s24, s43
        s_lshl_b32 s25, s21, 13
        s_add_u32 s25, s25, {LDS_U + cw*4096}
        v_add_u32 v{V_UR}, s25, v5
        s_lshl_b32 s25, s21, 11
        s_add_u32 s25, s25, {LDS_Y + cw*1024}
        v_lshlrev_b32 v6, 3, v0
        v_add_u32 v{V_YR}, s25, v6
        s_add_u32 s27, s{S_S}, 1
        v_mov_b32 v126, s27
        s_mul_i32 s32, s{S_S}, {GSLOT}
        s_add_u32 s32, s32, s46
        """)
        if cw == 0:
            a("s_add_u32 s32, s32, s47\ns_add_u32 s33, s32, 8192")
        else:
            a(f"""
            s_lshr_b32 s21, s32, 8
            s_and_b32 s21, s21, 8192
            s_xor_b32 s21, s21, s50
            s_add_u32 s34, s32, s21
            s_and_b32 s21, s27, 3
            s_mul_i32 s35, s21, {MSLOT}
            s_add_u32 s35, s35, s48
            s_xor_b32 s21, s21, 2
            s_mul_i32 s36, s21, {MSLOT}
            s_add_u32 s36, s36, s48
            s_and_b32 s21, s{S_S}, 1
            s_mul_i32 s58, s21, 49152
            s_add_u32 s59, s58, s51
            s_mul_i32 s62, s27, 0x01010101
            s_mov_b32 s63, s62
            """)
        lds_wait(V_FL, F_MW, 4, HO, 27, sleep=1)
        a("s_waitcnt vmcnt(0)")
        if cw == 1: a("s_mov_b64 s[60:61], 0")
        if cfg.nL1: nscout(11, 148, 27, 68)
        else: scout(11, 5, 24)
        nop(cfg.padL1)
        stamp(4)
        def rduy():
            for j in range(4): a(f"ds_read_b128 v[{UF+4*j}:{UF+4*j+3}], v{V_UR} offset:{j*1024}")
            for j in range(2): a(f"ds_read_b64 v[{YF+2*j}:{YF+2*j+1}], v{V_YR} offset:{j*512}")
            return 0
        def shadow1():
            if cw == 0: a(f"ds_write_b32 v{V_FL}, v126 offset:{F_L1D}")
            lds_wait(V_FL, F_Y, 4, HO, 27, extra=rduy)
            if cw == 1 and cfg.nG and cfg.posG == -1: a(f"buffer_store_byte v126, v150, {WS}, s58 offen sc1")
            stamp(3)
        def comp1(o, i):
            if i == 0: mfma32(D_+8, SELM, LD+12, None, o)
            if i == 1: mfma32(D_, SELA, LD, None, o)
            if i == 2: mfma32(D_+4, SELA, LD+4, None, o)
            if i == 3: mfma32(D_, SLO, LD+8, D_, o); mfma32(D_+4, SHI, LD+8, D_+4, o)
        l1loads = [(LD+12, V_L3, 24, 3072), (LD, 5, 24, 0), (LD+4, 5, 24, 1024), (LD+8, 5, 24, 2048)]
        if cfg.g2L: gather2(l1loads, 12, comp1, shadow=shadow1, pad=cfg.g2L-1)
        else: gather(l1loads, 12, comp1, shadow=shadow1, depth=cfg.depthL1, young=int(cw == 1 and cfg.nG and cfg.posG == -1))
        stamp(0)
        def notice(pos):
            if cw == 1 and cfg.nG and cfg.posG == pos:
                a(f"buffer_store_byte v126, v150, {WS}, s58 offen sc1")
        def spoll(pos):
            if cw == 1 and cfg.nG and (cfg.early >> pos) & 1:
                a("s_load_dwordx2 s[60:61], s[4:5], s59 glc")
        notice(0)
        nop(5)
        softmax_max(D_, MX, MX+1, 66)
        notice(1)
        ex = lambda i: a(f"v_exp_f32 v{D_+i}, v{D_+i}")
        pkarg(D_+8, MX, 66)
        pkarg(D_, MX, 66)
        ex(8); ex(9)
        pkarg(D_+2, MX, 66)
        cvt(PMA, D_+8, D_+9); cvt(PMB+1, D_+8, D_+9)
        pkarg(D_+4, MX, 66); pkarg(D_+6, MX, 66)
        mfma16(LS, ONES, PMA, None)
        ex(0); ex(1)
        mfma16(OA, YF, PMA, None)
        notice(2)
        ex(2); ex(3)
        mfma16(OA+4, YF, PMB, None)
        ex(4); ex(5)
        mfma16(OA+8, YF+2, PMA, None)
        ex(6); ex(7)
        mfma16(OA+12, YF+2, PMB, None)
        notice(3)
        spoll(0)
        for i in range(4): cvt(PT+i, D_+2*i, D_+2*i+1)
        a("s_nop 1")
        mfma32(LS, ONES, PT, LS)
        for j in range(4): mfma32(OA+4*j, UF+4*j, PT, OA+4*j)
        notice(4)
        spoll(1)
        a(f"s_nop 3\nv_rcp_f32 v{LS}, v{LS}\ns_mov_b64 exec, s[64:65]")
        pm = lambda d, x: a(f"v_pk_mul_f32 v[{d}:{d+1}], v[{x}:{x+1}], v[{LS}:{LS+1}] op_sel_hi:[1,0]")
        pm(KEEP, OA); pm(KEEP+2, OA+2); pm(SEND, OA+4); pm(SEND+2, OA+6)
        a("s_mov_b64 exec, s[44:45]")
        pm(SEND, OA+8); pm(SEND+2, OA+10); pm(KEEP, OA+12); pm(KEEP+2, OA+14)
        a("s_mov_b64 exec, -1")
        for i in range(4): a(f"v_add_f32_dpp v{KEEP+i}, v{SEND+i}, v{KEEP+i} row_ror:8 row_mask:0xf bank_mask:0xf")
        if cw == 0:
            def rdho():
                a(f"ds_read_b128 v[{HO}:{HO+3}], v{V_HO}")
                return 0
            lds_wait(V_FL, F_HO, 1, 15, 27, extra=rdho)
            for i in range(0, 4, 2): a(f"v_pk_add_f32 v[{KEEP+i}:{KEEP+i+1}], v[{KEEP+i}:{KEEP+i+1}], v[{HO+i}:{HO+i+1}]")
            cvt(KEEP, KEEP, KEEP+1); cvt(KEEP+1, KEEP+2, KEEP+3); san(KEEP); san(KEEP+1)
            a(f"""
            buffer_store_dwordx2 v[{KEEP}:{KEEP+1}], v{V_GS}, {WS}, s32 offen sc1
            buffer_store_dwordx2 v[{KEEP}:{KEEP+1}], v{V_GS}, {WS}, s33 offen sc1
            ds_write_b32 v{V_FL}, v126 offset:{F_GST}
            """)
            stamp(1)
        else:
            a(f"""
            ds_write_b128 v{V_HO}, v[{KEEP}:{KEEP+3}]
            ds_write_b32 v{V_FL}, v126 offset:{F_HO}
            """)
            if cfg.nG:
                a(f"""
                s_mov_b32 s{S_CNT}, s{S_LIM}
                LV_np:
                s_load_dwordx2 s[60:61], s[4:5], s59 glc
                s_sub_u32 s{S_CNT}, s{S_CNT}, 1
                s_cbranch_scc1 LV_npd
                s_waitcnt lgkmcnt({cfg.lgN})
                """)
                for _ in range(cfg.chkN):
                    a("s_cmp_eq_u64 s[60:61], s[62:63]\ns_cbranch_scc1 LV_npd\ns_nop 1")
                a("""
                s_cmp_eq_u64 s[60:61], s[62:63]
                s_cbranch_scc0 LV_np
                LV_npd:
                """)
            else:
                lds_wait(V_FL, F_GST, 1, 15, 27)
            nop(cfg.dG*4)
            stamp(2)
            def comp2(o, i): mfma32(D_, SELA, LG+4*i, D_ if i else None, o)
            def shadow2():
                a(f"ds_write_b32 v{V_FL}, v126 offset:{F_GIS}")
                if cfg.nM:
                    nop(cfg.dM*4)
                    lstore(f"buffer_store_dword v126, v149, {WS}, 0 offen")
            gather([(LG+4*i, 5, 34, 1024*i) for i in range(4)], 12, comp2, depth=cfg.depthG, shadow=shadow2, young=cfg.nM)
            nop(6)
            cvt(D_, D_, D_+1); cvt(D_+1, D_+2, D_+3); san(D_); san(D_+1)
            lstore(f"buffer_store_dwordx2 v[{D_}:{D_+1}], v{V_MS}, {WS}, s35 offen")
            a(f"ds_write_b32 v{V_FL}, v126 offset:{F_MST}")
            stamp(1)
            lstore(f"buffer_store_dwordx2 v[124:125], v{V_MS}, {WS}, s36 offen")
            if cfg.dbg:
                a(f"""
                s_cmp_lg_u32 s{S_X}, 0
                s_cbranch_scc1 LV_Cnd
                s_mul_i32 s21, s27, 10240
                s_lshl_b32 s25, s{S_C}, 9
                s_add_u32 s21, s21, s25
                s_add_u32 s21, s21, {WS_DBG}
                buffer_store_dwordx2 v[{D_}:{D_+1}], v{V_MS}, {WS}, s21 offen
                LV_Cnd:
                """)
        stamp(5)
        if cfg.trace: a("s_memtime s[82:83]")
        after_wait()
        stamp_commit([0, 1, 2, 3, 4, 5, 6], 160)
        a(f"""
        s_add_u32 s{S_S}, s{S_S}, 1
        s_cmp_lt_u32 s{S_S}, 63
        s_cbranch_scc1 LV_Cloop{cw}
        s_waitcnt vmcnt(0) lgkmcnt(0)
        """)
        stamp_dump([0, 1, 2, 3, 4, 5, 6], 160, 8*cw)
        a("s_endpgm")

    PTK, PMM, UU, YY, OO = 16, 48, 80, 112, 120
    a("LV_C2:")
    a(f"""
    s_lshl_b32 s21, s{S_X}, 10
    s_add_u32 s21, s21, {FL2}
    v_lshlrev_b32 v8, 7, v3
    v_add_u32 v8, s21, v8
    s_mul_i32 s43, s{S_X}, {8*1536}
    s_add_u32 s43, s43, {WS_PR}
    v_lshlrev_b32 v9, 2, v0
    v_lshlrev_b32 v10, 12, v4
    v_lshl_add_u32 v6, v3, 2, v1
    v_lshl_add_u32 v10, v6, 4, v10
    s_lshl_b32 s44, s{S_C}, 14
    s_lshl_b32 s21, s{S_X}, 9
    s_add_u32 s44, s44, s21
    s_add_u32 s44, s44, {WS_O}
    v_mov_b32 v7, {LDS_MISC}
    """)
    for j in range(8): a(f"v_mov_b32 v{PMM+4*j+1}, 0\nv_mov_b32 v{PMM+4*j+2}, 0")
    a(f"""
    s_barrier
    s_mov_b32 s{S_S}, 0
    LV_C2loop:
    s_add_u32 s27, s{S_S}, 1
    v_mov_b32 v15, s27
    s_cmp_lt_u32 s{S_S}, {2 if cfg.tokpath else 100}
    s_cbranch_scc0 LV_C2a
    ds_write_b32 v7, v15 offset:{F_D2}
    s_branch LV_C2c
    LV_C2a:
    s_sub_u32 s26, s{S_S}, 2
    s_add_u32 s30, s26, 1
    s_and_b32 s21, s26, 3
    s_mul_i32 s24, s21, {PSLOT}
    s_add_u32 s24, s24, s43
    s_lshl_b32 s25, s21, 13
    s_add_u32 s25, s25, {LDS_U}
    v_add_u32 v11, s25, v5
    s_lshl_b32 s25, s21, 11
    s_add_u32 s25, s25, {LDS_Y}
    v_lshlrev_b32 v6, 3, v0
    v_add_u32 v12, s25, v6
    s_and_b32 s21, s26, 7
    s_mul_i32 s28, s21, {OSLOT}
    s_add_u32 s28, s28, s44
    s_add_u32 s29, s28, 8192
    s_min_u32 s31, s27, 64
    s_min_u32 s32, s27, 63
    """)
    lds_wait(7, F_Y, 4, 136, 30, sleep=1)
    for j in range(8): a(f"ds_read_b128 v[{UU+4*j}:{UU+4*j+3}], v11 offset:{j*1024}")
    for j in range(4): a(f"ds_read_b64 v[{YY+2*j}:{YY+2*j+1}], v12 offset:{j*512}")
    a("s_waitcnt lgkmcnt(0)")
    lds_wait(7, F_MW, 4, 136, 31, sleep=1)
    wait_flags(13, 8, 30)
    for j in range(8):
        o = (j % 2)*1536
        a(f"buffer_load_dwordx4 v[{PTK+4*j}:{PTK+4*j+3}], v5, {WS}, s24 offen offset:{o} sc1")
        a(f"buffer_load_dword v{PMM+4*j}, v9, {WS}, s24 offen offset:{o+1024} sc1")
        if j % 2 == 1 and j < 7: a("s_add_u32 s24, s24, 3072")
    for h in range(4):
        a(f"s_waitcnt vmcnt({12-4*h})")
        for tau in range(2): a(f"v_mov_b32 v{PMM+8*h+4*tau+3}, v{PMM+8*h+4*tau}")
        if h == 3: a(f"ds_write_b32 v7, v15 offset:{F_D2}")
        for tau in range(2):
            for t in range(2):
                d = OO + 8*tau + 4*t
                mfma32(d, UU+8*h+4*t, PTK+8*h+4*tau, d if h else None)
        for tau in range(2):
            for t in range(2):
                d = OO + 8*tau + 4*t
                mfma16(d, YY+2*h, PMM+8*h+4*tau+2*t, d)
    nop(8)
    for tau in range(2):
        d = OO + 8*tau
        cvt(d, d, d+1); cvt(d+1, d+2, d+3); cvt(d+2, d+4, d+5); cvt(d+3, d+6, d+7)
        for i in range(4): san(d+i)
    lds_wait(7, F_GIS, 1, 13, 32, sleep=cfg.slO)
    a(f"""
    buffer_store_dwordx4 v[{OO}:{OO+3}], v10, {WS}, s28 offen sc1
    buffer_store_dwordx4 v[{OO+8}:{OO+11}], v10, {WS}, s29 offen sc1
    LV_C2c:
    s_add_u32 s{S_S}, s{S_S}, 1
    s_cmp_lt_u32 s{S_S}, 66
    s_cbranch_scc1 LV_C2loop
    s_waitcnt vmcnt(0) lgkmcnt(0)
    s_endpgm
    """)

    a("LV_C3:")
    a(f"""
    v_mov_b32 v7, {LDS_MISC}
    s_and_b32 s21, s{S_C}, 1
    s_mul_i32 s21, s21, 20480
    v_add_u32 v9, s21, v5
    s_sub_u32 s21, 20480, s21
    v_add_u32 v11, s21, v5
    s_barrier
    s_mov_b32 s{S_S}, 0
    LV_C3loop:
    s_add_u32 s27, s{S_S}, 1
    v_mov_b32 v15, s27
    """)
    a(f"""
    s_add_u32 s26, s{S_S}, 2
    s_cmp_gt_u32 s26, 63
    s_cbranch_scc1 LV_C3b
    """)
    a(f"""
    s_mul_i32 s28, s26, 40960
    s_add_u32 s28, s28, {WS_H}
    s_and_b32 s29, s26, 1
    s_mul_i32 s29, s29, 40960
    s_add_u32 s29, s29, {LDS_TOK}
    v_add_u32 v8, s29, v9
    v_add_u32 v10, s29, v11
    """)
    def tld(i):
        if cfg.nold: return
        a(f"buffer_load_dwordx4 v[{32+4*i}:{35+4*i}], v{9 if i < 20 else 11}, {WS}, s28 offen offset:{(i%4)*1024}")
        if i % 4 == 3: a("s_add_u32 s28, s28, 4096" if i != 19 else "s_sub_u32 s28, s28, 16384")
        if cfg.pace: nop(cfg.pace)
    def twr(i):
        a(f"ds_write_b128 v{8 if i < 20 else 10}, v[{32+4*i}:{35+4*i}] offset:{(i%20)*1024}")
    lds_wait(7, F_MW, 4, 16, 27, sleep=1)
    for i in range(cfg.nA): tld(i)
    if cfg.wA:
        for i in range(cfg.wA):
            a(f"s_waitcnt vmcnt({cfg.nA-1-i})")
            twr(i)
    if cfg.trace: a("s_waitcnt vmcnt(0)")
    stamp(2)
    if cfg.nA < 40:
        lds_wait(7, F_L1D, 1, 16, 27, sleep=1)
        for i in range(cfg.nA, 40): tld(i)
    a("s_waitcnt vmcnt(0)")
    stamp(3)
    lds_wait(7, F_GST, 1, 16, 27, sleep=1)
    for i in range(cfg.wA, 40):
        if not cfg.nowr: twr(i)
    a("LV_C3b:")
    stamp(0)
    a(f"""
    s_waitcnt vmcnt(0)
    ds_write_b32 v7, v15 offset:{F_D3}
    """)
    stamp(1)
    stamp_commit([0, 1, 2, 3], 20)
    after_wait()
    a(f"""
    s_add_u32 s{S_S}, s{S_S}, 1
    s_cmp_lt_u32 s{S_S}, 63
    s_cbranch_scc1 LV_C3loop
    s_waitcnt vmcnt(0) lgkmcnt(0)
    """)
    stamp_dump([0, 1, 2, 3], 20, 20)
    a(f"""
    LM_end:
    s_endpgm
    """)
    a("LM_tail:")
    if not cfg.tail: a("s_endpgm")
    F_TS = 96
    nsync = [0]
    def wsync():
        a("s_waitcnt lgkmcnt(0)\ns_barrier")
    def tst(j, cyc=False):
        if cfg.ptrace: a(f"{'s_memtime' if cyc else 's_memrealtime'} s[{62+2*j}:{63+2*j}]\ns_waitcnt lgkmcnt(0)")
    X = 16; AC1 = 96; XF = 144; BR = 176; T = 144
    lanes()
    read_mode()
    srd(8, KA['b1'], 3072)
    a(f"""
    s_setprio 0
    v_mov_b32 v8, {LDS_MISC}
    s_lshl_b32 s21, s{S_WAVE}, 2
    v_add_u32 v9, s21, v8
    s_lshr_b32 s40, s{S_C}, 3
    s_sub_u32 s40, 3, s40
    s_lshl_b32 s21, s{S_X}, 2
    s_add_u32 s40, s40, s21
    s_and_b32 s41, s{S_C}, 7
    s_lshl_b32 s21, s40, 2
    s_add_u32 s21, s21, s{S_WAVE}
    s_mul_i32 s24, s21, 20480
    s_add_u32 s24, s24, {WS_X1}
    s_add_u32 s25, s24, 4096
    s_add_u32 s26, s25, 4096
    s_add_u32 s27, s26, 4096
    s_add_u32 s28, s27, 4096
    s_lshl_b32 s42, s41, 2
    s_add_u32 s42, s42, s{S_WAVE}
    s_mul_i32 s42, s42, 3
    s_mul_i32 s44, s42, 20480
    s_add_u32 s44, s44, {WS_W1F}
    s_add_u32 s45, s44, 20480
    s_add_u32 s46, s45, 20480
    s_mov_b32 s29, {WS_MOD + 3*2560}
    s_add_u32 s30, s29, 4096
    s_lshl_b32 s47, s{S_C}, 2
    s_add_u32 s47, s47, s{S_WAVE}
    s_mul_i32 s47, s47, 15360
    s_add_u32 s47, s47, {WS_W2F}
    s_add_u32 s43, s47, 7168
    v_lshlrev_b32 v9, 7, v0
    s_barrier
    """)
    tst(0); tst(10, True)
    dst(3)
    for i in range(5):
        a(f"buffer_load_dwordx4 v[{AC1+4*i}:{AC1+4*i+3}], v5, {WS}, s{29 if i < 4 else 30} offen offset:{(i%4)*1024} sc1")
    a(f"v_lshlrev_b32 v10, 3, v1\ns_lshl_b32 s31, s42, 5")
    for n in range(3): a(f"buffer_load_dwordx2 v[{250+2*n}:{251+2*n}], v10, {SA}, s31 offen offset:{n*32}")
    def bslot(k): k %= 12; return (BR + 12*k) if k < 6 else (X + 12*(k-6))
    def ldB(k):
        for n in range(3):
            r = bslot(k) + 4*n
            a(f"buffer_load_dwordx4 v[{r}:{r+3}], v5, {WS}, s{44+n} offen offset:{(k%4)*1024}")
        if k % 4 == 3: a("s_add_u32 s44, s44, 4096\ns_add_u32 s45, s45, 4096\ns_add_u32 s46, s46, 4096")
    def shadowx():
        for k in range(6): ldB(k)
        a(f"buffer_load_dword v248, v9, {WS}, s47 offen\nbuffer_load_dword v249, v9, {WS}, s43 offen")
        a(f"s_waitcnt vmcnt({3+20+20})\nv_add_u32 v11, {LDS_PAR}, v5\nv_cmp_le_u32 vcc, 32, v0\nv_mov_b32 v6, 1.0\ns_nop 0\nv_cndmask_b32 v6, 0, v6, vcc")
        for j in range(4): a(f"v_add_f32 v{AC1+8+j}, v6, v{AC1+8+j}")
        for j in range(8): a(f"v_add_f32 v{AC1+12+j}, 1.0, v{AC1+12+j}")
        for i in range(5): a(f"ds_write_b128 v11, v[{AC1+4*i}:{AC1+4*i+3}] offset:{i*1024}")
        for j in range(4): a(f"v_mov_b32 v{T+8+j}, 0x3f803f80")
    def compx(o, i):
        mfma32(T, T+8, X+4*i, T if i else None, o)
        mfma32(T+4, X+4*i, X+4*i, T+4 if i else None, o)
    gather([(X+4*k, 5, 24 + k//4, (k%4)*1024) for k in range(20)], 12, compx, depth=1, shadow=shadowx, young=20, rsleep=4)
    tst(1)
    a(f"""
    v_lshlrev_b32 v6, 2, v1
    v_sub_u32 v6, v2, v6
    v_mov_b32 v{T+12}, 0
    s_nop 2
    """)
    for j in range(4): a(f"v_cmp_eq_u32 vcc, {j}, v6\ns_nop 1\nv_cndmask_b32 v{T+12}, v{T+12}, v{T+4+j}, vcc")
    xlane("v_add_f32", T+12, T+13)
    a(f"""
    v_mul_f32 v{T}, {hex(f2u(1/640))}, v{T}
    v_mul_f32 v{T+12}, {hex(f2u(1/640))}, v{T+12}
    v_fma_f32 v{T+12}, -v{T}, v{T}, v{T+12}
    v_max_f32 v{T+12}, 0, v{T+12}
    v_add_f32 v{T+12}, {hex(f2u(1e-5))}, v{T+12}
    v_rsq_f32 v{T+2}, v{T+12}
    v_lshlrev_b32 v11, 5, v1
    v_add_u32 v11, {LDS_PAR}, v11
    v_mul_f32 v{T}, v{T}, v{T+2}
    s_mul_i32 s31, s{S_WAVE}, 20480
    v_add_u32 v13, s31, v5
    """)
    P = AC1
    def rdP(k):
        p = P + 16*(k % 3)
        a(f"""
        ds_read_b128 v[{p}:{p+3}], v11 offset:{k*128}
        ds_read_b128 v[{p+4}:{p+7}], v11 offset:{k*128+16}
        ds_read_b128 v[{p+8}:{p+11}], v11 offset:{2560+k*128}
        ds_read_b128 v[{p+12}:{p+15}], v11 offset:{2560+k*128+16}
        """)
    rdP(0); rdP(1)
    for k in range(20):
        p = P + 16*(k % 3)
        for j in range(4):
            a(f"v_lshlrev_b32 v{T+8+2*j}, 16, v{X+4*k+j}\nv_and_b32 v{T+9+2*j}, 0xffff0000, v{X+4*k+j}")
        for j in range(4):
            a(f"v_pk_fma_f32 v[{T+8+2*j}:{T+9+2*j}], v[{T+8+2*j}:{T+9+2*j}], v[{T+2}:{T+3}], v[{T}:{T+1}] op_sel_hi:[1,0,0] neg_lo:[0,0,1] neg_hi:[0,0,1]")
        a(f"s_waitcnt lgkmcnt({(4 if k < 19 else 0) + min(k, 2)})")
        for j in range(4):
            a(f"v_pk_fma_f32 v[{T+8+2*j}:{T+9+2*j}], v[{T+8+2*j}:{T+9+2*j}], v[{p+8+2*j}:{p+9+2*j}], v[{p+2*j}:{p+2*j+1}]")
        for j in range(4): cvt(X+4*k+j, T+8+2*j, T+9+2*j)
        if k + 2 < 20: rdP(k+2)
        a(f"ds_write_b128 v13, v[{X+4*k}:{X+4*k+3}] offset:{k*1024}")
    a("s_waitcnt lgkmcnt(0)")
    tst(2)
    for k in range(6, 12): ldB(k)
    wsync()
    tst(3)
    a("v_add_u32 v14, 40960, v5")
    def rdA(k):
        for tt in range(4):
            r = XF + 16*(k % 2) + 4*tt
            a(f"ds_read_b128 v[{r}:{r+3}], v{5 if tt < 2 else 14} offset:{(tt%2)*20480 + k*1024}")
    rdA(0)
    for k in range(20):
        if k < 19: rdA(k+1)
        a(f"s_waitcnt vmcnt({3*min(11, 19-k) + (2 if k < 6 else 0)}) lgkmcnt({4 if k < 19 else 0})")
        for n in range(3):
            for tt in range(4):
                d = AC1 + 16*n + 4*tt
                mfma32(d, bslot(k) + 4*n, XF + 16*(k % 2) + 4*tt, d if k else None)
        if k + 12 < 20: ldB(k + 12)
    tst(4)
    WB, HB, AC2 = 16, 176, 96
    a(f"""
    s_mul_i32 s21, s{S_WAVE}, 12288
    s_mul_i32 s48, s40, {4*49152}
    s_add_u32 s48, s48, {WS_HID}
    s_add_u32 s52, s48, s21
    s_mul_i32 s56, s41, {5*49152}
    s_add_u32 s56, s56, s21
    s_add_u32 s56, s56, {WS_W2F}
    """)
    for i in range(1, 4): a(f"s_add_u32 s{52+i}, s{51+i}, 49152")
    for i in range(1, 5): a(f"s_add_u32 s{56+i}, s{55+i}, 49152")
    def ldW(k):
        for j in range(5):
            r = WB + 20*(k % 4) + 4*j
            a(f"buffer_load_dwordx4 v[{r}:{r+3}], v5, {WS}, s{56+j} offen offset:{(k%4)*1024}")
        if k % 4 == 3:
            for j in range(5): a(f"s_add_u32 s{56+j}, s{56+j}, 4096")
    def ldH(k):
        for j in range(4):
            r = HB + 16*(k % 4) + 4*j
            a(f"buffer_load_dwordx4 v[{r}:{r+3}], v5, {WS}, s{52+j} offen offset:{(k%4)*1024} sc1")
        if k % 4 == 3:
            for j in range(4): a(f"s_add_u32 s{52+j}, s{52+j}, 4096")
    for k in range(4): ldW(k)
    K1 = 2*math.sqrt(2/math.pi)*math.log2(math.e)
    a(f"""
    s_mov_b32 s32, {hex(f2u(-K1*0.044715))}
    s_mov_b32 s33, s32
    v_mov_b32 v{T+16}, {hex(f2u(-K1))}
    """)
    sts = []
    for n in range(3):
        a(f"""
        v_lshlrev_b32 v{T+20}, 16, v{250+2*n}
        v_and_b32 v{T+21}, 0xffff0000, v{250+2*n}
        v_lshlrev_b32 v{T+22}, 16, v{251+2*n}
        v_and_b32 v{T+23}, 0xffff0000, v{251+2*n}
        s_add_u32 s34, s42, {n}
        s_lshr_b32 s35, s34, 1
        s_lshl_b32 s35, s35, 10
        s_and_b32 s34, s34, 1
        s_lshl_b32 s34, s34, 3
        s_add_u32 s35, s35, s34
        s_add_u32 s24, s35, s48
        s_add_u32 s25, s24, 49152
        s_add_u32 s26, s25, 49152
        s_add_u32 s27, s26, 49152
        """)
        d = AC1 + 16*n
        for h in range(8): a(f"v_pk_add_f32 v[{d+2*h}:{d+2*h+1}], v[{d+2*h}:{d+2*h+1}], v[{T+20+2*(h&1)}:{T+21+2*(h&1)}]")
        for h in range(8): a(f"v_pk_mul_f32 v[{T+2*h}:{T+2*h+1}], v[{d+2*h}:{d+2*h+1}], v[{d+2*h}:{d+2*h+1}]")
        for h in range(8): a(f"v_pk_fma_f32 v[{T+2*h}:{T+2*h+1}], v[{T+2*h}:{T+2*h+1}], s[32:33], v[{T+16}:{T+17}] op_sel_hi:[1,1,0]")
        for h in range(8): a(f"v_pk_mul_f32 v[{T+2*h}:{T+2*h+1}], v[{T+2*h}:{T+2*h+1}], v[{d+2*h}:{d+2*h+1}]")
        for h in range(16): a(f"v_exp_f32 v{T+h}, v{T+h}")
        for h in range(8): a(f"v_pk_add_f32 v[{T+2*h}:{T+2*h+1}], v[{T+2*h}:{T+2*h+1}], 1.0 op_sel_hi:[1,0]")
        for h in range(16): a(f"v_rcp_f32 v{T+h}, v{T+h}")
        for h in range(8): a(f"v_pk_mul_f32 v[{d+2*h}:{d+2*h+1}], v[{d+2*h}:{d+2*h+1}], v[{T+2*h}:{T+2*h+1}]")
        for tt in range(4):
            cvt(d+4*tt, d+4*tt, d+4*tt+1); cvt(d+4*tt+1, d+4*tt+2, d+4*tt+3)
        lstore([f"buffer_store_dwordx2 v[{d+4*tt}:{d+4*tt+1}], v5, {WS}, s{24+tt} offen" for tt in range(4)])
    tst(5)
    a(f"""
    s_lshl_b32 s21, s40, 9
    s_add_u32 s21, s21, {FLD}
    s_lshr_b32 s24, s41, 1
    s_lshl_b32 s24, s24, 7
    s_add_u32 s24, s24, s21
    s_and_b32 s25, s41, 1
    s_lshl_b32 s25, s25, 2
    s_add_u32 s25, s25, s{S_WAVE}
    s_lshl_b32 s25, s25, 2
    s_add_u32 s24, s24, s25
    s_lshl_b32 s25, s{S_WAVE}, 7
    s_add_u32 s21, s21, s25
    v_lshlrev_b32 v10, 2, v3
    v_add_u32 v10, s21, v10
    v_mov_b32 v6, 0
    v_mov_b32 v7, 1
    s_mov_b32 s26, 1
    s_waitcnt vmcnt(0)
    s_mov_b64 exec, 1
    """)
    lstore(f"buffer_store_dword v7, v6, {WS}, s24 offen")
    a("s_mov_b64 exec, -1")
    tst(6)
    wait_flags(11, 10, 26)
    tst(7)
    for k in range(4): ldH(k)
    srd(8, KA['b2'], 1280)
    srd(12, KA['out'], 2048*1280)
    for k in range(12):
        if k < 4: y = 4*(3-k) + 9*k
        else: y = 9*min(3, 11-k)
        a(f"s_waitcnt vmcnt({y})")
        for tt in range(4):
            for n in range(5):
                d = AC2 + 20*tt + 4*n
                mfma32(d, WB + 20*(k % 4) + 4*n, HB + 16*(k % 4) + 4*tt, d if k else None)
        if k + 4 < 12: ldW(k+4); ldH(k+4)
    tst(8)
    EA, EE = 16, 176
    a(f"""
    s_mul_i32 s24, s40, {4*20480}
    s_add_u32 s24, s24, {WS_X1}
    s_mov_b32 s25, {WS_MOD + 5*2560}
    s_mul_i32 s26, s41, 20
    s_lshl_b32 s27, s40, 6
    s_lshl_b32 s28, s{S_WAVE}, 6
    """)
    for i in range(5):
        b = EA + 2*i; e = EE + 8*i
        a(f"""
        s_add_u32 s21, s28, {256*i}
        v_add_u32 v30, s21, v0
        v_mul_u32_u24 v31, 3277, v30
        v_lshrrev_b32 v31, 16, v31
        v_mul_u32_u24 v32, 20, v31
        v_sub_u32 v32, v30, v32
        v_lshrrev_b32 v33, 4, v31
        v_and_b32 v34, 15, v31
        v_mul_u32_u24 v35, 20, v33
        v_add_u32 v35, v35, v32
        v_mul_u32_u24 v35, 272, v35
        v_lshl_add_u32 v{b}, v34, 4, v35
        v_add_u32 v32, s26, v32
        v_lshlrev_b32 v36, 3, v32
        v_add_u32 v35, s27, v31
        v_mul_u32_u24 v35, 1280, v35
        v_add_u32 v{b+1}, v35, v36
        v_mul_u32_u24 v35, 20480, v33
        v_lshl_add_u32 v35, v34, 4, v35
        v_lshrrev_b32 v37, 1, v32
        v_lshl_add_u32 v35, v37, 8, v35
        v_and_b32 v37, 1, v32
        v_lshl_add_u32 v35, v37, 3, v35
        v_lshlrev_b32 v37, 1, v36
        buffer_load_dwordx2 v[{e}:{e+1}], v35, {WS}, s24 offen sc1
        buffer_load_dwordx2 v[{e+2}:{e+3}], v36, {SA}, 0 offen
        buffer_load_dwordx4 v[{e+4}:{e+7}], v37, {WS}, s25 offen sc1
        """)
    wsync()
    a(f"""
    v_mul_u32_u24 v13, 272, v1
    v_lshl_add_u32 v13, v2, 4, v13
    s_mul_i32 s21, s{S_WAVE}, 21760
    v_add_u32 v13, s21, v13
    """)
    for j in range(20): a(f"ds_write_b128 v13, v[{AC2+4*j}:{AC2+4*j+3}] offset:{j*4*272}")
    wsync()
    for i in range(5):
        for w in range(4):
            r = AC2 + 16*i + 4*w
            a(f"ds_read_b128 v[{r}:{r+3}], v{EA+2*i} offset:{w*21760}")
        if i == 2: a("s_waitcnt lgkmcnt(4)")
    a("s_waitcnt vmcnt(0)")
    for i in range(5):
        r = AC2 + 16*i; e = EE + 8*i
        if i >= 2: a(f"s_waitcnt lgkmcnt({4*(4-i)})")
        for h in (0, 2):
            a(f"""
            v_pk_add_f32 v[{r+h}:{r+h+1}], v[{r+h}:{r+h+1}], v[{r+4+h}:{r+5+h}]
            v_pk_add_f32 v[{r+8+h}:{r+9+h}], v[{r+8+h}:{r+9+h}], v[{r+12+h}:{r+13+h}]
            v_lshlrev_b32 v30, 16, v{e+2+h//2}
            v_and_b32 v31, 0xffff0000, v{e+2+h//2}
            v_pk_add_f32 v[{r+h}:{r+h+1}], v[{r+h}:{r+h+1}], v[{r+8+h}:{r+9+h}]
            v_lshlrev_b32 v32, 16, v{e+h//2}
            v_and_b32 v33, 0xffff0000, v{e+h//2}
            v_pk_add_f32 v[{r+h}:{r+h+1}], v[{r+h}:{r+h+1}], v[30:31]
            v_pk_fma_f32 v[{r+h}:{r+h+1}], v[{r+h}:{r+h+1}], v[{e+4+h}:{e+5+h}], v[32:33]
            """)
        cvt(r, r, r+1); cvt(r+1, r+2, r+3)
        a(f"buffer_store_dwordx2 v[{r}:{r+1}], v{EA+2*i+1}, {SB}, 0 offen")
    a("s_waitcnt vmcnt(0)")
    tst(9); tst(11, True)
    if cfg.dtrace:
        dst(4)
        a(f"""
        s_waitcnt lgkmcnt(0)
        s_mov_b32 s86, s76
        s_cmp_lg_u32 s{S_X}, 7
        s_cbranch_scc1 LM_end
        s_cmp_lg_u32 s{S_C}, 0
        s_cbranch_scc1 LM_end
        s_cmp_lg_u32 s{S_WAVE}, 0
        s_cbranch_scc1 LM_end
        v_mov_b32 v7, 0
        """)
        for j in range(5):
            a(f"s_sub_u32 s21, s{76+2*j}, s86\nv_mov_b32 v6, s21\nglobal_store_dword v7, v6, s[22:23] offset:{12+4*j}")
        a("s_waitcnt vmcnt(0)")
    if cfg.ptrace:
        pstamp(9)
        for j in range(12): a(f"v_mov_b32 v6, s{62+2*j}\nbuffer_store_dword v6, v7, {WS}, s92 offen offset:{4*(7+j)}")
        a("s_waitcnt vmcnt(0)")
    a("s_endpgm")

    for ls, lb, ins in slow:
        a(ls + ":")
        for i in ins: a(i)
        a(f"s_branch {lb}")
    for o in ool: a.lines += o.lines
    a('LM_codeend:\ns_endpgm')
    return kernel_head(name) + a.text(), kernel_desc(name, 256, 100, 256)
```

```python
def al(x, a): return (x + a - 1) // a * a

WS_MOD  = 0
WS_CAL  = 16384
WS_NG   = WS_CAL + 65536
WS_NL   = WS_NG + 20*16384
NLC = 20*128
WS_FLAG = WS_NL + 8*32*NLC
FL1 = WS_FLAG
FL2 = FL1 + 32*3*128
FLD = FL2 + 32*2*128
FLH = FLD + 32*4*128
FLM = FLH + 16*128
FLAG_END = FLM + 64*128
WS_L1R  = FLAG_END
L1SLOT = 8*2*4096
WS_MR   = WS_L1R + 4*L1SLOT
MSLOT = 8*10240
WS_PR   = WS_MR + 4*MSLOT
PSLOT = 32*2*1536
WS_T1R  = WS_PR + 4*PSLOT
T1SLOT = 32*3*5120
WS_H    = al(WS_T1R + 4*T1SLOT, 1 << 21)
WS_X1   = WS_H + 64*40960
WS_G    = al(WS_X1 + 2048*1280, 1 << 21)
GSLOT = 163840
WS_O    = al(WS_G + 63*GSLOT, 1 << 21)
OSLOT = 327680
WS_HID  = WS_O + 8*OSLOT
WS_W1F  = WS_HID + 2048*1536*2
WS_W2F  = WS_W1F + 96*20*1024
WS_DBG  = al(WS_W2F + 40*48*1024, 1 << 21)
WS_SIZE = 1 << 28

KA = dict(x=0, mem0=8, Wq=16, Wk=24, Wv=32, Wo=40, seg=48, Bx=56, w1=64, b1=72, w2=80, b2=88,
          c=96, wmod=104, out=112, dbg=120, ws=128)

LDS_TOK = 0
LDS_M   = 81920
LDS_QKM = 92160
LDS_QX  = 98304
LDS_RL  = 114688
LDS_U   = 92160
LDS_Y   = LDS_U + 32768
LDS_HO  = LDS_Y + 8192
LDS_MISC = 147456
LDS_PAR = 135168
LDS_MAIN = LDS_MISC + 256
if __name__ == '__main__':
    for k, v in list(globals().items()):
        if isinstance(v, int): print(k, v, hex(v))
```

```python
import sys
sys.path.insert(0, 'dev')
from layout import *
import gen_main
NAME = 'adaLN_cond__memory_aug_recurrent_mem_tr__dense_activation_gelu__prompt'
def gen(cfg):
    ref = open(f'cdna_kernels/{NAME}.s.ref').read().splitlines()
    head = [l for l in ref if l.startswith(';') and not l.startswith('; @')]
    out = '\n'.join(head) + '\n'
    out += f"; @launch grid=(256,1,1) block=(512,1,1) lds={LDS_MAIN}\n"
    out += '.amdgcn_target "amdgcn-amd-amdhsa--gfx950"\n'
    body, desc = gen_main.gen_main(cfg, NAME + '_kernel')
    return out + body + desc
if __name__ == '__main__':
    cfg = gen_main.Cfg()
    path = f'cdna_kernels/{NAME}.s'
    for kv in sys.argv[1:]:
        k, v = kv.split('=')
        if k == 'o': path = v
        else:
            assert hasattr(cfg, k), k; setattr(cfg, k, int(v))
    open(path, 'w').write(gen(cfg))
```

```python
import math, struct
from asmlib import *
from layout import *

def f2u(f): return struct.unpack('<I', struct.pack('<f', f))[0]
CSC = f2u(192 ** -0.5 * math.log2(math.e))
NEGBIG = f2u(-1e9 / (192 ** -0.5))
BIG = 1 << 20

S_WAVE, S_X, S_C, S_MODE, S_S = 16, 17, 18, 19, 20
S_CNT, S_LIM = 37, 38
WS = "s[4:7]"; SA = "s[8:11]"; SB = "s[12:15]"

def TRACE_EVENTS(vo, qk, qk10):
    return (('QK Wfree',qk,4),('QK scout',qk,3),('QK mready',qk,0),('QK B2',qk,1),('QK L1st',qk,2),('QK dmadone',qk,6),('QK C3done',qk10,5),
            ('VOW free',vo,16),('VOW mst',vo,17),('VOW mready',vo,18),('VOW Ydone',vo,19),('VO ldA',vo,22),('VO ldB',vo,23),('VO0 scout',vo,4),('VO Yseen',vo,3),
            ('VO0 L1done',vo,0),('VO1 L1done',vo,8),('VO wrdone',vo,21),('VO Gst',vo,1),('VO Gissue',vo,10),('VO Mst',vo,9))
def NT(x): return ' nt' if x else ''
class Cfg:
    dbg = 0
    trace = 0
    fake_xcc = 0
    tokpath = 1
    nomfma = 0
    slQW = 4; slQC = 10; slQD = 8; slO = 1; slQ3 = 5
    n1 = 8; nA = 12; wA = 0
    depthG = 2; depthL1 = 3; depthM = 3; depthN = 4
    nG = 1; posG = 3; early = 0; lgN = 7; chkN = 3; dP = 0; slM = 1; dG = 0
    nL1 = 1; padL1 = 0
    nM = 1; dM = 14; pace = 3; nowr = 0; nold = 0; ntQ = 0; ntO = 0; ntV = 0; rotV = 1; nMV = 0; g2V = 0; slS = 6; yfirst = 0; oL1 = 1; pw = 2; prW = 2; pL1D = 0; padO = 0; paceQ = 0; paceV = 0; nC = 12; cGIS = 0; paceA = 0; whoG = 1; slT = 1; outp = 0; simd = 1; dtrace = 0; tail = 1; fuse_ln = 1; warm = 1; ntW = 0; ntP = 0; prewarm = 0; precode = 1; light = 0; ptrace = 0; g2M = 35; g2L = 0; all12 = 1; dN1 = 16

def gen_main(cfg, name):
    a = Asm()
    slow = []
    ool = []

    def nop(n):
        while n > 0:
            k = min(n, 16); a(f"s_nop {k-1}"); n -= k

    def lstore(instrs):
        if isinstance(instrs, str): instrs = [instrs]
        ls, lb = a.label('slow'), a.label('back')
        a(f"s_cmp_lg_u32 s{S_MODE}, 0\ns_cbranch_scc1 {ls}")
        for i in instrs: a(i)
        a(lb + ":")
        slow.append((ls, lb, [(i[:-3] + " sc1 nt" if i.endswith(" nt") else i + " sc1") for i in instrs]))

    def timeout(done):
        a(f"s_sub_u32 s{S_CNT}, s{S_CNT}, 1\ns_cbranch_scc1 {done}")

    def after_wait():
        a(f"s_cmp_lt_i32 s{S_CNT}, 0\ns_cselect_b32 s{S_LIM}, 4, s{S_LIM}")

    def scout(vs, voff, soff, imm=0):
        lp, dn = a.label('sc'), a.label('scd')
        a(f"""
        v_mov_b32 v{vs}, -1
        s_mov_b64 exec, 1
        s_mov_b32 s{S_CNT}, s{S_LIM}
        {lp}:
        buffer_load_dword v{vs}, v{voff}, {WS}, s{soff} offen offset:{imm} sc1
        """)
        timeout(dn)
        a(f"""
        s_waitcnt vmcnt(1)
        v_cmp_eq_u32 vcc, -1, v{vs}
        s_cbranch_vccnz {lp}
        {dn}:
        s_mov_b64 exec, -1
        """)

    def nscout(vs, voff, sneed, sexec):
        lp, dn = a.label('ns'), a.label('nsd')
        a(f"""
        v_mov_b32 v{vs}, 0
        s_mov_b64 exec, s[{sexec}:{sexec+1}]
        s_mov_b32 s{S_CNT}, s{S_LIM}
        {lp}:
        buffer_load_dword v{vs}, v{voff}, {WS}, 0 offen sc1
        """)
        timeout(dn)
        a(f"""
        s_waitcnt vmcnt({cfg.depthN-1})
        v_cmp_gt_u32 vcc, s{sneed}, v{vs}
        s_cbranch_vccnz {lp}
        {dn}:
        s_mov_b64 exec, -1
        """)

    def lds_wait(vaddr, off, nflags, vtmp, sneed, extra=None, sleep=0):
        lp, dn, st = a.label('lw'), a.label('lwd'), a.label('lws')
        a(f"s_mov_b32 s{S_CNT}, s{S_LIM}")
        if sleep: a(f"s_branch {st}\n{lp}:\ns_sleep {sleep}\n{st}:")
        else: a(f"{lp}:")
        if nflags == 1: a(f"ds_read_b32 v{vtmp}, v{vaddr} offset:{off}")
        elif nflags == 2: a(f"ds_read_b64 v[{vtmp}:{vtmp+1}], v{vaddr} offset:{off}")
        else: a(f"ds_read_b128 v[{vtmp}:{vtmp+3}], v{vaddr} offset:{off}")
        ne = extra() if extra else 0
        timeout(dn)
        a(f"s_waitcnt lgkmcnt({ne})")
        if nflags == 2:
            a(f"v_min_u32 v{vtmp}, v{vtmp}, v{vtmp+1}")
        if nflags == 4:
            a(f"v_min3_u32 v{vtmp}, v{vtmp}, v{vtmp+1}, v{vtmp+2}\nv_min_u32 v{vtmp}, v{vtmp}, v{vtmp+3}")
        a(f"v_cmp_gt_u32 vcc, s{sneed}, v{vtmp}\ns_cbranch_vccnz {lp}\n{dn}:")

    def gather(loads, vchk, compute=None, depth=2, shadow=None, young=0, rsleep=0):
        rt, lp, ex, dn = a.label('gr'), a.label('g'), a.label('gx'), a.label('gd')
        n = len(loads)
        def issue(o):
            for (d, vo, so, im) in loads:
                o(f"buffer_load_dwordx4 v[{d}:{d+3}], v{vo}, {WS}, s{so} offen offset:{im} sc1")
        def chk(o, i):
            d = loads[i][0]
            if i == 0:
                o(f"v_max3_u32 v{vchk}, v{d}, v{d+1}, v{d+2}\nv_max_u32 v{vchk}, v{vchk}, v{d+3}")
            else:
                o(f"v_max3_u32 v{vchk}, v{vchk}, v{d}, v{d+1}\nv_max3_u32 v{vchk}, v{vchk}, v{d+2}, v{d+3}")
        issue(a)
        if shadow: shadow()
        for i in range(n):
            a(f"s_waitcnt vmcnt({n-1-i+young})")
            chk(a, i)
            if compute: compute(a, i)
        a(f"v_cmp_eq_u32 vcc, -1, v{vchk}\ns_cbranch_vccnz {rt}\n{dn}:")
        o = Asm(); o.uid = a.uid + 1000
        o(f"{rt}:\ns_mov_b32 s{S_CNT}, s{S_LIM}\n{lp}:\ns_mov_b64 exec, vcc")
        if rsleep: o(f"s_sleep {rsleep}")
        issue(o)
        o(f"s_sub_u32 s{S_CNT}, s{S_CNT}, 1\ns_cbranch_scc1 {ex}\ns_waitcnt vmcnt({n*(depth-1)})")
        for i in range(n): chk(o, i)
        o(f"v_cmp_eq_u32 vcc, -1, v{vchk}\ns_cbranch_vccnz {lp}\n{ex}:\ns_mov_b64 exec, -1")
        o(f"s_cmp_lt_i32 s{S_CNT}, 0\ns_cselect_b32 s{S_LIM}, 4, s{S_LIM}")
        if compute:
            for i in range(n): compute(o, i)
            o("s_nop 1")
        o(f"s_branch {dn}")
        ool.append(o)

    def gather2(loads, vchk, compute=None, shadow=None, pad=0):
        lp, dn = a.label('g2'), a.label('g2d')
        n = len(loads)
        def issue():
            for (d, vo, so, im) in loads:
                a(f"buffer_load_dwordx4 v[{d}:{d+3}], v{vo}, {WS}, s{so} offen offset:{im} sc1")
        issue()
        if shadow: shadow()
        nop(pad)
        a(f"s_mov_b32 s{S_CNT}, s{S_LIM}\n{lp}:")
        issue()
        timeout(dn)
        for i in range(n):
            d = loads[i][0]
            a(f"s_waitcnt vmcnt({2*n-1-i})")
            if i == 0: a(f"v_max3_u32 v{vchk}, v{d}, v{d+1}, v{d+2}\nv_max_u32 v{vchk}, v{vchk}, v{d+3}")
            else: a(f"v_max3_u32 v{vchk}, v{vchk}, v{d}, v{d+1}\nv_max3_u32 v{vchk}, v{vchk}, v{d+2}, v{d+3}")
            if compute: compute(a, i)
        a(f"v_cmp_eq_u32 vcc, -1, v{vchk}\ns_cbranch_vccnz {lp}\n{dn}:")

    def gather_blind(loads, vchk, compute, depth, pad=0):
        lp, ex = a.label('gb'), a.label('gbx')
        n = len(loads)
        for (d, vo, so, im) in loads:
            for j in range(4): a(f"v_mov_b32 v{d+j}, -1")
        a(f"s_mov_b32 s{S_CNT}, s{S_LIM}\ns_mov_b64 vcc, -1\n{lp}:\ns_mov_b64 exec, vcc")
        for (d, vo, so, im) in loads:
            a(f"buffer_load_dwordx4 v[{d}:{d+3}], v{vo}, {WS}, s{so} offen offset:{im} sc1")
        a(f"s_sub_u32 s{S_CNT}, s{S_CNT}, 1\ns_cbranch_scc1 {ex}")
        if pad: nop(pad)
        a(f"s_waitcnt vmcnt({min(63, n*(depth-1))})")
        for i in range(n):
            d = loads[i][0]
            if i == 0: a(f"v_max3_u32 v{vchk}, v{d}, v{d+1}, v{d+2}\nv_max_u32 v{vchk}, v{vchk}, v{d+3}")
            else: a(f"v_max3_u32 v{vchk}, v{vchk}, v{d}, v{d+1}\nv_max3_u32 v{vchk}, v{vchk}, v{d+2}, v{d+3}")
        a(f"v_cmp_eq_u32 vcc, -1, v{vchk}\ns_cbranch_vccnz {lp}\n{ex}:\ns_mov_b64 exec, -1")
        for i in range(n): compute(a, i)
        a("s_nop 1")

    def wait_flags(vtmp, voff, sneed, sleep=1):
        lp, dn = a.label('f'), a.label('fd')
        a(f"""
        s_mov_b32 s{S_CNT}, s{S_LIM}
        {lp}:
        buffer_load_dword v{vtmp}, v{voff}, {WS}, 0 offen sc1
        s_waitcnt vmcnt(0)
        v_cmp_gt_u32 vcc, s{sneed}, v{vtmp}
        s_cbranch_vccz {dn}
        """)
        timeout(dn)
        if sleep: a(f"s_sleep {sleep}")
        a(f"s_branch {lp}\n{dn}:")
        after_wait()

    def set_h(wave):
        sk = a.label('nohf')
        a(f"""
        s_cmp_lg_u32 s{S_WAVE}, {wave}
        s_cbranch_scc1 {sk}
        s_cmp_ge_u32 s46, 16
        s_cbranch_scc1 {sk}
        s_lshl_b32 s21, s46, 7
        s_add_u32 s21, s21, {FLH}
        v_mov_b32 v90, 0
        v_mov_b32 v91, 1
        s_mov_b64 exec, 1
        buffer_store_dword v91, v90, {WS}, s21 offen sc1
        s_mov_b64 exec, -1
        {sk}:
        """)
    def wait_h():
        a(f"""
        v_lshlrev_b32 v16, 7, v2
        v_add_u32 v16, {FLH}, v16
        s_mov_b32 s21, 1
        """)
        wait_flags(17, 16, 21)

    def srd(dst, karg, size):
        a(f"""
        s_load_dwordx2 s[{dst}:{dst+1}], s[0:1], {karg}
        s_mov_b32 s{dst+2}, {size}
        s_mov_b32 s{dst+3}, 0x20000
        s_waitcnt lgkmcnt(0)
        """)

    def mfma32(d, x, y, c, a=a): a(f"v_mfma_f32_16x16x32_bf16 v[{d}:{d+3}], v[{x}:{x+3}], v[{y}:{y+3}], " + (f"v[{c}:{c+3}]" if c is not None else "0"))
    def mfma16(d, x, y, c, a=a): a(f"v_mfma_f32_16x16x16_bf16 v[{d}:{d+3}], v[{x}:{x+1}], v[{y}:{y+1}], " + (f"v[{c}:{c+3}]" if c is not None else "0"))
    def cvt(d, x, y): a(f"v_cvt_pk_bf16_f32 v{d}, v{x}, v{y}")
    def san(d): a(f"v_min_u32 v{d}, -2, v{d}")

    def lanes():
        a("""
        v_lshrrev_b32 v1, 4, v0
        v_and_b32 v2, 15, v0
        v_and_b32 v3, 7, v0
        v_bfe_u32 v4, v0, 3, 1
        v_lshlrev_b32 v5, 4, v0
        """)

    def build_sel(vall, vA=None, vLo=None, vHi=None, t0=6, t1=7):
        a(f"""
        v_and_b32 v{t0}, 1, v0
        v_lshlrev_b32 v{t0}, 4, v{t0}
        v_mov_b32 v{t1}, 0x3f80
        v_lshlrev_b32 v{t0}, v{t0}, v{t1}
        v_lshrrev_b32 v{t1}, 1, v3
        """)
        for j in range(4):
            a(f"v_cmp_eq_u32 vcc, {j}, v{t1}\ns_nop 1\nv_cndmask_b32 v{vall+j}, 0, v{t0}, vcc")
        if vA is not None:
            a(f"v_and_b32 v{t0}, 1, v1\nv_cmp_eq_u32 vcc, v{t0}, v4\ns_nop 1")
            for j in range(4): a(f"v_cndmask_b32 v{vA+j}, 0, v{vall+j}, vcc")
        if vLo is not None:
            a(f"v_cmp_gt_u32 vcc, 2, v1\ns_nop 1")
            for j in range(4): a(f"v_cndmask_b32 v{vLo+j}, 0, v{vA+j}, vcc")
            a(f"v_cmp_le_u32 vcc, 2, v1\ns_nop 1")
            for j in range(4): a(f"v_cndmask_b32 v{vHi+j}, 0, v{vA+j}, vcc")

    def build_selm(vM, t0=6, t1=7):
        a(f"""
        v_and_b32 v{t0}, 1, v0
        v_lshlrev_b32 v{t0}, 4, v{t0}
        v_mov_b32 v{t1}, 0x3f80
        v_lshlrev_b32 v{t0}, v{t0}, v{t1}
        v_bfe_u32 v{t1}, v0, 1, 3
        """)
        for j in range(4):
            a(f"v_cmp_eq_u32 vcc, {2*j}, v{t1}\ns_nop 1\nv_cndmask_b32 v{vM+j}, 0, v{t0}, vcc")

    def xlane(op, v, t):
        a(f"""
        v_mov_b32 v{t}, v{v}
        s_nop 1
        v_permlane32_swap_b32 v{t}, v{v}
        {op} v{v}, v{v}, v{t}
        v_mov_b32 v{t}, v{v}
        s_nop 1
        v_permlane16_swap_b32 v{t}, v{v}
        {op} v{v}, v{v}, v{t}
        """)

    def read_mode():
        a(f"""
        v_mov_b32 v6, {LDS_MISC}
        ds_read_b32 v6, v6 offset:8
        s_waitcnt lgkmcnt(0)
        v_readfirstlane_b32 s{S_MODE}, v6
        """)

    def poll_counters(armed=True):
        lp, dn = a.label('pc'), a.label('pcd')
        a(f"""
        v_and_b32 v6, 7, v0
        v_lshlrev_b32 v6, 5, v6
        s_mov_b32 s{S_CNT}, s{S_LIM}
        {lp}:
        global_load_dword v7, v6, s[22:23] sc1
        s_waitcnt vmcnt(0)
        """)
        for x in range(8): a(f"v_readlane_b32 s{24+x}, v7, {x}")
        a("s_add_u32 s21, s24, s25")
        for x in range(2, 8): a(f"s_add_u32 s21, s21, s{24+x}")
        if armed: a("s_lshr_b32 s21, s21, 16")
        else: a("s_and_b32 s21, s21, 0xffff")
        a(f"s_cmp_ge_u32 s21, 256\ns_cbranch_scc1 {dn}")
        timeout(dn)
        a(f"s_sleep 8\ns_branch {lp}\n{dn}:")
        for x in range(8): a(f"s_and_b32 s{24+x}, s{24+x}, 0xffff")

    def mode_wave():
        poll_counters()
        a("s_mov_b32 s21, 0")
        for x in range(8):
            a(f"s_cmp_lg_u32 s{24+x}, 32\ns_cselect_b32 s21, 1, s21")
        a(f"""
        v_mov_b32 v6, {LDS_MISC}
        v_mov_b32 v7, s21
        ds_write_b32 v6, v7 offset:8
        s_waitcnt lgkmcnt(0)
        """)

    T2 = cfg.trace == 2
    if T2: cfg.trace = 0
    class lt:
        def __enter__(self): self.t = cfg.trace; cfg.trace = cfg.trace or T2
        def __exit__(self, *x): cfg.trace = self.t
    def stamp(e):
        if cfg.trace: a(f"s_memrealtime s[{70+2*e}:{71+2*e}]")
    def stampc(e):
        if cfg.trace: a(f"s_memtime s[{70+2*e}:{71+2*e}]")
    def stamp_commit(evs, vbase):
        if cfg.trace:
            a(f"s_waitcnt lgkmcnt(0)\ns_mov_b32 m0, s{S_S}\ns_nop 0")
            for e in evs: a(f"v_writelane_b32 v{vbase+e}, s{70+2*e}, m0")
    def stamp_dump(evs, vbase, slot0):
        if cfg.trace:
            a(f"""
            s_lshl_b32 s21, s{S_X}, 5
            s_add_u32 s21, s21, s{S_C}
            s_lshl_b32 s21, s21, 13
            s_add_u32 s21, s21, {WS_DBG + (1<<20)}
            v_lshlrev_b32 v6, 2, v0
            """)
            for e in evs:
                a(f"s_add_u32 s24, s21, {(slot0+e)*256}\nbuffer_store_dword v{vbase+e}, v6, {WS}, s24 offen")
            a("s_waitcnt vmcnt(0)")

    def pstamp(i, wait=True):
        if not cfg.ptrace: return
        a(f"""
        s_memrealtime s[90:91]
        s_lshl_b32 s92, s2, 3
        s_add_u32 s92, s92, s{S_WAVE}
        s_lshl_b32 s92, s92, 7
        s_add_u32 s92, s92, {WS_DBG + (3<<20) + 4*i}
        s_waitcnt lgkmcnt(0)
        v_mov_b32 v6, s90
        v_mov_b32 v7, 0
        buffer_store_dword v6, v7, {WS}, s92 offen
        """)
        if wait: a("s_waitcnt vmcnt(0)")
    def dst(j):
        if cfg.dtrace: a(f"s_memrealtime s[{76+2*j}:{77+2*j}]")
    a(f"""
    s_cmp_ge_u32 s2, 256
    s_cbranch_scc1 LM_end
    s_load_dwordx2 s[4:5], s[0:1], {KA['ws']}
    s_load_dwordx2 s[22:23], s[0:1], {KA['dbg']}
    s_getreg_b32 s{S_X}, hwreg(HW_REG_XCC_ID, 0, 4)
    v_lshrrev_b32 v1, 6, v0
    s_mov_b32 s6, {WS_SIZE}
    v_readfirstlane_b32 s{S_WAVE}, v1
    v_mov_b32 v89, v0
    v_and_b32 v0, 63, v0
    s_mov_b32 s7, 0x20000
    s_and_b32 s{S_X}, s{S_X}, 7
    s_mov_b32 s{S_LIM}, {BIG}
    s_mov_b32 s{S_CNT}, 0
    s_mov_b32 s{S_MODE}, 0
    """)
    if cfg.simd:
        a(f"""
        s_getreg_b32 s24, hwreg(HW_REG_HW_ID, 4, 2)
        v_mov_b32 v4, {LDS_MISC + 160}
        v_mov_b32 v8, 0
        v_mov_b32 v9, 0
        v_mov_b32 v10, 0
        v_mov_b32 v11, 0
        ds_write_b128 v4, v[8:11]
        s_lshl_b32 s25, s24, 2
        v_add_u32 v5, s25, v4
        v_mov_b32 v6, 1
        s_waitcnt lgkmcnt(0)
        s_barrier
        s_mov_b64 exec, 1
        ds_add_rtn_u32 v7, v5, v6
        s_waitcnt lgkmcnt(0)
        s_mov_b64 exec, -1
        v_readfirstlane_b32 s25, v7
        s_barrier
        ds_read_b128 v[8:11], v4
        s_lshl_b32 s25, s25, 2
        s_add_u32 s25, s25, s24
        s_waitcnt lgkmcnt(0)
        v_max3_u32 v8, v8, v9, v10
        v_max_u32 v8, v8, v11
        s_nop 0
        v_readfirstlane_b32 s26, v8
        s_cmp_eq_u32 s26, 2
        s_cselect_b32 s{S_WAVE}, s25, s{S_WAVE}
        s_and_b32 s{S_WAVE}, s{S_WAVE}, 7
        s_lshl_b32 s25, s{S_WAVE}, 6
        v_add_u32 v89, s25, v0
        """)
    if cfg.fake_xcc:
        a(f"s_mul_i32 s{S_X}, s2, 7\ns_lshr_b32 s{S_X}, s{S_X}, 8")
    a(f"""
    s_waitcnt lgkmcnt(0)
    """)
    if cfg.ptrace: a("s_memrealtime s[94:95]")
    dst(0)
    a(f"""
    v_mov_b32 v90, 1
    s_lshl_b32 s21, s{S_X}, 5
    v_mov_b32 v91, s21
    s_cmp_lg_u32 s{S_WAVE}, 0
    s_cbranch_scc1 LM_notick0
    s_mov_b64 exec, 1
    global_atomic_add v92, v91, v90, s[22:23] sc0 sc1
    s_mov_b64 exec, -1
    LM_notick0:
    """)
    def warm(o):
        o(f"""
        s_cmp_lt_u32 s{S_WAVE}, 4
        s_cselect_b32 s29, {KA['Wv']}, {KA['Wo']}
        s_load_dwordx2 s[12:13], s[0:1], s29
        s_mov_b32 s14, {640*12288}
        s_mov_b32 s15, 0x20000
        v_and_b32 v80, 255, v89
        v_min_u32 v80, 239, v80
        v_mul_u32_u24 v81, 5462, v80
        v_lshrrev_b32 v81, 16, v81
        v_mul_u32_u24 v82, {12288 - 12*128}, v81
        s_lshr_b32 s30, s2, 3
        s_cmp_lt_u32 s{S_WAVE}, 4
        s_cbranch_scc1 LM_wv
        v_mov_b32 v82, 0
        s_mul_i32 s30, s30, 30720
        s_mul_i32 s29, s{S_X}, {4*245760}
        s_branch LM_wj
        LM_wv:
        s_mul_i32 s30, s30, {20*12288}
        s_mul_i32 s29, s{S_X}, 1536
        LM_wj:
        s_add_u32 s30, s30, s29
        v_lshl_add_u32 v82, v80, 7, v82
        s_waitcnt lgkmcnt(0)
        s_barrier
        buffer_load_dword v83, v82, s[12:15], s30 offen{NT(cfg.ntW)}
        """)
    NZ = (WS_L1R - WS_NG) // 1024; NM0 = (WS_MR - WS_NG) // 1024; NA = (WS_PR - WS_NG) // 1024
    assert NA <= 2048
    srd(8, KA['mem0'], 10240)
    a(f"""
    s_lshl_b32 s24, s{S_WAVE}, 8
    s_add_u32 s24, s24, s2
    s_lshl_b32 s25, s24, 10
    s_add_u32 s25, s25, {WS_NG}
    s_cmp_ge_u32 s24, {NA}
    s_cselect_b32 s25, {WS_SIZE}, s25
    s_sub_u32 s28, 2047, s24
    s_lshl_b32 s26, s28, 10
    s_add_u32 s26, s26, {WS_G}
    s_cmp_ge_u32 s28, {4*GSLOT//1024}
    s_cselect_b32 s28, {WS_SIZE}, s26
    v_mov_b32 v12, -1
    v_mov_b32 v13, -1
    v_mov_b32 v14, -1
    v_mov_b32 v15, -1
    s_cmp_ge_u32 s24, {NZ}
    s_cselect_b32 s26, -1, 0
    v_mov_b32 v8, s26
    v_mov_b32 v9, s26
    v_mov_b32 v10, s26
    v_mov_b32 v11, s26
    v_lshlrev_b32 v5, 4, v0
    buffer_store_dwordx4 v[12:15], v5, {WS}, s28 offen sc1
    s_sub_u32 s26, s24, {NM0}
    s_cmp_ge_u32 s26, 80
    s_cbranch_scc1 LM_nom0
    ; mem0 piece j = id%10 : chunk P = 64j + lane ; row = 2*((P>>2)&3) + (P&1) ; col = 16*(P>>4) + 8*((P>>1)&1)
    s_mul_i32 s27, s26, 205
    s_lshr_b32 s27, s27, 11
    s_mul_i32 s27, s27, 10
    s_sub_u32 s27, s26, s27
    s_lshl_b32 s27, s27, 7
    v_bfe_u32 v6, v0, 2, 2
    v_and_b32 v7, 1, v0
    v_lshl_add_u32 v6, v6, 1, v7
    v_mul_u32_u24 v6, 1280, v6
    v_lshrrev_b32 v7, 4, v0
    v_lshl_add_u32 v6, v7, 5, v6
    v_bfe_u32 v7, v0, 1, 1
    v_lshl_add_u32 v6, v7, 4, v6
    buffer_load_dwordx4 v[8:11], v6, {SA}, s27 offen
    s_waitcnt vmcnt(0)
    v_min_u32 v8, -2, v8
    v_min_u32 v9, -2, v9
    v_min_u32 v10, -2, v10
    v_min_u32 v11, -2, v11
    LM_nom0:
    buffer_store_dwordx4 v[8:11], v5, {WS}, s25 offen sc1
    """)
    if cfg.warm: warm(a)
    a(f"""
    s_waitcnt vmcnt({1 if cfg.warm else 0})
    s_cmp_lg_u32 s{S_WAVE}, 0
    s_cbranch_scc1 LM_notick
    v_readfirstlane_b32 s{S_C}, v92
    v_mov_b32 v2, 1
    s_and_b32 s{S_C}, s{S_C}, 0xffff
    s_cmp_lt_u32 s{S_C}, 32
    s_cbranch_scc1 LM_haverole
    v_mov_b32 v3, 8
    s_mov_b64 exec, 1
    global_atomic_add v4, v3, v2, s[22:23] sc0 sc1
    s_waitcnt vmcnt(0)
    v_readfirstlane_b32 s32, v4
    s_mov_b64 exec, -1
    """)
    poll_counters(False)
    a(f"s_mov_b32 s{S_X}, 0\ns_mov_b32 s{S_C}, 0")
    for x in range(8):
        nx = a.label('nx')
        a(f"""
        s_min_u32 s21, s{24+x}, 32
        s_sub_u32 s33, 32, s21
        s_cmp_ge_u32 s32, s33
        s_cbranch_scc1 {nx}
        s_mov_b32 s{S_X}, {x}
        s_add_u32 s{S_C}, s21, s32
        s_branch LM_haverole
        {nx}:
        s_sub_u32 s32, s32, s33
        """)
    a(f"""
    LM_haverole:
    v_mov_b32 v5, {LDS_MISC}
    v_mov_b32 v6, s{S_X}
    v_mov_b32 v7, s{S_C}
    ds_write_b64 v5, v[6:7]
    v_mov_b32 v6, 0
    v_lshl_add_u32 v5, v0, 2, v5
    s_mov_b32 exec_hi, 0
    ds_write_b32 v5, v6 offset:16
    s_mov_b64 exec, -1
    s_waitcnt lgkmcnt(0)
    LM_notick:
    s_barrier
    s_cmp_lg_u32 s{S_WAVE}, 0
    s_cbranch_scc1 LM_noarm
    v_mov_b32 v90, 0x10000
    s_mov_b64 exec, 1
    global_atomic_add v91, v90, s[22:23] sc1
    s_mov_b64 exec, -1
    LM_noarm:
    v_mov_b32 v5, {LDS_MISC}
    ds_read_b64 v[6:7], v5
    s_waitcnt lgkmcnt(0)
    v_readfirstlane_b32 s{S_X}, v6
    v_readfirstlane_b32 s{S_C}, v7
    s_nop 1
    s_and_b32 s{S_X}, s{S_X}, 7
    s_and_b32 s{S_C}, s{S_C}, 31
    """)
    if cfg.ptrace:
        pstamp(1, wait=False)
        a(f"v_mov_b32 v6, s94\ns_sub_u32 s92, s92, 4\nbuffer_store_dword v6, v7, {WS}, s92 offen")
        a(f"v_mov_b32 v6, s{S_C}\ns_add_u32 s92, s92, 60\nbuffer_store_dword v6, v7, {WS}, s92 offen")
    lanes()
    a(f"""
    s_cmp_lt_u32 s{S_C}, 20
    s_cbranch_scc1 LM_VO
    """)

    VW = 96; VA = 56; ACC = 40; VIDX = 39; VG = 24
    V_MG, V_ML, V_TOK, V_CHK, V_SC, V_OUT, V_OUT2, V_DMA = 8, 9, 10, 11, 12, 13, 14, 15
    V_MISC, V_MGL = 38, 37
    F_HO, F_MST, F_L1D, F_GST, F_MW, F_Y, F_TD, F_D2, F_D3, F_GIS = 16, 20, 24, 28, 32, 48, 64, 80, 84, 88
    def w_setup():
        a(f"""
        s_lshl_b32 s21, s{S_WAVE}, 10
        v_add_u32 v{V_MG}, s21, v5
        v_add_u32 v{V_ML}, {LDS_M}, v5
        v_mov_b32 v{VIDX}, 0x4444
        v_mov_b32 v6, 0xeeee
        v_and_b32 v7, 2, v0
        v_cmp_ne_u32 vcc, 0, v7
        s_mul_i32 s21, s{S_WAVE}, 10240
        s_nop 0
        v_cndmask_b32 v{VIDX}, v{VIDX}, v6, vcc
        v_mov_b32 v{V_MISC}, {LDS_MISC}
        v_add_u32 v{V_DMA}, s21, v5
        s_mul_i32 s40, s{S_X}, 10240
        s_add_u32 s40, s40, {WS_MR}
        """)
    def dma_tokens(sseg):
        a(f"""
        s_mul_i32 s24, s{sseg}, 40960
        s_add_u32 s24, s24, {WS_H}
        s_and_b32 s25, s{sseg}, 1
        s_mul_i32 s25, s25, 40960
        s_mul_i32 s26, s{S_WAVE}, 10240
        s_add_u32 s25, s25, s26
        """)
        for blk in range(3):
            a(f"s_add_u32 m0, s25, {LDS_TOK + blk*4096}")
            if blk: a("s_add_u32 s24, s24, 4096")
            else: a("s_nop 0")
            for i in range(4 if blk < 2 else 2):
                a(f"buffer_load_dwordx4 v{V_DMA}, {WS}, s24 offen offset:{i*1024} lds")
    def dma_tokens_all(sseg, lo=0, hi=40960):
        lp = a.label('dma')
        a(f"""
        s_mul_i32 s28, s{sseg}, 40960
        s_add_u32 s28, s28, {WS_H + lo}
        s_and_b32 s29, s{sseg}, 1
        s_mul_i32 s29, s29, 40960
        s_add_u32 s30, s29, {LDS_TOK + hi}
        s_add_u32 s29, s29, {LDS_TOK + lo}
        {lp}:
        s_mov_b32 m0, s29
        s_add_u32 s29, s29, 4096
        """)
        for i in range(4):
            a(f"buffer_load_dwordx4 v5, {WS}, s28 offen offset:{i*1024} lds")
        a(f"""
        s_add_u32 s28, s28, 4096
        s_cmp_lt_u32 s29, s30
        s_cbranch_scc1 {lp}
        """)
    def m_addr():
        a(f"""
        s_and_b32 s21, s{S_S}, 3
        s_mul_i32 s21, s21, {MSLOT}
        s_add_u32 s24, s21, s40
        s_add_u32 s25, s24, 4096
        s_add_u32 s26, s24, 8192
        """)
        for i in range(8): a(f"v_mov_b32 v{ACC+i}, 0")
    def smf(k):
        for t in range(2):
            w = VW + 80*t + 8*k
            a(f"v_smfmac_f32_16x16x64_bf16 v[{ACC+4*t}:{ACC+4*t+3}], v[{VA+4*k}:{VA+4*k+3}], v[{w}:{w+7}], v{VIDX}")
    def mem_phase(tag, pre, g2, ev):
        for w in range(1, 4):
            a(f"s_cmp_eq_u32 s{S_WAVE}, {w}\ns_cbranch_scc1 L{tag}_W{w}")
        for w in range(4):
            own = [w, w+4] + ([w+8] if w < 2 else [])
            a(f"L{tag}_W{w}:")
            pre()
            lds_ = [(VA+4*k, V_MG, 24+i, 0) for i, k in enumerate(own)]
            if g2: gather2(lds_, V_CHK, pad=g2)
            else: gather(lds_, V_CHK, depth=cfg.depthM)
            for k in own: a(f"ds_write_b128 v{V_ML}, v[{VA+4*k}:{VA+4*k+3}] offset:{k*1024}")
            for k in own[:-1]: smf(k)
            a("s_waitcnt lgkmcnt(0)")
            stamp(ev)
            a("s_barrier")
            if cfg.trace: a("s_waitcnt lgkmcnt(0)")
            oth = [k for k in range(10) if k not in own]
            for k in oth: a(f"ds_read_b128 v[{VA+4*k}:{VA+4*k+3}], v{V_ML} offset:{k*1024}")
            smf(own[-1])
            for i, k in enumerate(oth):
                a(f"s_waitcnt lgkmcnt({len(oth)-1-i})")
                smf(k)
            if w < 3: a(f"s_nop 5\ns_branch L{tag}_Wjoin")
            else: a("s_nop 6")
        a(f"L{tag}_Wjoin:")
    def halfsum():
        for t in range(2):
            a(f"v_pk_add_f32 v[{ACC+4*t}:{ACC+4*t+1}], v[{ACC+4*t}:{ACC+4*t+1}], v[{ACC+4*t+2}:{ACC+4*t+3}]")
    def token_pass(w_is_A, pause_at=None, pause=None):
        def rd(k):
            for tt in range(2):
                s = VA + 4*((2*k+tt) % 10)
                a(f"ds_read_b128 v[{s}:{s+3}], v{V_TOK} offset:{tt*20480 + k*1024}")
        for k in range(4): rd(k)
        for k in range(20):
            if k == pause_at: pause()
            if k + 4 < 20:
                rd(k+4); a("s_waitcnt lgkmcnt(8)")
            else:
                a(f"s_waitcnt lgkmcnt({2*(19-k)})")
            for tt in range(2):
                s = VA + 4*((2*k+tt) % 10)
                for t in range(2):
                    w = VW + 80*t + 4*k
                    d = ACC + 8*t + 4*tt
                    if cfg.nomfma and k: continue
                    if w_is_A: mfma32(d, w, s, d if k else None)
                    else: mfma32(d, s, w, d if k else None)
                    nop(cfg.paceQ if w_is_A else cfg.paceV)
        nop(8)
    def tok_base():
        a(f"""
        s_add_u32 s21, s{S_S}, 1
        s_and_b32 s27, s21, 1
        s_mul_i32 s24, s27, 40960
        v_add_u32 v{V_TOK}, s24, v5
        """)

    a(f"""
    s_sub_u32 s21, s{S_C}, 20
    s_mul_i32 s24, s21, 11
    s_lshr_b32 s24, s24, 5
    s_mul_i32 s25, s24, 3
    s_sub_u32 s42, s21, s25
    s_lshl_b32 s41, s{S_X}, 2
    s_add_u32 s41, s41, s24
    """)
    a(f"""
    v_lshrrev_b32 v8, 3, v0
    s_mul_i32 s21, s{S_WAVE}, 80
    v_add_u32 v8, s21, v8
    s_mov_b32 s21, 12288
    v_mul_lo_u32 v8, v8, s21
    s_mul_i32 s24, s41, 384
    s_lshl_b32 s25, s42, 7
    s_add_u32 s24, s24, s25
    v_lshl_add_u32 v8, v3, 4, v8
    v_add_u32 v8, s24, v8
    """)
    a(f"""
    v_lshrrev_b32 v6, 1, v1
    v_lshlrev_b32 v9, 4, v6
    v_and_b32 v6, 1, v1
    v_lshl_add_u32 v9, v6, 2, v9
    v_bfe_u32 v6, v0, 2, 1
    v_add_u32 v9, v9, v6
    v_lshl_add_u32 v9, v4, 3, v9
    v_lshlrev_b32 v9, 7, v9
    v_and_b32 v6, 3, v0
    v_lshl_add_u32 v9, v6, 3, v9
    s_lshl_b32 s21, s{S_WAVE}, 5
    v_add_u32 v9, s21, v9
    v_add_u32 v10, 40960, v9
    """)
    def stage_w(key):
        srd(8, KA[key], 640*12288)
        lp = a.label('stg')
        a(f"""
        s_mul_i32 s24, s{S_WAVE}, 10240
        s_mov_b32 s25, 0
        {lp}:
        s_mov_b32 m0, s24
        s_add_u32 s24, s24, 1024
        buffer_load_dwordx4 v8, {SA}, s25 offen{NT(cfg.ntQ)} lds
        s_add_u32 s25, s25, 98304
        s_cmp_lt_u32 s25, {98304*10}
        s_cbranch_scc1 {lp}
        """)
    def read_w(mat):
        sk = a.label('stgs')
        a(f"s_cmp_ge_u32 s{S_WAVE}, 4\ns_cbranch_scc1 {sk}")
        for k in range(20):
            for d in range(2):
                r = VW + 80*mat + 4*k + 2*d
                a(f"ds_read_b64_tr_b16 v[{r}:{r+1}], v{9 if k < 10 else 10} offset:{(k % 10)*4096 + d*256}")
        a(f"s_waitcnt lgkmcnt(0)\n{sk}:")
    LRED, LPAR, LTR = 81920, 98304, 104448
    XR = 176
    srd(8, KA['wmod'], 640*7680)
    srd(12, KA['c'], 1280)
    a(f"""
    s_mul_i32 s46, s{S_X}, 12
    s_add_u32 s46, s46, s{S_C}
    s_sub_u32 s46, s46, 20
    v_lshrrev_b32 v11, 3, v89
    v_mul_u32_u24 v12, 7680, v11
    v_lshl_add_u32 v12, v3, 4, v12
    v_lshlrev_b32 v11, 1, v11
    s_lshl_b32 s24, s46, 7
    s_cmp_lt_u32 s46, 60
    s_cselect_b32 s24, s24, {640*7680}
    """)
    for i in range(10):
        a(f"buffer_load_dwordx4 v[{16+4*i}:{19+4*i}], v12, {SA}, s24 offen{NT(cfg.ntP)}")
        a(f"buffer_load_ushort v{56+i}, v11, {SB}, 0 offen offset:{i*128}")
        if i < 9: a(f"s_add_u32 s24, s24, {64*7680}")
    srd(12, KA['x'], 2048*1280)
    a(f"""
    v_mov_b32 v13, 0x40000000
    v_cmp_gt_u32 s[48:49], 40, v0
    v_lshlrev_b32 v14, 5, v0
    s_lshl_b32 s24, s46, 3
    s_add_u32 s24, s24, s{S_WAVE}
    s_mul_i32 s24, s24, 1280
    v_cndmask_b32 v14, v13, v14, s[48:49]
    """)
    for i in range(3):
        a(f"buffer_load_dwordx4 v[{XR+8*i}:{XR+8*i+3}], v14, {SB}, s24 offen")
        a(f"buffer_load_dwordx4 v[{XR+8*i+4}:{XR+8*i+7}], v14, {SB}, s24 offen offset:16")
        if i < 2: a(f"s_add_u32 s24, s24, {96*8*1280}")
    stage_w('Wq')
    a("s_waitcnt vmcnt(16)")
    for i in range(10): a(f"v_lshlrev_b32 v{56+i}, 16, v{56+i}\nv_mul_f32 v{66+i}, {hex(f2u(-math.log2(math.e)))}, v{56+i}")
    for i in range(10): a(f"v_exp_f32 v{66+i}, v{66+i}")
    for i in range(10): a(f"v_add_f32 v{66+i}, 1.0, v{66+i}")
    for i in range(10): a(f"v_rcp_f32 v{66+i}, v{66+i}")
    for i in range(10): a(f"v_mul_f32 v{56+i}, v{56+i}, v{66+i}")
    for i in range(10): a(f"v_cvt_pk_bf16_f32 v{56+i}, v{56+i}, v{56+i}\nv_lshlrev_b32 v{56+i}, 16, v{56+i}")
    for i in range(10):
        for j in range(4):
            w = 16 + 4*i + j
            a(f"v_lshlrev_b32 v66, 16, v{w}\nv_and_b32 v67, 0xffff0000, v{w}")
            if i == 0: a(f"v_mul_f32 v{76+2*j}, v66, v56\nv_mul_f32 v{77+2*j}, v67, v56")
            else: a(f"v_fmac_f32 v{76+2*j}, v66, v{56+i}\nv_fmac_f32 v{77+2*j}, v67, v{56+i}")
    for j in range(8): a(f"v_add_f32_dpp v{76+j}, v{76+j}, v{76+j} row_ror:8 row_mask:0xf bank_mask:0xf")
    a(f"""
    v_lshlrev_b32 v12, 5, v3
    v_lshl_add_u32 v12, v1, 8, v12
    s_lshl_b32 s21, s{S_WAVE}, 10
    s_add_u32 s21, s21, {LRED}
    v_add_u32 v12, s21, v12
    ds_write_b128 v12, v[76:79]
    ds_write_b128 v12, v[80:83] offset:16
    s_waitcnt lgkmcnt(0)
    s_barrier
    s_cmp_eq_u32 s{S_WAVE}, 7
    s_cbranch_scc1 LQ_mode
    s_cmp_lg_u32 s{S_WAVE}, 4
    s_cbranch_scc1 LQ_mj
    v_lshlrev_b32 v12, 2, v0
    v_add_u32 v11, {LRED}, v12
    """)
    for i in range(32): a(f"ds_read_b32 v{16+i}, v11 offset:{i*256}")
    a("s_waitcnt lgkmcnt(0)")
    for st in (16, 8, 4, 2):
        for i in range(0, st, 2): a(f"v_pk_add_f32 v[{16+i}:{17+i}], v[{16+i}:{17+i}], v[{16+st+i}:{17+st+i}]")
    a(f"""
    v_add_f32 v16, v16, v17
    v_cvt_pk_bf16_f32 v16, v16, v16
    v_lshlrev_b32 v16, 16, v16
    s_lshl_b32 s24, s46, 8
    s_add_u32 s24, s24, {WS_MOD}
    s_cmp_lt_u32 s46, 60
    s_cselect_b32 s24, s24, {WS_SIZE}
    buffer_store_dword v16, v12, {WS}, s24 offen sc1
    s_branch LQ_mj
    LQ_mode:
    """)
    mode_wave()
    a(f"""
    LQ_mj:
    s_waitcnt vmcnt(0)
    s_barrier
    s_cmp_lg_u32 s{S_WAVE}, 4
    s_cbranch_scc1 LQ_mf
    s_lshl_b32 s21, s46, 7
    s_add_u32 s21, s21, {FLM}
    s_cmp_lt_u32 s46, 60
    s_cselect_b32 s21, s21, {WS_SIZE}
    v_mov_b32 v16, 0
    v_mov_b32 v17, 1
    s_mov_b64 exec, 1
    buffer_store_dword v17, v16, {WS}, s21 offen sc1
    s_mov_b64 exec, -1
    v_min_u32 v16, 59, v0
    v_lshlrev_b32 v16, 7, v16
    v_add_u32 v16, {FLM}, v16
    s_mov_b32 s21, 1
    """)
    wait_flags(17, 16, 21, sleep=4)
    a(f"s_mov_b32 s24, {WS_MOD}\ns_mov_b32 s25, {WS_MOD + 4096}\nv_add_u32 v11, {LPAR}, v5")
    for i in range(5): a(f"buffer_load_dwordx4 v[{16+4*i}:{19+4*i}], v5, {WS}, s{24 if i < 4 else 25} offen offset:{(i%4)*1024} sc1")
    for i in range(5): a(f"s_waitcnt vmcnt({4-i})\nds_write_b128 v11, v[{16+4*i}:{19+4*i}] offset:{i*1024}")
    a("s_waitcnt lgkmcnt(0)\nLQ_mf:")
    read_w(0)
    a("s_barrier")
    stage_w('Wk')
    a(f"v_min_u32 v7, 39, v0\nv_lshlrev_b32 v7, 6, v7\nv_add_u32 v7, {LPAR}, v7")
    for i in range(4): a(f"ds_read_b128 v[{48+4*i}:{51+4*i}], v7 offset:{i*16}")
    for i in range(4): a(f"ds_read_b128 v[{64+4*i}:{67+4*i}], v7 offset:{2560+i*16}")
    a(f"""
    v_min_u32 v12, 39, v0
    v_lshlrev_b32 v12, 8, v12
    s_lshl_b32 s26, s{S_WAVE}, 4
    s_add_u32 s26, s26, {LTR}
    v_add_u32 v12, s26, v12
    s_mov_b32 s27, 0
    s_waitcnt lgkmcnt(0)
    """)
    for i in range(0, 16, 2): a(f"v_pk_add_f32 v[{64+i}:{65+i}], v[{64+i}:{65+i}], 1.0 op_sel_hi:[1,0]")
    def rowsum(v, t):
        for r in (8, 4, 2, 1):
            a(f"s_nop 1\nv_add_f32_dpp v{v}, v{v}, v{v} row_ror:{r} row_mask:0xf bank_mask:0xf")
        xlane("v_add_f32", v, t)
    a("LQ_ln:")
    for i in range(8):
        a(f"v_lshlrev_b32 v{16+2*i}, 16, v{XR+i}\nv_and_b32 v{17+2*i}, 0xffff0000, v{XR+i}")
    for i in range(16): a(f"v_mov_b32 v{XR+i}, v{XR+8+i}")
    a("v_pk_add_f32 v[32:33], v[16:17], v[18:19]")
    for i in range(20, 32, 2): a(f"v_pk_add_f32 v[32:33], v[32:33], v[{i}:{i+1}]")
    a("v_add_f32 v32, v32, v33")
    rowsum(32, 33)
    a(f"v_mul_f32 v32, {hex(f2u(1/640))}, v32")
    for i in range(16, 32, 2): a(f"v_pk_add_f32 v[{i}:{i+1}], v[{i}:{i+1}], v[32:33] op_sel_hi:[1,0] neg_lo:[0,1] neg_hi:[0,1]")
    a("v_pk_mul_f32 v[34:35], v[16:17], v[16:17]")
    for i in range(18, 32, 2): a(f"v_pk_fma_f32 v[34:35], v[{i}:{i+1}], v[{i}:{i+1}], v[34:35]")
    a("v_add_f32 v34, v34, v35\nv_cndmask_b32 v34, 0, v34, s[48:49]")
    rowsum(34, 35)
    a(f"""
    v_mov_b32 v35, {hex(f2u(1e-5))}
    v_fmac_f32 v35, {hex(f2u(1/640))}, v34
    v_rsq_f32 v34, v35
    s_nop 0
    """)
    for i in range(0, 16, 2): a(f"v_pk_mul_f32 v[{16+i}:{17+i}], v[{16+i}:{17+i}], v[34:35] op_sel_hi:[1,0]")
    for i in range(0, 16, 2): a(f"v_pk_fma_f32 v[{16+i}:{17+i}], v[{16+i}:{17+i}], v[{64+i}:{65+i}], v[{48+i}:{49+i}]")
    for j, d in enumerate([0, 4, 1, 5, 2, 6, 3, 7]): cvt(40+j, 16+2*d, 17+2*d)
    a(f"""
    s_mov_b64 exec, s[48:49]
    ds_write_b128 v12, v[40:43]
    ds_write_b128 v12, v[44:47] offset:128
    s_mov_b64 exec, -1
    v_add_u32 v12, 10240, v12
    s_add_u32 s27, s27, 1
    s_cmp_lt_u32 s27, 3
    s_cbranch_scc1 LQ_ln
    s_waitcnt lgkmcnt(0)
    s_barrier
    v_lshlrev_b32 v12, 4, v89
    v_add_u32 v12, {LTR}, v12
    """)
    for i in range(3):
        a(f"ds_read_b128 v[{16+8*i}:{19+8*i}], v12 offset:{i*10240}\nds_read_b128 v[{20+8*i}:{23+8*i}], v12 offset:{i*10240+8192}")
    a(f"""
    v_lshrrev_b32 v6, 3, v89
    v_lshlrev_b32 v6, 8, v6
    v_lshl_add_u32 v6, v3, 4, v6
    v_add_u32 v7, 16384, v6
    s_cmp_lt_u32 s{S_WAVE}, 2
    s_cselect_b32 s28, 0, 0x40000000
    v_add_u32 v7, s28, v7
    s_lshr_b32 s26, s46, 1
    s_mul_i32 s26, s26, 20480
    s_and_b32 s27, s46, 1
    s_lshl_b32 s27, s27, 7
    s_add_u32 s26, s26, s27
    s_add_u32 s26, s26, {WS_H}
    s_waitcnt lgkmcnt(0)
    """)
    for i in range(3):
        if i == 2: a("s_cmp_ge_u32 s46, 64\ns_cbranch_scc1 LQ_lnx")
        a(f"buffer_store_dwordx4 v[{16+8*i}:{19+8*i}], v6, {WS}, s26 offen sc1\nbuffer_store_dwordx4 v[{20+8*i}:{23+8*i}], v7, {WS}, s26 offen sc1")
        if i < 2: a(f"s_add_u32 s26, s26, {48*20480}")
    a("LQ_lnx:\ns_waitcnt vmcnt(0)\ns_barrier")
    set_h(4)
    read_w(1)
    a("s_barrier")
    a(f"""
    s_cmp_eq_u32 s{S_WAVE}, 4
    s_cbranch_scc1 LQ_C0
    s_cmp_eq_u32 s{S_WAVE}, 5
    s_cbranch_scc1 LQ_C1
    s_cmp_eq_u32 s{S_WAVE}, 6
    s_cbranch_scc1 LQ_C2
    s_cmp_eq_u32 s{S_WAVE}, 7
    s_cbranch_scc1 LQ_C3
    """)
    pstamp(2)
    w_setup()
    wait_h()
    a(f"""
    s_mov_b32 s28, 0
    """)
    dma_tokens(28)
    a("s_mov_b32 s28, 1")
    dma_tokens(28)
    a(f"""
    v_mul_u32_u24 v{V_OUT}, 384, v1
    v_lshl_add_u32 v{V_OUT}, v2, 4, v{V_OUT}
    s_mul_i32 s21, s{S_WAVE}, 1536
    s_add_u32 s21, s21, {LDS_QKM}
    v_add_u32 v{V_OUT}, s21, v{V_OUT}
    s_lshr_b32 s21, s{S_WAVE}, 1
    s_lshl_b32 s21, s21, 11
    s_and_b32 s24, s{S_WAVE}, 1
    s_lshl_b32 s24, s24, 3
    s_add_u32 s21, s21, s24
    s_add_u32 s21, s21, {LDS_QX}
    v_add_u32 v{V_OUT2}, s21, v5
    v_lshrrev_b32 v6, 1, v0
    v_lshlrev_b32 v6, 3, v6
    v_and_b32 v7, 1, v0
    v_add_u32 v6, v6, v7
    s_lshl_b32 s21, s{S_WAVE}, 1
    v_add_u32 v6, s21, v6
    s_lshl_b32 s21, s{S_X}, 5
    s_add_u32 s21, s21, s{S_C}
    s_mul_i32 s21, s21, {NLC}
    s_add_u32 s21, s21, {WS_NL}
    v_lshlrev_b32 v6, 7, v6
    v_add_u32 v36, s21, v6
    s_cmp_lt_u32 s{S_WAVE}, 2
    s_cselect_b32 s44, 63, 15
    s_mov_b32 s45, 0
    s_waitcnt vmcnt(0)
    s_barrier
    s_mov_b32 s{S_S}, -1
    s_branch LQ_Wtok
    LQ_Wloop:
    """)
    a("s_setprio 2")
    m_addr()
    stamp(4)
    def pre_q():
        if cfg.nM: nscout(V_SC, 36, S_S, 44)
        else: scout(V_SC, V_MG, 24)
        stamp(3)
    mem_phase('Q', pre_q, cfg.g2M, 0)
    halfsum()
    cvt(ACC+8, ACC, ACC+1); cvt(ACC+9, ACC, ACC+1); cvt(ACC+10, ACC+4, ACC+5); cvt(ACC+11, ACC+4, ACC+5)
    a(f"""
    ds_write_b128 v{V_OUT}, v[{ACC+8}:{ACC+11}]
    s_waitcnt lgkmcnt(0)
    s_barrier
    s_setprio 0
    s_waitcnt vmcnt(0)
    """)
    after_wait()
    stamp_commit([0, 1, 2, 3, 4], 16)
    a(f"""
    s_cmp_eq_u32 s{S_S}, 63
    s_cbranch_scc1 LQ_Wend
    s_sleep {cfg.slQW}
    LQ_Wtok:
    """)
    tok_base()
    stampc(1)
    if cfg.trace: a("s_waitcnt lgkmcnt(0)")
    token_pass(True)
    stampc(2)
    a(f"s_lshl_b32 s27, s27, 13\nv_add_u32 v6, s27, v{V_OUT2}")
    for t in range(2):
        for tt in range(2):
            d = ACC + 8*t + 4*tt
            cvt(d, d, d+1); cvt(d+1, d+2, d+3)
            a(f"ds_write_b64 v6, v[{d}:{d+1}] offset:{t*4096 + tt*1024}")
    a(f"""
    s_waitcnt vmcnt(0) lgkmcnt(0)
    s_add_u32 s{S_S}, s{S_S}, 1
    s_branch LQ_Wloop
    LQ_Wend:
    """)
    if cfg.trace:
        a(f"s_cmp_lg_u32 s{S_WAVE}, 0\ns_cbranch_scc1 LM_tail")
        stamp_dump([0, 3, 4], 16, 0); stamp_dump([1, 2], 16, 8)
    a("s_branch LM_tail")

    KX, QM, KM, S0, S1, SM = 16, 32, 40, 48, 52, 56
    V_TR, V_A1, V_A2, V_QXR = 8, 9, 10, 11
    def trbase(v):
        a(f"""
        v_and_b32 v6, 3, v0
        v_mul_u32_u24 v{v}, 384, v6
        v_lshrrev_b32 v6, 2, v0
        v_lshl_add_u32 v{v}, v6, 4, v{v}
        v_add_u32 v{v}, {LDS_QKM}, v{v}
        """)
    a("LQ_C0:\ns_setprio 3")
    trbase(V_TR)
    a(f"""
    v_bfe_u32 v12, v0, 2, 2
    v_and_b32 v6, 1, v0
    v_lshl_add_u32 v12, v12, 1, v6
    v_bfe_u32 v13, v0, 1, 1
    v_lshlrev_b32 v{V_A2}, 4, v12
    s_and_b32 s21, s41, 1
    s_lshl_b32 s21, s21, 7
    v_add_u32 v{V_A2}, s21, v{V_A2}
    v_and_b32 v6, 1, v1
    v_lshl_add_u32 v{V_A1}, v6, 3, v{V_A2}
    v_lshl_add_u32 v{V_A2}, v1, 2, v{V_A2}
    v_lshrrev_b32 v6, 1, v1
    v_lshl_add_u32 v{V_A1}, v6, 8, v{V_A1}
    s_cmp_eq_u32 s42, 2
    s_cselect_b32 s24, 9, 10
    s_lshl_b32 s25, s42, 9
    s_cmp_eq_u32 s42, 2
    s_cselect_b32 s25, 2048, s25
    v_lshlrev_b32 v6, s24, v13
    v_add_u32 v{V_A1}, v{V_A1}, v6
    v_add_u32 v{V_A1}, s25, v{V_A1}
    s_lshl_b32 s25, s42, 8
    s_add_u32 s25, s25, 3072
    v_add_u32 v{V_A2}, s25, v{V_A2}
    s_lshl_b32 s43, s{S_X}, 13
    s_bfe_u32 s21, s41, 0x10001
    s_lshl_b32 s21, s21, 12
    s_add_u32 s43, s43, s21
    s_add_u32 s43, s43, {WS_L1R}
    v_cmp_eq_u32 s[44:45], 1, v13
    v_mov_b32 v60, -1
    v_mov_b32 v61, -1
    s_mul_i32 s21, s{S_X}, {32*NLC}
    s_sub_u32 s24, s{S_C}, 20
    s_lshl_b32 s24, s24, 7
    s_add_u32 s21, s21, s24
    s_add_u32 s21, s21, {WS_NL}
    v_mul_u32_u24 v14, {NLC}, v0
    v_add_u32 v14, s21, v14
    v_mov_b32 v6, 0x40000000
    v_cmp_gt_u32 vcc, 20, v0
    s_nop 1
    v_cndmask_b32 v14, v6, v14, vcc
    s_barrier
    """)
    read_mode()
    a(f"""
    s_mov_b32 s{S_S}, 0
    LQ_C0loop:
    s_and_b32 s21, s{S_S}, 1
    s_lshl_b32 s21, s21, 13
    s_add_u32 s21, s21, {LDS_QX + 4096}
    v_add_u32 v{V_QXR}, s21, v5
    s_and_b32 s21, s{S_S}, 3
    s_mul_i32 s24, s21, {L1SLOT}
    s_add_u32 s24, s24, s43
    s_xor_b32 s21, s21, 2
    s_mul_i32 s25, s21, {L1SLOT}
    s_add_u32 s25, s25, s43
    s_add_u32 s21, s{S_S}, 1
    v_mov_b32 v15, s21
    s_barrier
    """)
    for tt in range(2):
        for p in range(2):
            r = KX + 8*tt + 4*p
            a(f"ds_read_b128 v[{r}:{r+3}], v{V_QXR} offset:{p*2048 + tt*1024}")
    a("s_waitcnt vmcnt(0) lgkmcnt(0)")
    if cfg.nL1 == 2:
        nop(cfg.dN1*4)
        lstore(f"buffer_store_dword v15, v14, {WS}, 0 offen")
    a("s_barrier")
    stamp(1)
    if cfg.trace: a("s_waitcnt lgkmcnt(0)")
    for w in range(4): a(f"ds_read_b64_tr_b16 v[{QM+2*w}:{QM+2*w+1}], v{V_TR} offset:{w*1536}")
    for w in range(4): a(f"ds_read_b64_tr_b16 v[{KM+2*w}:{KM+2*w+1}], v{V_TR} offset:{w*1536+8}")
    if cfg.nL1 == 1: lstore(f"buffer_store_dword v15, v14, {WS}, 0 offen")
    a(f"s_waitcnt lgkmcnt(6)")
    mfma32(S0, KX, QM, None); mfma32(S1, KX+8, QM, None)
    a(f"s_waitcnt lgkmcnt(4)")
    mfma32(S0, KX+4, QM+4, S0); mfma32(S1, KX+12, QM+4, S1)
    a(f"s_waitcnt lgkmcnt(2)")
    mfma32(SM, KM, QM, None)
    a("s_waitcnt lgkmcnt(0)")
    mfma32(SM, KM+4, QM+4, SM)
    nop(4)
    cvt(S0, S0, S0+1); cvt(S0+1, S0+2, S0+3); cvt(S1, S1, S1+1); cvt(S1+1, S1+2, S1+3)
    cvt(SM, SM, SM+1)
    for i in range(2): a(f"v_cndmask_b32 v{S0+i}, v{S0+i}, v{S1+i}, s[44:45]")
    san(S0); san(S0+1); san(SM)
    lstore([f"buffer_store_dwordx2 v[{S0}:{S0+1}], v{V_A1}, {WS}, s24 offen",
            f"buffer_store_dword v{SM}, v{V_A2}, {WS}, s24 offen"])
    with lt(): stamp(2)
    lstore([f"buffer_store_dwordx2 v[60:61], v{V_A1}, {WS}, s25 offen",
            f"buffer_store_dword v60, v{V_A2}, {WS}, s25 offen"])
    stamp_commit([1, 2], 64)
    if T2:
        with lt(): stamp_commit([2], 64)
    a(f"""
    s_add_u32 s27, s{S_S}, 2
    s_cmp_gt_u32 s27, 63
    s_cbranch_scc1 LQ_C0nd
    s_sleep {cfg.slQD}
    """)
    if not cfg.nold: dma_tokens_all(27)
    a("LQ_C0nd:")
    if cfg.trace:
        a("s_waitcnt vmcnt(0)")
        stamp(6)
        stamp_commit([6], 64)
    a(f"""
    s_add_u32 s{S_S}, s{S_S}, 1
    s_cmp_lt_u32 s{S_S}, 63
    s_cbranch_scc1 LQ_C0loop
    s_waitcnt vmcnt(0)
    """)
    stamp_dump([1, 2, 6], 64, 0)
    if T2:
        with lt(): stamp_dump([2], 64, 0)
    a("s_endpgm")

    QX_, KX_, KM_, T = 16, 32, 48, 56
    a("LQ_C1:")
    if not cfg.tokpath: a("s_barrier\ns_endpgm")
    trbase(V_TR)
    a(f"""
    s_mul_i32 s43, s41, 3
    s_add_u32 s43, s43, s42
    s_lshl_b32 s44, s43, 7
    s_add_u32 s44, s44, {FL1}
    s_mul_i32 s43, s43, 5120
    s_add_u32 s43, s43, {WS_T1R}
    v_mov_b32 v9, 0
    v_lshlrev_b32 v12, 3, v0
    s_barrier
    """)
    read_mode()
    a(f"""
    s_mov_b32 s{S_S}, 0
    LQ_C1loop:
    s_and_b32 s21, s{S_S}, 1
    s_lshl_b32 s21, s21, 13
    s_add_u32 s21, s21, {LDS_QX}
    v_add_u32 v{V_QXR}, s21, v5
    s_and_b32 s21, s{S_S}, 3
    s_mul_i32 s24, s21, {T1SLOT}
    s_add_u32 s24, s24, s43
    s_add_u32 s25, s24, 4096
    s_add_u32 s26, s{S_S}, 1
    v_mov_b32 v10, s26
    s_barrier
    """)
    if T2:
        with lt(): stamp(0)
    a("s_barrier")
    if T2:
        with lt(): stamp(1); stamp_commit([0, 1], 80)
    a(f"""
    s_cmp_eq_u32 s{S_S}, 63
    s_cbranch_scc1 LQ_C1ns
    s_sleep {cfg.slQC}
    LQ_C1ns:
    """)
    for tt in range(2):
        for p in range(2):
            a(f"ds_read_b128 v[{QX_+8*tt+4*p}:{QX_+8*tt+4*p+3}], v{V_QXR} offset:{p*2048 + tt*1024}")
            a(f"ds_read_b128 v[{KX_+8*tt+4*p}:{KX_+8*tt+4*p+3}], v{V_QXR} offset:{4096 + p*2048 + tt*1024}")
    for w in range(4): a(f"ds_read_b64_tr_b16 v[{KM_+2*w}:{KM_+2*w+1}], v{V_TR} offset:{w*1536+8}")
    a("s_waitcnt lgkmcnt(0)")
    tl = [(KX_, QX_), (KM_, QX_), (KX_, QX_+8), (KX_+8, QX_+8), (KM_, QX_+8)]
    for p in range(2):
        for i, (A_, B_) in enumerate(tl):
            mfma32(T+4*i, A_+4*p, B_+4*p, T+4*i if p else None)
    nop(8)
    lstore([(f"buffer_store_dwordx2 v[{T+4*i}:{T+4*i+1}], v12, {WS}, " if i in (1, 4) else f"buffer_store_dwordx4 v[{T+4*i}:{T+4*i+3}], v5, {WS}, ")
            + (f"s24 offen offset:{i*1024}" if i < 4 else "s25 offen") for i in range(5)])
    a("s_waitcnt vmcnt(0)\ns_mov_b64 exec, 1")
    lstore(f"buffer_store_dword v10, v9, {WS}, s44 offen")
    a(f"""
    s_mov_b64 exec, -1
    s_add_u32 s{S_S}, s{S_S}, 1
    s_cmp_lt_u32 s{S_S}, 64
    s_cbranch_scc1 LQ_C1loop
    s_waitcnt vmcnt(0)
    """)
    if T2:
        with lt(): stamp_dump([0, 1], 80, 0)
    a("s_endpgm")

    X0 = 16
    a("LQ_C2:")
    if not cfg.tokpath: a("s_barrier\ns_endpgm")
    a(f"""
    s_cmp_eq_u32 s42, 2
    s_cbranch_scc1 LQ_exit1
    s_mul_i32 s43, s41, {3*5120}
    s_add_u32 s43, s43, {WS_T1R}
    s_mul_i32 s21, s41, {3*128}
    s_add_u32 s21, s21, {FL1}
    v_min_u32 v8, 2, v0
    v_lshlrev_b32 v8, 7, v8
    v_add_u32 v8, s21, v8
    s_lshl_b32 s44, s41, 1
    s_add_u32 s44, s44, s42
    s_lshl_b32 s45, s44, 7
    s_add_u32 s45, s45, {FL2}
    s_mul_i32 s44, s44, 1536
    s_add_u32 s44, s44, {WS_PR}
    s_lshl_b32 s46, s42, 11
    s_mul_i32 s47, s42, 3072
    s_add_u32 s48, s47, 1024
    v_lshlrev_b32 v9, 3, v0
    v_mov_b32 v10, 0
    v_lshlrev_b32 v6, 2, v1
    s_lshl_b32 s21, s42, 4
    v_add_u32 v7, s21, v2
    """)
    for i in range(8):
        a(f"v_add_u32 v11, {16*(i>>2) + (i&3)}, v6\nv_cmp_le_u32 s[{50+2*i}:{51+2*i}], v11, v7")
    a(f"""
    v_mov_b32 v12, {NEGBIG}
    v_lshlrev_b32 v14, 2, v0
    s_mov_b32 s66, {CSC}
    s_mov_b32 s67, {CSC}
    s_barrier
    """)
    read_mode()
    a(f"""
    s_barrier
    s_barrier
    s_mov_b32 s{S_S}, 1
    LQ_C2loop:
    s_cmp_gt_u32 s{S_S}, 63
    s_cbranch_scc1 LQ_C2nb
    s_barrier
    s_barrier
    s_cmp_eq_u32 s{S_S}, 63
    s_cbranch_scc1 LQ_C2nb
    s_sleep {cfg.slQC}
    LQ_C2nb:
    s_sub_u32 s21, s{S_S}, 1
    s_and_b32 s21, s21, 3
    s_mul_i32 s24, s21, {T1SLOT}
    s_add_u32 s24, s24, s43
    s_mul_i32 s30, s21, {PSLOT}
    s_add_u32 s30, s30, s44
    v_mov_b32 v13, s{S_S}
    """)
    wait_flags(11, 8, S_S)
    for pp in range(3):
        for j, so in enumerate((46, 47, 48)):
            r = X0 + 12*pp + 4*j
            a(f"s_add_u32 s25, s24, s{so}")
            if j < 2: a(f"buffer_load_dwordx4 v[{r}:{r+3}], v5, {WS}, s25 offen sc1")
            else: a(f"buffer_load_dwordx2 v[{r}:{r+1}], v9, {WS}, s25 offen sc1")
        if pp < 2: a("s_add_u32 s24, s24, 5120")
    a("s_waitcnt vmcnt(3)")
    for i in range(0, 10, 2): a(f"v_pk_add_f32 v[{X0+i}:{X0+i+1}], v[{X0+i}:{X0+i+1}], v[{X0+12+i}:{X0+13+i}]")
    a("s_waitcnt vmcnt(0)")
    for i in range(0, 10, 2): a(f"v_pk_add_f32 v[{X0+i}:{X0+i+1}], v[{X0+i}:{X0+i+1}], v[{X0+24+i}:{X0+25+i}]")
    for i in range(8): a(f"v_cndmask_b32 v{X0+i}, v12, v{X0+i}, s[{50+2*i}:{51+2*i}]")
    def softmax_max(X, mx, t, sc):
        a(f"v_max3_f32 v{mx}, v{X}, v{X+1}, v{X+2}")
        for i in range(3, 9, 2): a(f"v_max3_f32 v{mx}, v{mx}, v{X+i}, v{X+i+1}")
        a(f"v_max_f32 v{mx}, v{mx}, v{X+9}")
        xlane("v_max_f32", mx, t)
        a(f"v_mul_f32 v{mx}, s{sc}, v{mx}")
    def pkarg(x, mx, sc):
        a(f"v_pk_fma_f32 v[{x}:{x+1}], v[{x}:{x+1}], s[{sc}:{sc+1}], v[{mx}:{mx+1}] op_sel_hi:[1,1,0] neg_lo:[0,0,1] neg_hi:[0,0,1]")
    softmax_max(X0, 52, 53, 66)
    for i in range(0, 10, 2): pkarg(X0+i, 52, 66)
    for i in range(10): a(f"v_exp_f32 v{X0+i}, v{X0+i}")
    a(f"v_pk_add_f32 v[52:53], v[{X0}:{X0+1}], v[{X0+2}:{X0+3}]")
    for i in range(4, 10, 2): a(f"v_pk_add_f32 v[52:53], v[52:53], v[{X0+i}:{X0+i+1}]")
    a("v_add_f32 v52, v52, v53")
    xlane("v_add_f32", 52, 53)
    a("v_rcp_f32 v52, v52\ns_nop 0")
    for i in range(0, 10, 2): a(f"v_pk_mul_f32 v[{X0+i}:{X0+i+1}], v[{X0+i}:{X0+i+1}], v[52:53] op_sel_hi:[1,0]")
    for i in range(5): cvt(X0+12+i, X0+2*i, X0+2*i+1)
    lstore([f"buffer_store_dwordx4 v[{X0+12}:{X0+15}], v5, {WS}, s30 offen",
            f"buffer_store_dword v{X0+16}, v14, {WS}, s30 offen offset:1024"])
    a("s_waitcnt vmcnt(0)\ns_mov_b64 exec, 1")
    lstore(f"buffer_store_dword v13, v10, {WS}, s45 offen")
    a(f"""
    s_mov_b64 exec, -1
    s_add_u32 s{S_S}, s{S_S}, 1
    s_cmp_lt_u32 s{S_S}, 65
    s_cbranch_scc1 LQ_C2loop
    s_waitcnt vmcnt(0)
    s_endpgm
    LQ_exit1:
    s_load_dwordx2 s[48:49], s[0:1], {KA['w1']}
    s_load_dwordx2 s[50:51], s[0:1], {KA['w2']}
    s_mov_b32 s10, {640*3072}
    s_mov_b32 s11, 0x20000
    v_add_u32 v9, {LDS_RL}, v5
    v_bfe_u32 v6, v0, 2, 2
    v_lshlrev_b32 v12, 7, v6
    v_and_b32 v6, 3, v0
    v_lshl_add_u32 v12, v6, 3, v12
    v_add_u32 v12, {LDS_RL}, v12
    v_lshrrev_b32 v13, 3, v0
    s_waitcnt lgkmcnt(0)
    s_barrier
    s_mov_b32 s{S_S}, 0
    LQ_rl:
    ; tile id = 32*s + head ; <480: w1 (kappa = id/24, nb = id%24) else w2 (kappa = id'/10, nb = id'%10)
    s_lshl_b32 s21, s{S_S}, 5
    s_add_u32 s21, s21, s41
    s_cmp_lt_u32 s21, 480
    s_cbranch_scc0 LQ_rl2
    s_mul_i32 s24, s21, 2731
    s_lshr_b32 s24, s24, 16
    s_mul_i32 s25, s24, 24
    s_sub_u32 s25, s21, s25
    s_mov_b64 s[8:9], s[48:49]
    s_mov_b32 s26, 3072
    s_mov_b32 s28, {20*1024}
    s_mov_b32 s27, {WS_W1F}
    s_mov_b32 s29, 1024
    s_mov_b32 s30, 512
    s_branch LQ_rlj
    LQ_rl2:
    s_sub_u32 s21, s21, 480
    s_mul_i32 s24, s21, 6554
    s_lshr_b32 s24, s24, 16
    s_mul_i32 s25, s24, 10
    s_sub_u32 s25, s21, s25
    s_mov_b64 s[8:9], s[50:51]
    s_mov_b32 s26, 1280
    s_mov_b32 s28, {48*1024}
    s_mov_b32 s27, {WS_W2F}
    s_mov_b32 s29, 512
    s_mov_b32 s30, 2048
    LQ_rlj:
    s_mul_i32 s31, s25, s28
    s_lshl_b32 s31, s31, 2
    s_add_u32 s27, s27, s31
    s_lshl_b32 s31, s24, 10
    s_add_u32 s27, s27, s31
    s_lshl_b32 s31, s24, 5
    v_add_u32 v8, s31, v13
    v_mul_lo_u32 v8, v8, s26
    v_lshl_add_u32 v8, v3, 4, v8
    s_lshl_b32 s31, s25, 7
    s_lshl_b32 s32, s26, 3
    v_mul_lo_u32 v10, v1, s29
    v_add_u32 v10, v10, v12
    v_add_u32 v11, s30, v10
    s_barrier
    s_barrier
    s_sleep {cfg.slQ3}
    """)
    for i in range(4):
        a(f"buffer_load_dwordx4 v[{16+4*i}:{19+4*i}], v8, {SA}, s31 offen{NT(cfg.ntP)}")
        if i < 3: a("s_add_u32 s31, s31, s32")
    a(f"s_cmp_eq_u32 s{S_S}, 0\ns_cbranch_scc1 LQ_rl0")
    for n in range(4):
        a(f"buffer_store_dwordx4 v[{32+4*n}:{35+4*n}], v5, {WS}, s33 offen sc1")
        if n < 3: a("s_add_u32 s33, s33, s34")
    a(f"LQ_rl0:\ns_mov_b32 s33, s27\ns_mov_b32 s34, s28\ns_waitcnt vmcnt(0)")
    for i in range(4): a(f"ds_write_b128 v9, v[{16+4*i}:{19+4*i}] offset:{i*1024}")
    for n in range(4):
        a(f"ds_read_b64_tr_b16 v[{32+4*n}:{33+4*n}], v10 offset:{n*32}")
        a(f"ds_read_b64_tr_b16 v[{34+4*n}:{35+4*n}], v11 offset:{n*32}")
    a(f"""
    s_waitcnt lgkmcnt(0)
    s_add_u32 s{S_S}, s{S_S}, 1
    s_cmp_lt_u32 s{S_S}, 31
    s_cbranch_scc1 LQ_rl
    s_endpgm
    """)

    a("LQ_C3:")
    a(f"""
    s_sub_u32 s21, s{S_C}, 20
    s_cmp_ge_u32 s21, 10
    s_cbranch_scc1 LM_end
    s_lshl_b32 s43, s21, 12
    s_add_u32 s43, s43, {WS_H + 2*40960}
    v_lshlrev_b32 v8, 6, v0
    s_mul_i32 s24, s{S_X}, 10
    s_add_u32 s24, s24, s21
    s_lshl_b32 s44, s24, 12
    s_add_u32 s44, s44, {WS_O}
    s_lshr_b32 s45, s24, 2
    s_and_b32 s46, s24, 3
    """)
    build_sel(16, 20)
    srd(8, KA['x'], 2048*1280)
    a(f"""
    v_and_b32 v6, 3, v2
    v_lshlrev_b32 v10, 3, v6
    v_and_b32 v6, 1, v1
    v_lshl_add_u32 v10, v6, 2, v10
    s_lshl_b32 s21, s45, 5
    v_add_u32 v10, s21, v10
    v_lshlrev_b32 v11, 2, v10
    v_lshrrev_b32 v6, 1, v1
    v_lshlrev_b32 v6, 2, v6
    v_lshrrev_b32 v7, 2, v2
    v_add_u32 v6, v6, v7
    s_lshl_b32 s21, s46, 3
    v_add_u32 v6, s21, v6
    ; x1 fragment offset v15 = (T>>4)*20480 + kappa*1024 + (16gc + (T&15))*16 + (g&1)*8
    v_and_b32 v7, 15, v6
    v_lshlrev_b32 v15, 4, v7
    v_and_b32 v7, 3, v2
    v_lshl_add_u32 v15, v7, 8, v15
    v_and_b32 v7, 1, v1
    v_lshl_add_u32 v15, v7, 3, v15
    s_lshr_b32 s21, s46, 1
    s_mul_i32 s21, s21, 20480
    s_lshl_b32 s24, s45, 10
    s_add_u32 s21, s21, s24
    v_add_u32 v15, s21, v15
    v_mul_u32_u24 v6, 1280, v6
    v_lshl_add_u32 v10, v10, 1, v6
    v_mov_b32 v28, -1
    v_mov_b32 v29, -1
    v_mov_b32 v30, -1
    v_mov_b32 v31, -1
    s_mov_b32 s21, s44
    s_add_u32 s24, s44, {8*OSLOT}
    LQ_armo:
    buffer_store_dwordx4 v[28:31], v5, {WS}, s21 offen sc1
    buffer_store_dwordx4 v[28:31], v5, {WS}, s21 offen offset:1024 sc1
    buffer_store_dwordx4 v[28:31], v5, {WS}, s21 offen offset:2048 sc1
    buffer_store_dwordx4 v[28:31], v5, {WS}, s21 offen offset:3072 sc1
    s_add_u32 s21, s21, {OSLOT}
    s_cmp_lt_u32 s21, s24
    s_cbranch_scc1 LQ_armo
    s_mov_b32 s21, {WS_X1 + 58*40960}
    LQ_armx:
    buffer_store_dwordx2 v[28:29], v15, {WS}, s21 offen sc1
    s_add_u32 s21, s21, 40960
    s_cmp_lt_u32 s21, {WS_X1 + 64*40960}
    s_cbranch_scc1 LQ_armx
    s_sub_u32 s47, s44, {WS_O}
    s_lshr_b32 s47, s47, 1
    s_add_u32 s47, s47, {WS_G + 4*GSLOT}
    s_mov_b32 s24, {WS_MOD + 2*640*4}
    s_waitcnt vmcnt(0)
    s_barrier
    buffer_load_dwordx4 v[24:27], v11, {WS}, s24 offen sc1
    buffer_load_dword v9, v8, {WS}, s43 offen
    s_mov_b32 s{S_S}, 0
    LQ_C3loop:
    s_cmp_gt_u32 s{S_S}, 63
    s_cbranch_scc1 LQ_C3nb
    s_barrier
    s_barrier
    s_sleep {cfg.slQ3}
    s_cmp_lt_u32 s{S_S}, 59
    s_cbranch_scc1 LQ_C3np
    s_cmp_eq_u32 s{S_S}, 63
    s_cbranch_scc1 LQ_C3nb
    s_sub_u32 s21, s{S_S}, 59
    s_mul_i32 s21, s21, 10
    s_add_u32 s21, s21, s{S_C}
    s_mul_i32 s21, s21, 49152
    s_add_u32 s21, s21, {WS_W1F - 20*49152}
    s_add_u32 s24, s21, 49152
    v_lshlrev_b32 v57, 7, v0
    LQ_pf:
    buffer_load_dword v56, v57, {WS}, s21 offen
    s_add_u32 s21, s21, 8192
    s_cmp_lt_u32 s21, s24
    s_cbranch_scc1 LQ_pf
    s_getpc_b64 s[48:49]
    LQ_pc:
    s_add_u32 s48, s48, LM_tail-LQ_pc
    s_addc_u32 s49, s49, 0
    s_sub_u32 s21, s{S_S}, 59
    s_lshl_b32 s21, s21, 13
    v_add_u32 v57, s21, v57
    v_min_u32 v57, LM_codeend-LM_tail, v57
    global_load_dword v56, v57, s[48:49]
    LQ_C3np:
    s_cmp_gt_u32 s{S_S}, 60
    s_cbranch_scc1 LQ_C3nb
    s_add_u32 s43, s43, 40960
    buffer_load_dword v9, v8, {WS}, s43 offen
    s_cmp_gt_u32 s{S_S}, 58
    s_cbranch_scc1 LQ_C3nb
    buffer_store_dwordx4 v[28:31], v5, {WS}, s47 offen sc1
    buffer_store_dwordx4 v[28:31], v5, {WS}, s47 offen offset:1024 sc1
    s_add_u32 s47, s47, {GSLOT}
    LQ_C3nb:
    """)
    if cfg.tokpath:
        a(f"""
        s_cmp_lt_u32 s{S_S}, 4
        s_cbranch_scc1 LQ_C3skip
        s_sub_u32 s26, s{S_S}, 4
        s_and_b32 s21, s26, 7
        s_mul_i32 s28, s21, {OSLOT}
        s_add_u32 s28, s28, s44
        s_mul_i32 s29, s26, {32*1280}
        s_add_u32 s30, s29, {WS_X1}
        buffer_load_dwordx2 v[12:13], v10, {SA}, s29 offen
        s_add_u32 s21, s26, 7
        s_and_b32 s21, s21, 7
        s_mul_i32 s31, s21, {OSLOT}
        s_add_u32 s31, s31, s44
        s_cmp_gt_u32 s{S_S}, 60
        s_cselect_b32 s31, {WS_SIZE}, s31
        """)
        for i in range(4): a(f"buffer_store_dwordx4 v[28:31], v5, {WS}, s31 offen offset:{1024*i} sc1")
        def comp3(o, i): mfma32(48, 20, 32+4*i, 48 if i else None, o)
        gather([(32+4*i, 5, 28, 1024*i) for i in range(4)], 14, comp3, depth=1)
        a("""
        s_nop 1
        v_lshlrev_b32 v52, 16, v12
        v_and_b32 v53, 0xffff0000, v12
        v_lshlrev_b32 v54, 16, v13
        v_and_b32 v55, 0xffff0000, v13
        """)
        for i in range(4): a(f"v_fma_f32 v{52+i}, v{48+i}, v{24+i}, v{52+i}")
        cvt(52, 52, 53); cvt(53, 54, 55); san(52); san(53)
        a(f"buffer_store_dwordx2 v[52:53], v15, {WS}, s30 offen sc1\nLQ_C3skip:")
    a(f"""
    s_waitcnt vmcnt(0)
    """)
    _t = cfg.trace; cfg.trace = cfg.trace or cfg.light
    stamp(0)
    stamp_commit([0], 60)
    a(f"""
    s_add_u32 s{S_S}, s{S_S}, 1
    s_cmp_lt_u32 s{S_S}, {68 if cfg.tokpath else 61}
    s_cbranch_scc1 LQ_C3loop
    """)
    stamp_dump([0], 60, 5)
    pstamp(11)
    cfg.trace = _t
    a("s_endpgm")

    a(f"""
    LM_VO:
    """)
    BP, AP, AC = 8, 56, 104
    a(f"""
    s_and_b32 s41, s{S_WAVE}, 3
    s_mul_i32 s42, s41, 36864
    s_lshl_b32 s21, s{S_X}, 2
    s_add_u32 s41, s41, s21
    s_cmp_lt_u32 s{S_WAVE}, 4
    s_cbranch_scc1 LV_Wpro
    """)
    srd(8, KA['Wo'], 32*192*1280)
    srd(12, KA['Wv'], 640*12288)
    a(f"""
    v_lshrrev_b32 v6, 2, v0
    v_mul_u32_u24 v12, 1280, v6
    v_and_b32 v7, 3, v0
    v_lshl_add_u32 v12, v7, 4, v12
    s_mul_i32 s21, s41, 245760
    s_lshl_b32 s24, s{S_C}, 6
    s_add_u32 s21, s21, s24
    v_add_u32 v12, s21, v12
    s_add_u32 s24, s42, 24576
    s_mov_b32 s25, 0
    LV_wo:
    s_mov_b32 m0, s24
    s_add_u32 s24, s24, 1024
    buffer_load_dwordx4 v12, {SA}, s25 offen{NT(cfg.ntO)} lds
    s_add_u32 s25, s25, {16*1280}
    s_cmp_lt_u32 s25, {192*1280}
    s_cbranch_scc1 LV_wo
    v_lshrrev_b32 v6, 3, v0
    s_mov_b32 s21, 12288
    v_mul_lo_u32 v6, v6, s21
    s_mul_i32 s21, s41, 384
    v_add_u32 v6, s21, v6
    v_lshrrev_b32 v7, 5, v0
    v_lshlrev_b32 v7, 1, v7
    v_xor_b32 v7, v7, v3
    """)
    for ro in range(4):
        a(f"v_xor_b32 v13, {4*(ro>>1) + (ro&1)}, v7\nv_lshl_add_u32 v{8+ro}, v13, 4, v6\nv_add_u32 v{8+ro}, {8*ro*12288}, v{8+ro}")
    a(f"""
    s_mov_b32 s28, 0
    s_mov_b32 s29, 0
    LV_ld:
    s_mul_i32 s24, s{S_C}, {1 if cfg.rotV else 0}
    s_add_u32 s24, s24, s28
    s_sub_u32 s21, s24, 20
    s_cmp_ge_u32 s24, 20
    s_cselect_b32 s24, s21, s24
    s_mul_i32 s24, s24, {32*12288}
    s_add_u32 s25, s29, s42
    """)
    for ro in range(4):
        for jl in range(3):
            a(f"s_add_u32 m0, s25, {ro*3072 + jl*1024 - jl*128}\ns_nop 0")
            a(f"buffer_load_dwordx4 v{8+ro}, {SB}, s24 offen offset:{jl*128}{NT(cfg.ntV)} lds")
    a(f"""
    s_add_u32 s29, s29, 12288
    s_cmp_eq_u32 s29, 36864
    s_cselect_b32 s29, 0, s29
    s_add_u32 s28, s28, 1
    s_cmp_eq_u32 s28, 1
    s_cbranch_scc1 LV_ld
    s_waitcnt vmcnt(12)
    s_cmp_lg_u32 s28, 2
    s_cbranch_scc1 LV_ld2
    s_barrier
    LV_ld2:
    s_barrier
    s_cmp_lt_u32 s28, 20
    s_cbranch_scc1 LV_ld
    s_waitcnt vmcnt(0)
    s_barrier
    s_cmp_lg_u32 s{S_WAVE}, 7
    s_cbranch_scc1 LV_nomode
    """)
    mode_wave()
    wait_h()
    a(f"""
    LV_nomode:
    s_barrier
    s_cmp_eq_u32 s{S_WAVE}, 6
    s_cbranch_scc1 LV_C2
    s_cmp_eq_u32 s{S_WAVE}, 7
    s_cbranch_scc1 LV_C3
    s_branch LV_C01
    LV_Wpro:
    v_bfe_u32 v6, v0, 2, 2
    v_lshl_add_u32 v94, v1, 3, v6
    v_lshlrev_b32 v94, 6, v94
    v_and_b32 v7, 3, v0
    v_lshl_add_u32 v94, v7, 4, v94
    s_add_u32 s21, s42, 24576
    v_add_u32 v94, s21, v94
    v_bfe_u32 v6, v0, 1, 1
    v_lshl_add_u32 v6, v4, 1, v6
    v_mul_u32_u24 v6, 3072, v6
    v_bfe_u32 v7, v0, 2, 1
    v_lshl_add_u32 v6, v7, 9, v6
    v_and_b32 v7, 1, v0
    v_lshl_add_u32 v6, v7, 7, v6
    v_bfe_u32 v7, v0, 1, 3
    v_xor_b32 v7, v7, v1
    v_lshl_add_u32 v6, v7, 4, v6
    v_add_u32 v6, s42, v6
    v_xor_b32 v7, 64, v6
    s_barrier
    """)
    for t in range(2):
        for e in range(6):
            for d in range(2):
                r = BP + 24*t + 4*e + 2*d
                a(f"ds_read_b64_tr_b16 v[{r}:{r+1}], v94 offset:{e*2048 + d*256 + t*8}")
    if cfg.ptrace: a("s_memrealtime s[96:97]")
    a(f"""
    s_mov_b32 s28, 0
    s_mov_b32 s29, 0
    s_waitcnt lgkmcnt(0)
    LV_it:
    s_barrier
    v_add_u32 v2, s29, v6
    v_add_u32 v3, s29, v7
    """)
    AC = 80
    def rdA(d, e): a(f"ds_read_b128 v[{AP+4*e}:{AP+4*e+3}], v{2 + (e&1)} offset:{(e>>1)*1024 + d*256}")
    for e in range(6): rdA(0, e)
    a(f"""
    s_mul_i32 s26, s{S_C}, {1 if cfg.rotV else 0}
    s_add_u32 s26, s26, s28
    s_sub_u32 s21, s26, 20
    s_cmp_ge_u32 s26, 20
    s_cselect_b32 s26, s21, s26
    s_lshl_b32 s26, s26, 2
    s_add_u32 s29, s29, 12288
    s_cmp_eq_u32 s29, 36864
    s_cselect_b32 s29, 0, s29
    """)
    for e in range(6):
        a(f"s_waitcnt lgkmcnt(5)")
        for t in range(2): mfma32(AC+8*t, AP+4*e, BP+24*t+4*e, AC+8*t if e else None)
        rdA(1, e)
    for e in range(6):
        a(f"s_waitcnt lgkmcnt({5-e})")
        for t in range(2): mfma32(AC+8*t+4, AP+4*e, BP+24*t+4*e, AC+8*t+4 if e else None)
    a("s_add_u32 s28, s28, 1")
    nop(7)
    for t in range(2):
        for i in range(4): cvt(AC+8*t+i, AC+8*t+2*i, AC+8*t+2*i+1)
    a("s_set_gpr_idx_on s26, gpr_idx(DST)\ns_nop 0")
    for t in range(2):
        for i in range(4): a(f"v_mov_b32 v{VW+80*t+i}, v{AC+8*t+i}")
    a(f"""
    s_set_gpr_idx_off
    s_cmp_lt_u32 s28, 20
    s_cbranch_scc1 LV_it
    s_barrier
    """)
    lanes()
    if cfg.ptrace:
        pstamp(3)
        a(f"v_mov_b32 v6, s96\ns_sub_u32 s92, s92, 4\nbuffer_store_dword v6, v7, {WS}, s92 offen\ns_waitcnt vmcnt(0)")
    w_setup()
    a("s_mov_b32 s28, 0")
    dma_tokens(28)
    a("s_mov_b32 s28, 1")
    dma_tokens(28)
    a(f"""
    s_lshl_b32 s21, s{S_WAVE}, 9
    s_add_u32 s21, s21, {LDS_Y}
    v_lshlrev_b32 v6, 3, v0
    v_add_u32 v{V_OUT}, s21, v6
    s_lshl_b32 s21, s{S_WAVE}, 11
    s_add_u32 s21, s21, {LDS_U}
    v_add_u32 v{V_OUT2}, s21, v5
    v_add_u32 v{V_MGL}, {LDS_M}, v{V_MG}
    s_lshl_b32 s21, s{S_WAVE}, 2
    s_add_u32 s21, s21, {LDS_MISC}
    v_mov_b32 v36, s21
    s_waitcnt vmcnt(10)
    s_barrier
    s_mov_b32 s{S_S}, -1
    """)
    pstamp(4)
    dst(1)
    if cfg.dtrace: a("s_waitcnt lgkmcnt(0)")
    a(f"""
    s_branch LV_Wtok
    LV_Wloop:
    """)
    if cfg.ptrace:
        a(f"s_cmp_gt_u32 s{S_S}, 3\ns_cbranch_scc1 LV_nps")
        a(f"s_memrealtime s[90:91]\ns_waitcnt lgkmcnt(0)\nv_mov_b32 v6, s90\nv_mov_b32 v7, 0\ns_add_u32 s92, s92, 4\nbuffer_store_dword v6, v7, {WS}, s92 offen\nLV_nps:")
    a(f"""
    s_add_u32 s27, s{S_S}, 1
    v_mov_b32 v7, s27
    """)
    m_addr()
    a(f"s_setprio {cfg.prW}")
    stamp(0)
    lds_wait(V_MISC, F_MST, 1, 16, S_S, sleep=cfg.slM)
    stamp(1)
    a(f"s_and_b32 s21, s{S_S}, 3\ns_lshl_b32 s21, s21, 11\nv_add_u32 v6, s21, v{V_OUT}")
    mem_phase('V', lambda: None, cfg.g2V, 2)
    halfsum()
    cvt(ACC, ACC, ACC+1); cvt(ACC+1, ACC+4, ACC+5)
    a(f"""
    ds_write_b64 v6, v[{ACC}:{ACC+1}]
    ds_write_b32 v36, v7 offset:{F_Y}
    """)
    stamp(3)
    a(f"""
    s_waitcnt vmcnt(0)
    s_cmp_eq_u32 s{S_S}, 63
    s_cbranch_scc1 LV_Wend
    """)
    stamp_commit([0, 1, 2], 20); stamp_commit([3], 1)
    a("LV_Wtok:")
    tok_base()
    def vpause():
        a(f"s_cmp_ge_u32 s{S_WAVE}, {cfg.pw}\ns_cbranch_scc1 LV_nopause")
        lds_wait(V_MISC, F_GST, 1, 16, 21, sleep=1)
        a("LV_nopause:")
    a("s_setprio 0")
    token_pass(False, cfg.n1, vpause)
    a(f"s_and_b32 s21, s21, 3\ns_lshl_b32 s21, s21, 13\nv_add_u32 v6, s21, v{V_OUT2}")
    for t in range(2):
        d = ACC + 8*t
        cvt(d, d, d+1); cvt(d+1, d+2, d+3); cvt(d+2, d+4, d+5); cvt(d+3, d+6, d+7)
        a(f"ds_write_b128 v6, v[{d}:{d+3}] offset:{t*1024}")
    a(f"""
    s_waitcnt lgkmcnt(0)
    """)
    after_wait()
    a(f"""
    s_add_u32 s{S_S}, s{S_S}, 1
    s_branch LV_Wloop
    LV_Wend:
    s_waitcnt vmcnt(0) lgkmcnt(0)
    """)
    pstamp(10)
    dst(2)
    if cfg.trace:
        a(f"s_cmp_lg_u32 s{S_WAVE}, 0\ns_cbranch_scc1 LM_tail")
        stamp_dump([0, 1, 2], 20, 16); stamp_dump([3], 1, 16)
    a("s_branch LM_tail")

    SELM, SELA, SLO, SHI = 16, 20, 24, 28
    LD = 32
    D_ = 48
    PT, PMA, PMB = 60, 64, 66
    UF, YF = 68, 84
    ONES = 88
    OA = 92
    KEEP, SEND = 108, 112
    HO = 116
    LS = 128
    LG = 132
    MX = 14
    V_L3, V_UR, V_YR, V_GS, V_MS, V_HO, V_FL = 8, 9, 10, 120, 121, 122, 123
    a("LV_C01:\ns_setprio 3")
    build_sel(SELM, SELA, SLO, SHI)
    build_selm(SELM)
    a(f"""
    s_sub_u32 s41, s{S_WAVE}, 4
    v_cmp_eq_u32 vcc, 3, v1
    v_mov_b32 v6, 0x40000000
    s_nop 0
    v_cndmask_b32 v{V_L3}, v5, v6, vcc
    s_lshl_b32 s43, s{S_X}, 13
    s_lshl_b32 s21, s41, 12
    s_add_u32 s43, s43, s21
    s_add_u32 s43, s43, {WS_L1R}
    v_cmp_eq_u32 s[44:45], 1, v4
    v_cmp_eq_u32 s[64:65], 0, v4
    s_mov_b32 s66, {CSC}
    s_mov_b32 s67, {CSC}
    v_mov_b32 v{ONES}, 0x3f803f80
    v_mov_b32 v{ONES+1}, 0x3f803f80
    v_mov_b32 v{ONES+2}, 0x3f803f80
    v_mov_b32 v{ONES+3}, 0x3f803f80
    v_mov_b32 v{PMA+1}, 0
    v_mov_b32 v{PMB}, 0
    v_lshl_add_u32 v6, v1, 3, v3
    v_lshlrev_b32 v{V_GS}, 4, v6
    v_lshl_add_u32 v{V_GS}, v4, 3, v{V_GS}
    v_lshrrev_b32 v6, 1, v1
    v_lshlrev_b32 v{V_MS}, 4, v6
    v_bfe_u32 v6, v0, 1, 2
    v_lshl_add_u32 v{V_MS}, v6, 2, v{V_MS}
    v_lshl_add_u32 v{V_MS}, v4, 1, v{V_MS}
    v_and_b32 v6, 1, v0
    v_add_u32 v{V_MS}, v{V_MS}, v6
    v_lshlrev_b32 v{V_MS}, 4, v{V_MS}
    v_and_b32 v6, 1, v1
    v_lshl_add_u32 v{V_MS}, v6, 3, v{V_MS}
    v_add_u32 v{V_HO}, {LDS_HO}, v5
    v_mov_b32 v{V_FL}, {LDS_MISC}
    s_lshr_b32 s21, s{S_C}, 1
    s_lshl_b32 s46, s21, 14
    s_and_b32 s21, s{S_C}, 1
    s_lshl_b32 s21, s21, 12
    s_add_u32 s46, s46, s21
    s_add_u32 s46, s46, {WS_G}
    s_lshl_b32 s47, s{S_X}, 9
    s_mul_i32 s48, s{S_X}, 10240
    s_lshl_b32 s21, s{S_C}, 9
    s_add_u32 s48, s48, s21
    s_add_u32 s48, s48, {WS_MR}
    v_mov_b32 v124, -1
    v_mov_b32 v125, -1
    s_mul_i32 s21, s{S_X}, {32*NLC}
    s_add_u32 s21, s21, {WS_NL}
    s_mul_i32 s24, s{S_C}, {NLC}
    s_add_u32 s24, s24, s21
    v_lshlrev_b32 v6, 7, v0
    v_add_u32 v148, s24, v6
    s_mov_b64 s[68:69], 0xfff
    s_lshl_b32 s24, s{S_C}, 7
    s_add_u32 s24, s24, s21
    s_add_u32 s24, s24, {20*NLC}
    v_mul_u32_u24 v149, {NLC}, v0
    v_add_u32 v149, s24, v149
    v_mov_b32 v7, 0x40000000
    v_cmp_gt_u32 vcc, 12, v0
    s_mul_i32 s24, s{S_X}, 20
    s_add_u32 s24, s24, s{S_C}
    v_cndmask_b32 v149, v7, v149, vcc
    s_lshr_b32 s51, s24, 3
    s_lshl_b32 s51, s51, 14
    s_and_b32 s24, s24, 7
    s_lshl_b32 s24, s24, 10
    s_add_u32 s51, s51, s24
    s_add_u32 s51, s51, {WS_NG}
    v_mul_u32_u24 v6, 20, v3
    v_add_u32 v6, s{S_C}, v6
    v_lshrrev_b32 v150, 3, v6
    v_lshlrev_b32 v150, 14, v150
    v_and_b32 v6, 7, v6
    v_lshl_add_u32 v150, v6, 10, v150
    v_lshl_add_u32 v150, v4, 13, v150
    v_sub_u32 v6, s{S_X}, v3
    v_and_b32 v6, 7, v6
    v_lshl_add_u32 v150, v6, 7, v150
    v_add_u32 v150, {WS_NG}, v150
    v_cmp_gt_u32 vcc, 16, v0
    s_nop 1
    v_cndmask_b32 v150, v7, v150, vcc
    s_add_u32 s25, s51, 8192
    s_mov_b32 s28, -1
    s_mov_b32 s29, -1
    s_mov_b32 s26, 4
    LV_cal:
    s_memtime s[52:53]
    s_waitcnt lgkmcnt(0)
    s_load_dword s21, s[4:5], s51 glc
    s_waitcnt lgkmcnt(0)
    s_memtime s[54:55]
    s_waitcnt lgkmcnt(0)
    s_load_dword s21, s[4:5], s25 glc
    s_waitcnt lgkmcnt(0)
    s_memtime s[56:57]
    s_waitcnt lgkmcnt(0)
    s_sub_u32 s56, s56, s54
    s_sub_u32 s54, s54, s52
    s_min_u32 s28, s28, s54
    s_min_u32 s29, s29, s56
    s_cmp_lg_u32 s26, 4
    s_cbranch_scc1 LV_cal2
    s_barrier
    LV_cal2:
    s_sub_u32 s26, s26, 1
    s_cmp_lg_u32 s26, 0
    s_cbranch_scc1 LV_cal
    s_cmp_lt_u32 s29, s28
    s_cselect_b32 s50, 8192, 0
    LV_nocal:
    """)
    read_mode()
    a(f"""
    s_add_u32 s51, s51, s50
    s_add_u32 s60, s4, s51
    s_addc_u32 s61, s5, 0
    s_mov_b64 s[52:53], 0
    s_mov_b64 s[54:55], 0
    s_mov_b64 s[56:57], 0
    s_mov_b64 s[58:59], 0
    s_mov_b32 s{S_S}, 0
    s_cmp_lg_u32 s41, 0
    s_cbranch_scc1 LV_Cloop1
    """)
    _sv = cfg.trace; cfg.trace = cfg.trace or T2
    for cw in range(2):
        a(f"""
        LV_Cloop{cw}:
        s_and_b32 s21, s{S_S}, 3
        s_mul_i32 s24, s21, {L1SLOT}
        s_add_u32 s24, s24, s43
        s_lshl_b32 s25, s21, 13
        s_add_u32 s25, s25, {LDS_U + cw*4096}
        v_add_u32 v{V_UR}, s25, v5
        s_lshl_b32 s25, s21, 11
        s_add_u32 s25, s25, {LDS_Y + cw*1024}
        v_lshlrev_b32 v6, 3, v0
        v_add_u32 v{V_YR}, s25, v6
        s_add_u32 s27, s{S_S}, 1
        v_mov_b32 v126, s27
        s_mul_i32 s32, s{S_S}, {GSLOT}
        s_add_u32 s32, s32, s46
        """)
        if cw == 0:
            a("s_add_u32 s32, s32, s47\ns_add_u32 s33, s32, 8192")
        else:
            a(f"""
            s_lshr_b32 s21, s32, 8
            s_and_b32 s21, s21, 8192
            s_xor_b32 s21, s21, s50
            s_add_u32 s34, s32, s21
            s_and_b32 s21, s27, 3
            s_mul_i32 s35, s21, {MSLOT}
            s_add_u32 s35, s35, s48
            s_xor_b32 s21, s21, 2
            s_mul_i32 s36, s21, {MSLOT}
            s_add_u32 s36, s36, s48
            """)
        def rdu():
            for j in range(4): a(f"ds_read_b128 v[{UF+4*j}:{UF+4*j+3}], v{V_UR} offset:{j*1024}")
        def rdy():
            for j in range(2): a(f"ds_read_b64 v[{YF+2*j}:{YF+2*j+1}], v{V_YR} offset:{j*512}")
            return 0
        a("s_waitcnt lgkmcnt(0)\ns_barrier")
        rdu()
        a("s_waitcnt vmcnt(0)")
        if cfg.slS: a(f"s_sleep {cfg.slS}")
        if cfg.yfirst:
            lds_wait(V_FL, F_Y, 4, HO, 27, extra=rdy)
            stamp(3)
        if cfg.nL1: nscout(11, 148, 27, 68)
        else: scout(11, 5, 24)
        nop(cfg.padL1)
        stamp(4)
        def shadow1():
            if cw == 0: a(f"ds_write_b32 v{V_FL}, v126 offset:{F_L1D}")
            if cfg.yfirst: return
            a(f"ds_read_b128 v[{HO}:{HO+3}], v{V_FL} offset:{F_Y}")
            rdy()
            a(f"""
            s_waitcnt lgkmcnt(0)
            v_min3_u32 v{HO}, v{HO}, v{HO+1}, v{HO+2}
            v_min_u32 v{HO}, v{HO}, v{HO+3}
            v_cmp_gt_u32 vcc, s27, v{HO}
            s_mov_b32 s39, vcc_lo
            """)
            stamp(3)
        def needy():
            if cfg.yfirst: return
            a(f"s_cmp_lg_u32 s39, 0\ns_cbranch_scc1 LV_ys{cw}\nLV_yb{cw}:")
            sv = a.lines; a.lines = []
            a(f"LV_ys{cw}:")
            lds_wait(V_FL, F_Y, 4, HO, 27, extra=rdy)
            a(f"s_branch LV_yb{cw}")
            o = Asm(); o.lines = a.lines; ool.append(o)
            a.lines = sv
        def comp1(o, i):
            if i == 0: mfma32(D_+8, SELM, LD+12, None, o)
            if i == 1: mfma32(D_, SELA, LD, None, o)
            if i == 2: mfma32(D_+4, SELA, LD+4, None, o)
            if i == 3: mfma32(D_, SLO, LD+8, D_, o); mfma32(D_+4, SHI, LD+8, D_+4, o)
        l1loads = [(LD+12, V_L3, 24, 3072), (LD, 5, 24, 0), (LD+4, 5, 24, 1024), (LD+8, 5, 24, 2048)]
        if cfg.g2L: gather2(l1loads, 12, comp1, shadow=shadow1, pad=cfg.g2L-1)
        else: gather(l1loads, 12, comp1, shadow=shadow1, depth=cfg.depthL1)
        stamp(0)
        def notice(pos):
            if cw == cfg.whoG and cfg.nG and cfg.posG == pos:
                a(f"buffer_store_dword v126, v150, {WS}, 0 offen sc1")
        def spoll(pos):
            if cw == 1 and cfg.nG and (cfg.early >> pos) & 1:
                for i in range(1, 8): a(f"s_load_dword s{52+i}, s[60:61], {128*i} glc")
        if cw == 0 and cfg.oL1: a(f"ds_write_b32 v{V_FL}, v126 offset:{F_TD}")
        else: a("s_nop 0")
        notice(0)
        nop(4)
        softmax_max(D_, MX, MX+1, 66)
        notice(1)
        ex = lambda i: a(f"v_exp_f32 v{D_+i}, v{D_+i}")
        pkarg(D_+8, MX, 66)
        pkarg(D_, MX, 66)
        ex(8); ex(9)
        pkarg(D_+2, MX, 66)
        cvt(PMA, D_+8, D_+9); cvt(PMB+1, D_+8, D_+9)
        pkarg(D_+4, MX, 66); pkarg(D_+6, MX, 66)
        mfma16(LS, ONES, PMA, None)
        ex(0); ex(1)
        needy()
        mfma16(OA, YF, PMA, None)
        notice(2)
        ex(2); ex(3)
        mfma16(OA+4, YF, PMB, None)
        ex(4); ex(5)
        mfma16(OA+8, YF+2, PMA, None)
        ex(6); ex(7)
        mfma16(OA+12, YF+2, PMB, None)
        notice(3)
        spoll(0)
        for i in range(4): cvt(PT+i, D_+2*i, D_+2*i+1)
        a("s_nop 1")
        mfma32(LS, ONES, PT, LS)
        for j in range(4): mfma32(OA+4*j, UF+4*j, PT, OA+4*j)
        notice(4)
        spoll(1)
        a(f"s_nop 3\nv_rcp_f32 v{LS}, v{LS}\ns_mov_b64 exec, s[64:65]")
        pm = lambda d, x: a(f"v_pk_mul_f32 v[{d}:{d+1}], v[{x}:{x+1}], v[{LS}:{LS+1}] op_sel_hi:[1,0]")
        pm(KEEP, OA); pm(KEEP+2, OA+2); pm(SEND, OA+4); pm(SEND+2, OA+6)
        a("s_mov_b64 exec, s[44:45]")
        pm(SEND, OA+8); pm(SEND+2, OA+10); pm(KEEP, OA+12); pm(KEEP+2, OA+14)
        a("s_mov_b64 exec, -1")
        for i in range(4): a(f"v_add_f32_dpp v{KEEP+i}, v{SEND+i}, v{KEEP+i} row_ror:8 row_mask:0xf bank_mask:0xf")
        notice(5)
        if cw == 0:
            def rdho():
                a(f"ds_read_b128 v[{HO}:{HO+3}], v{V_HO}")
                return 0
            lds_wait(V_FL, F_HO, 1, 15, 27, extra=rdho)
            for i in range(0, 4, 2): a(f"v_pk_add_f32 v[{KEEP+i}:{KEEP+i+1}], v[{KEEP+i}:{KEEP+i+1}], v[{HO+i}:{HO+i+1}]")
            cvt(KEEP, KEEP, KEEP+1); cvt(KEEP+1, KEEP+2, KEEP+3); san(KEEP); san(KEEP+1)
            a(f"""
            buffer_store_dwordx2 v[{KEEP}:{KEEP+1}], v{V_GS}, {WS}, s32 offen sc1
            buffer_store_dwordx2 v[{KEEP}:{KEEP+1}], v{V_GS}, {WS}, s33 offen sc1
            ds_write_b32 v{V_FL}, v126 offset:{F_GST}
            """)
            stamp(1)
        else:
            a(f"""
            ds_write_b128 v{V_HO}, v[{KEEP}:{KEEP+3}]
            ds_write_b32 v{V_FL}, v126 offset:{F_HO}
            """)
            if cfg.nG:
                def nchk(br):
                    a(f"""
                    s_min_u32 s25, s54, s55
                    s_min_u32 s26, s56, s57
                    s_min_u32 s28, s58, s59
                    s_min_u32 s21, s53, s25
                    s_min_u32 s26, s26, s28
                    s_min_u32 s21, s21, s26
                    s_cmp_ge_u32 s21, s27
                    {br}
                    """)
                nop(cfg.dP*4)
                a(f"s_mov_b32 s{S_CNT}, s{S_LIM}\nLV_np:")
                for i in range(1, 8): a(f"s_load_dword s{52+i}, s[60:61], {128*i} glc")
                a(f"s_sub_u32 s{S_CNT}, s{S_CNT}, 1\ns_cbranch_scc1 LV_npd")
                for _ in range(cfg.chkN): nchk("s_cbranch_scc1 LV_npd")
                a(f"s_waitcnt lgkmcnt({cfg.lgN})")
                nchk("s_cbranch_scc0 LV_np")
                a("LV_npd:")
            else:
                lds_wait(V_FL, F_GST, 1, 15, 27)
            nop(cfg.dG*4)
            stamp(2)
            def comp2(o, i): mfma32(D_, SELA, LG+4*i, D_ if i else None, o)
            def shadow2():
                a(f"ds_write_b32 v{V_FL}, v126 offset:{F_GIS}")
                if cfg.nM:
                    nop(cfg.dM*4)
                    lstore(f"buffer_store_dword v126, v149, {WS}, 0 offen")
            gather([(LG+4*i, 5, 34, 1024*i) for i in range(4)], 12, comp2, depth=cfg.depthG, shadow=shadow2, young=cfg.nM)
            nop(6)
            cvt(D_, D_, D_+1); cvt(D_+1, D_+2, D_+3); san(D_); san(D_+1)
            lstore(f"buffer_store_dwordx2 v[{D_}:{D_+1}], v{V_MS}, {WS}, s35 offen")
            a(f"ds_write_b32 v{V_FL}, v126 offset:{F_MST}")
            stamp(1)
            lstore(f"buffer_store_dwordx2 v[124:125], v{V_MS}, {WS}, s36 offen")
            if cfg.dbg:
                a(f"""
                s_cmp_lg_u32 s{S_X}, 0
                s_cbranch_scc1 LV_Cnd
                s_mul_i32 s21, s27, 10240
                s_lshl_b32 s25, s{S_C}, 9
                s_add_u32 s21, s21, s25
                s_add_u32 s21, s21, {WS_DBG}
                buffer_store_dwordx2 v[{D_}:{D_+1}], v{V_MS}, {WS}, s21 offen
                LV_Cnd:
                """)
        stamp(5)
        if cfg.trace: a("s_memtime s[82:83]")
        after_wait()
        stamp_commit([0, 1, 2, 3, 4, 5, 6], 160)
        a(f"""
        s_add_u32 s{S_S}, s{S_S}, 1
        s_cmp_lt_u32 s{S_S}, 63
        s_cbranch_scc1 LV_Cloop{cw}
        s_waitcnt vmcnt(0) lgkmcnt(0)
        """)
        stamp_dump([0, 1, 2, 3, 4, 5, 6], 160, 8*cw)
        a("s_endpgm")

    cfg.trace = _sv
    PTK, PMM, UU, YY, OO = 16, 48, 80, 112, 120
    a("LV_C2:")
    a(f"""
    s_lshl_b32 s21, s{S_X}, 10
    s_add_u32 s21, s21, {FL2}
    v_lshlrev_b32 v8, 7, v3
    v_add_u32 v8, s21, v8
    s_mul_i32 s43, s{S_X}, {8*1536}
    s_add_u32 s43, s43, {WS_PR}
    v_lshlrev_b32 v9, 2, v0
    v_lshlrev_b32 v10, 12, v4
    v_lshl_add_u32 v6, v3, 2, v1
    v_lshl_add_u32 v10, v6, 4, v10
    s_lshl_b32 s44, s{S_C}, 14
    s_lshl_b32 s21, s{S_X}, 9
    s_add_u32 s44, s44, s21
    s_add_u32 s44, s44, {WS_O}
    v_mov_b32 v7, {LDS_MISC}
    """)
    for j in range(8): a(f"v_mov_b32 v{PMM+4*j+1}, 0\nv_mov_b32 v{PMM+4*j+2}, 0")
    a(f"""
    s_mov_b32 s28, {WS_SIZE}
    s_mov_b32 s29, {WS_SIZE}
    s_barrier
    s_mov_b32 s{S_S}, 0
    LV_C2loop:
    s_add_u32 s27, s{S_S}, 1
    v_mov_b32 v15, s27
    s_cmp_lt_u32 s{S_S}, {2 if cfg.tokpath else 100}
    s_cbranch_scc0 LV_C2a
    s_cmp_gt_u32 s{S_S}, 63
    s_cbranch_scc1 LV_C2c
    s_barrier
    s_branch LV_C2c
    LV_C2a:
    s_sub_u32 s26, s{S_S}, 2
    s_add_u32 s30, s26, 1
    s_and_b32 s21, s26, 3
    s_mul_i32 s24, s21, {PSLOT}
    s_add_u32 s24, s24, s43
    s_lshl_b32 s25, s21, 13
    s_add_u32 s25, s25, {LDS_U}
    v_add_u32 v11, s25, v5
    s_lshl_b32 s25, s21, 11
    s_add_u32 s25, s25, {LDS_Y}
    v_lshlrev_b32 v6, 3, v0
    v_add_u32 v12, s25, v6
    s_min_u32 s31, s27, 64
    s_min_u32 s32, s27, 63
    """)
    def ostore():
        a(f"""
        buffer_store_dwordx4 v[{OS}:{OS+3}], v10, {WS}, s28 offen sc1
        buffer_store_dwordx4 v[{OS+4}:{OS+7}], v10, {WS}, s29 offen sc1
        s_mov_b32 s28, {WS_SIZE}
        s_mov_b32 s29, {WS_SIZE}
        """)
    OS = 140
    lds_wait(7, F_Y, 4, 136, 30, sleep=1)
    for j in range(8): a(f"ds_read_b128 v[{UU+4*j}:{UU+4*j+3}], v11 offset:{j*1024}")
    for j in range(4): a(f"ds_read_b64 v[{YY+2*j}:{YY+2*j+1}], v12 offset:{j*512}")
    a("s_waitcnt lgkmcnt(0)")
    a(f"s_cmp_gt_u32 s{S_S}, 63\ns_cbranch_scc1 LV_C2nb\ns_barrier\nLV_C2nb:")
    wait_flags(13, 8, 30)
    if cfg.pL1D: lds_wait(7, F_L1D, 1, 13, 32, sleep=1)
    for j in range(8):
        o = (j % 2)*1536
        a(f"buffer_load_dwordx4 v[{PTK+4*j}:{PTK+4*j+3}], v5, {WS}, s24 offen offset:{o} sc1")
        a(f"buffer_load_dword v{PMM+4*j}, v9, {WS}, s24 offen offset:{o+1024} sc1")
        if j % 2 == 1 and j < 7: a("s_add_u32 s24, s24, 3072")
    lds_wait(7, F_TD if cfg.oL1 else F_L1D, 1, 13, 32, sleep=1)
    nop(cfg.padO)
    ostore()
    a(f"s_waitcnt vmcnt(2)")
    lds_wait(7, F_GST, 1, 13, 32, sleep=1)
    for h in range(4):
        for tau in range(2): a(f"v_mov_b32 v{PMM+8*h+4*tau+3}, v{PMM+8*h+4*tau}")
        for tau in range(2):
            for t in range(2):
                d = OO + 8*tau + 4*t
                mfma32(d, UU+8*h+4*t, PTK+8*h+4*tau, d if h else None)
        for tau in range(2):
            for t in range(2):
                d = OO + 8*tau + 4*t
                mfma16(d, YY+2*h, PMM+8*h+4*tau+2*t, d)
    a(f"""
    s_and_b32 s21, s26, 7
    s_mul_i32 s28, s21, {OSLOT}
    s_add_u32 s28, s28, s44
    s_add_u32 s29, s28, 8192
    s_nop 3
    """)
    for i in range(8): cvt(OS+i, OO+2*i, OO+2*i+1)
    for i in range(8): san(OS+i)
    a(f"s_cmp_lt_u32 s{S_S}, 63\ns_cbranch_scc1 LV_C2c")
    ostore()
    a(f"""
    LV_C2c:
    s_add_u32 s{S_S}, s{S_S}, 1
    s_cmp_lt_u32 s{S_S}, 66
    s_cbranch_scc1 LV_C2loop
    s_waitcnt vmcnt(0) lgkmcnt(0)
    s_endpgm
    """)

    a("LV_C3:")
    a(f"""
    v_mov_b32 v7, {LDS_MISC}
    s_and_b32 s21, s{S_C}, 1
    s_mul_i32 s21, s21, 20480
    v_add_u32 v9, s21, v5
    s_sub_u32 s21, 20480, s21
    v_add_u32 v11, s21, v5
    s_barrier
    s_mov_b32 s{S_S}, 0
    LV_C3loop:
    s_add_u32 s27, s{S_S}, 1
    v_mov_b32 v15, s27
    """)
    a(f"""
    s_add_u32 s26, s{S_S}, 2
    """)
    a(f"""
    s_mul_i32 s28, s26, 40960
    s_add_u32 s28, s28, {WS_H}
    s_and_b32 s29, s26, 1
    s_mul_i32 s29, s29, 40960
    s_add_u32 s29, s29, {LDS_TOK}
    v_add_u32 v8, s29, v9
    v_add_u32 v10, s29, v11
    """)
    def tld(i):
        if cfg.nold: return
        a(f"buffer_load_dwordx4 v[{32+4*i}:{35+4*i}], v{9 if i < 20 else 11}, {WS}, s28 offen offset:{(i%4)*1024}")
        if i % 4 == 3: a("s_add_u32 s28, s28, 4096" if i != 19 else "s_sub_u32 s28, s28, 16384")
        nop(cfg.paceA if i < cfg.nA else cfg.pace if i < 40 - cfg.nC else 0)
    def twr(i):
        a(f"ds_write_b128 v{8 if i < 20 else 10}, v[{32+4*i}:{35+4*i}] offset:{(i%20)*1024}")
    a("s_barrier")
    for i in range(cfg.nA): tld(i)
    if cfg.wA:
        for i in range(cfg.wA):
            a(f"s_waitcnt vmcnt({cfg.nA-1-i})")
            twr(i)
    if cfg.trace: a("s_waitcnt vmcnt(0)")
    stamp(2)
    nAB = 40 - cfg.nC
    if cfg.nA < nAB:
        lds_wait(7, F_L1D, 1, 16, 27, sleep=1)
        for i in range(cfg.nA, nAB): tld(i)
    if cfg.trace: a("s_waitcnt vmcnt(0)")
    stamp(3)
    lds_wait(7, F_GST, 1, 16, 27, sleep=1)
    if cfg.cGIS:
        a("s_waitcnt vmcnt(0)")
        for i in range(cfg.wA, cfg.cGIS):
            if not cfg.nowr: twr(i)
        lds_wait(7, F_GIS, 1, 16, 27)
    for i in range(nAB, 40): tld(i)
    a(f"s_waitcnt vmcnt({cfg.nC})")
    for i in range(max(cfg.wA, cfg.cGIS), 40):
        if i == nAB: a("s_waitcnt vmcnt(0)")
        if not cfg.nowr: twr(i)
    a("LV_C3b:")
    stamp(0)
    a(f"""
    s_waitcnt lgkmcnt(0)
    """)
    stamp(1)
    stamp_commit([0, 1, 2, 3], 20)
    after_wait()
    a(f"""
    s_add_u32 s{S_S}, s{S_S}, 1
    s_cmp_lt_u32 s{S_S}, 62
    s_cbranch_scc1 LV_C3loop
    s_waitcnt vmcnt(0) lgkmcnt(0)
    """)
    stamp_dump([0, 1, 2, 3], 20, 20)
    a(f"""
    LM_end:
    s_endpgm
    """)
    a("LM_tail:")
    if not cfg.tail: a("s_endpgm")
    F_TS = 96
    nsync = [0]
    def wsync():
        a("s_waitcnt lgkmcnt(0)\ns_barrier")
    def tst(j, cyc=False):
        if cfg.ptrace: a(f"{'s_memtime' if cyc else 's_memrealtime'} s[{62+2*j}:{63+2*j}]\ns_waitcnt lgkmcnt(0)")
    X = 16; AC1 = 96; XF = 144; BR = 176; T = 144
    EA = 8
    lanes()
    read_mode()
    srd(8, KA['b1'], 3072)
    a(f"""
    s_setprio 0
    s_lshr_b32 s40, s{S_C}, 3
    s_sub_u32 s40, 3, s40
    s_lshl_b32 s21, s{S_X}, 2
    s_add_u32 s40, s40, s21
    s_and_b32 s41, s{S_C}, 7
    s_lshl_b32 s21, s40, 2
    s_add_u32 s21, s21, s{S_WAVE}
    s_mul_i32 s24, s21, 20480
    s_add_u32 s24, s24, {WS_X1}
    s_add_u32 s25, s24, 4096
    s_add_u32 s26, s25, 4096
    s_add_u32 s27, s26, 4096
    s_add_u32 s28, s27, 4096
    s_lshl_b32 s42, s41, 2
    s_add_u32 s42, s42, s{S_WAVE}
    s_mul_i32 s42, s42, 3
    s_mul_i32 s44, s42, 20480
    s_add_u32 s44, s44, {WS_W1F}
    s_add_u32 s45, s44, 20480
    s_add_u32 s46, s45, 20480
    s_mov_b32 s29, {WS_MOD + 3*2560}
    s_add_u32 s30, s29, 4096
    s_lshl_b32 s47, s{S_C}, 2
    s_add_u32 s47, s47, s{S_WAVE}
    s_mul_i32 s47, s47, 15360
    s_add_u32 s47, s47, {WS_W2F}
    s_add_u32 s43, s47, 7168
    """)
    def bslot(k): k %= 12; return (BR + 12*k) if k < 6 else (X + 12*(k-6))
    def ldB1(k, n):
        r = bslot(k) + 4*n
        a(f"buffer_load_dwordx4 v[{r}:{r+3}], v5, {WS}, s{44+n} offen offset:{(k%4)*1024}")
        if k % 4 == 3: a(f"s_add_u32 s{44+n}, s{44+n}, 4096")
    for i in range(5):
        a(f"buffer_load_dwordx4 v[{AC1+4*i}:{AC1+4*i+3}], v5, {WS}, s{29 if i < 4 else 30} offen offset:{(i%4)*1024} sc1")
    a(f"v_lshlrev_b32 v12, 3, v1\ns_lshl_b32 s31, s42, 5")
    for n in range(3): a(f"buffer_load_dwordx2 v[{250+2*n}:{251+2*n}], v12, {SA}, s31 offen offset:{n*32}")
    a(f"s_waitcnt vmcnt(0)\nv_add_u32 v13, {LDS_PAR}, v5\nv_cmp_le_u32 vcc, 32, v0\nv_mov_b32 v6, 1.0\ns_nop 0\nv_cndmask_b32 v6, 0, v6, vcc")
    for j in range(4): a(f"v_add_f32 v{AC1+8+j}, v6, v{AC1+8+j}")
    for j in range(8): a(f"v_add_f32 v{AC1+12+j}, 1.0, v{AC1+12+j}")
    for i in range(5): a(f"ds_write_b128 v13, v[{AC1+4*i}:{AC1+4*i+3}] offset:{i*1024}")
    for j in range(4): a(f"v_mov_b32 v{T+8+j}, 0x3f803f80")
    for k in range(6):
        for n in range(3):
            ldB1(k, n)
            a(f"s_sleep {cfg.slT}")
    a(f"""
    v_mul_u32_u24 v6, 13, v0
    v_lshrrev_b32 v6, 8, v6
    v_mul_u32_u24 v7, 20, v6
    v_sub_u32 v7, v0, v7
    s_mul_i32 s21, s{S_WAVE}, {20*272}
    v_mul_u32_u24 v{EA}, 272, v7
    v_lshl_add_u32 v{EA}, v6, 4, v{EA}
    v_add_u32 v{EA}, s21, v{EA}
    s_mul_i32 s21, s41, 20
    v_add_u32 v7, s21, v7
    v_lshlrev_b32 v{EA+3}, 3, v7
    v_mul_u32_u24 v{EA+1}, 1280, v6
    v_add_u32 v{EA+1}, v{EA+1}, v{EA+3}
    v_lshrrev_b32 v12, 1, v7
    v_lshlrev_b32 v{EA+2}, 8, v12
    v_lshl_add_u32 v{EA+2}, v6, 4, v{EA+2}
    v_and_b32 v12, 1, v7
    v_lshl_add_u32 v{EA+2}, v12, 3, v{EA+2}
    v_lshlrev_b32 v15, 7, v0
    s_waitcnt lgkmcnt(0)
    s_barrier
    """)
    tst(0); tst(10, True)
    dst(3)
    def shadowx():
        a(f"buffer_load_dword v248, v15, {WS}, s47 offen\nbuffer_load_dword v249, v15, {WS}, s43 offen")
    def compx(o, i):
        mfma32(T, T+8, X+4*i, T if i else None, o)
        mfma32(T+4, X+4*i, X+4*i, T+4 if i else None, o)
    gather([(X+4*k, 5, 24 + k//4, (k%4)*1024) for k in range(20)], 12, compx, depth=1, shadow=shadowx, young=2, rsleep=2)
    tst(1)
    P = AC1
    def rdP(k):
        p = P + 16*(k % 3)
        a(f"""
        ds_read_b128 v[{p}:{p+3}], v14 offset:{k*128}
        ds_read_b128 v[{p+4}:{p+7}], v14 offset:{k*128+16}
        ds_read_b128 v[{p+8}:{p+11}], v14 offset:{2560+k*128}
        ds_read_b128 v[{p+12}:{p+15}], v14 offset:{2560+k*128+16}
        """)
    a(f"""
    v_lshlrev_b32 v14, 5, v1
    v_add_u32 v14, {LDS_PAR}, v14
    v_lshlrev_b32 v6, 2, v1
    v_sub_u32 v6, v2, v6
    v_mov_b32 v{T+12}, 0
    """)
    rdP(0); rdP(1)
    for j in range(4): a(f"v_cmp_eq_u32 vcc, {j}, v6\ns_nop 1\nv_cndmask_b32 v{T+12}, v{T+12}, v{T+4+j}, vcc")
    xlane("v_add_f32", T+12, T+13)
    a(f"""
    v_mul_f32 v{T}, {hex(f2u(1/640))}, v{T}
    v_mul_f32 v{T+12}, {hex(f2u(1/640))}, v{T+12}
    v_fma_f32 v{T+12}, -v{T}, v{T}, v{T+12}
    v_max_f32 v{T+12}, 0, v{T+12}
    v_add_f32 v{T+12}, {hex(f2u(1e-5))}, v{T+12}
    v_rsq_f32 v{T+2}, v{T+12}
    s_mul_i32 s31, s{S_WAVE}, 20480
    v_add_u32 v13, s31, v5
    v_mul_f32 v{T}, v{T}, v{T+2}
    """)
    OB = T + 16
    for k in range(20):
        p = P + 16*(k % 3); ob = OB + 4*(k % 2)
        for j in range(4):
            a(f"v_lshlrev_b32 v{T+8+2*j}, 16, v{X+4*k+j}\nv_and_b32 v{T+9+2*j}, 0xffff0000, v{X+4*k+j}")
        if k < 18: ldB1(6 + k//3, k % 3)
        for j in range(4):
            a(f"v_pk_fma_f32 v[{T+8+2*j}:{T+9+2*j}], v[{T+8+2*j}:{T+9+2*j}], v[{T+2}:{T+3}], v[{T}:{T+1}] op_sel_hi:[1,0,0] neg_lo:[0,0,1] neg_hi:[0,0,1]")
        a(f"s_waitcnt lgkmcnt({(4 if k < 19 else 0) + min(k, 1)})")
        for j in range(4):
            a(f"v_pk_fma_f32 v[{T+8+2*j}:{T+9+2*j}], v[{T+8+2*j}:{T+9+2*j}], v[{p+8+2*j}:{p+9+2*j}], v[{p+2*j}:{p+2*j+1}]")
        for j in range(4): cvt(ob+j, T+8+2*j, T+9+2*j)
        if k + 2 < 20: rdP(k+2)
        a(f"ds_write_b128 v13, v[{ob}:{ob+3}] offset:{k*1024}")
    tst(2)
    wsync()
    tst(3)
    a("v_add_u32 v14, 40960, v5")
    WB, HB, AC2 = 16, 176, 96
    a(f"""
    s_mul_i32 s21, s{S_WAVE}, 12288
    s_mul_i32 s48, s40, {4*49152}
    s_add_u32 s48, s48, {WS_HID}
    s_add_u32 s52, s48, s21
    s_mul_i32 s56, s41, {5*49152}
    s_add_u32 s56, s56, s21
    s_add_u32 s56, s56, {WS_W2F}
    """)
    for i in range(1, 4): a(f"s_add_u32 s{52+i}, s{51+i}, 49152")
    for i in range(1, 5): a(f"s_add_u32 s{56+i}, s{55+i}, 49152")
    def rdA(k):
        for tt in range(4):
            r = XF + 16*(k % 2) + 4*tt
            a(f"ds_read_b128 v[{r}:{r+3}], v{5 if tt < 2 else 14} offset:{(tt%2)*20480 + k*1024}")
    rdA(0)
    for k in range(20):
        if k < 19: rdA(k+1)
        a(f"s_waitcnt vmcnt({3*(11 if k == 0 else min(10, 19-k))}) lgkmcnt({4 if k < 19 else 0})")
        for n in range(3):
            for tt in range(4):
                d = AC1 + 16*n + 4*tt
                mfma32(d, bslot(k) + 4*n, XF + 16*(k % 2) + 4*tt, d if k else None)
                if tt == 1 and k >= 1 and k + 11 < 20: ldB1(k + 11, n)
    tst(4)
    def ldW1(k, j):
        r = WB + 20*(k % 4) + 4*j
        a(f"buffer_load_dwordx4 v[{r}:{r+3}], v5, {WS}, s{56+j} offen offset:{(k%4)*1024}")
        if k % 4 == 3: a(f"s_add_u32 s{56+j}, s{56+j}, 4096")
    def ldH1(k, j):
        r = HB + 16*(k % 4) + 4*j
        a(f"buffer_load_dwordx4 v[{r}:{r+3}], v5, {WS}, s{52+j} offen offset:{(k%4)*1024} sc1")
        if k % 4 == 3: a(f"s_add_u32 s{52+j}, s{52+j}, 4096")
    wq = [(k, j) for k in range(4) for j in range(5)]
    def wsome(n):
        for _ in range(n):
            if wq: ldW1(*wq.pop(0))
    K1 = 2*math.sqrt(2/math.pi)*math.log2(math.e)
    a(f"""
    s_mov_b32 s32, {hex(f2u(-K1*0.044715))}
    s_mov_b32 s33, s32
    v_mov_b32 v{T+16}, {hex(f2u(-K1))}
    """)
    for n in range(3):
        a(f"""
        v_lshlrev_b32 v{T+20}, 16, v{250+2*n}
        v_and_b32 v{T+21}, 0xffff0000, v{250+2*n}
        v_lshlrev_b32 v{T+22}, 16, v{251+2*n}
        v_and_b32 v{T+23}, 0xffff0000, v{251+2*n}
        s_add_u32 s34, s42, {n}
        s_lshr_b32 s35, s34, 1
        s_lshl_b32 s35, s35, 10
        s_and_b32 s34, s34, 1
        s_lshl_b32 s34, s34, 3
        s_add_u32 s35, s35, s34
        s_add_u32 s24, s35, s48
        s_add_u32 s25, s24, 49152
        s_add_u32 s26, s25, 49152
        s_add_u32 s27, s26, 49152
        """)
        d = AC1 + 16*n
        for h in range(8): a(f"v_pk_add_f32 v[{d+2*h}:{d+2*h+1}], v[{d+2*h}:{d+2*h+1}], v[{T+20+2*(h&1)}:{T+21+2*(h&1)}]")
        wsome(1)
        for h in range(8): a(f"v_pk_mul_f32 v[{T+2*h}:{T+2*h+1}], v[{d+2*h}:{d+2*h+1}], v[{d+2*h}:{d+2*h+1}]")
        for h in range(8): a(f"v_pk_fma_f32 v[{T+2*h}:{T+2*h+1}], v[{T+2*h}:{T+2*h+1}], s[32:33], v[{T+16}:{T+17}] op_sel_hi:[1,1,0]")
        wsome(1)
        for h in range(8): a(f"v_pk_mul_f32 v[{T+2*h}:{T+2*h+1}], v[{T+2*h}:{T+2*h+1}], v[{d+2*h}:{d+2*h+1}]")
        for h in range(16):
            a(f"v_exp_f32 v{T+h}, v{T+h}")
            if h % 8 == 3: wsome(1)
        for h in range(8): a(f"v_pk_add_f32 v[{T+2*h}:{T+2*h+1}], v[{T+2*h}:{T+2*h+1}], 1.0 op_sel_hi:[1,0]")
        for h in range(16):
            a(f"v_rcp_f32 v{T+h}, v{T+h}")
            if h % 8 == 3: wsome(1)
        for h in range(8): a(f"v_pk_mul_f32 v[{d+2*h}:{d+2*h+1}], v[{d+2*h}:{d+2*h+1}], v[{T+2*h}:{T+2*h+1}]")
        if n < 2: wsome(1)
        for tt in range(4):
            cvt(d+4*tt, d+4*tt, d+4*tt+1); cvt(d+4*tt+1, d+4*tt+2, d+4*tt+3)
        lstore([f"buffer_store_dwordx2 v[{d+4*tt}:{d+4*tt+1}], v5, {WS}, s{24+tt} offen" for tt in range(4)])
    assert not wq
    tst(5)
    a(f"""
    s_lshl_b32 s21, s40, 9
    s_add_u32 s21, s21, {FLD}
    s_lshr_b32 s24, s41, 1
    s_lshl_b32 s24, s24, 7
    s_add_u32 s24, s24, s21
    s_and_b32 s25, s41, 1
    s_lshl_b32 s25, s25, 2
    s_add_u32 s25, s25, s{S_WAVE}
    s_lshl_b32 s25, s25, 2
    s_add_u32 s24, s24, s25
    s_lshl_b32 s25, s{S_WAVE}, 7
    s_add_u32 s21, s21, s25
    v_lshlrev_b32 v12, 2, v3
    v_add_u32 v12, s21, v12
    v_mov_b32 v6, 0
    v_mov_b32 v7, 1
    s_mov_b32 s26, 1
    s_waitcnt vmcnt(0)
    s_mov_b64 exec, 1
    """)
    lstore(f"buffer_store_dword v7, v6, {WS}, s24 offen")
    a("s_mov_b64 exec, -1")
    srd(8, KA['b2'], 1280)
    srd(12, KA['out'], 2048*1280)
    a(f"""
    s_mov_b32 s25, {WS_MOD + 5*2560}
    v_lshlrev_b32 v6, 1, v{EA+3}
    buffer_load_dwordx2 v[240:241], v{EA+3}, {SA}, 0 offen
    buffer_load_dwordx4 v[244:247], v6, {WS}, s25 offen sc1
    """)
    tst(6)
    wait_flags(13, 12, 26, sleep=0)
    tst(7)
    for k in range(4):
        for j in range(4): ldH1(k, j)
    for k in range(12):
        if k < 4: y = 4*(3-k) + 9*max(0, k-1)
        else: y = 9*min(2, 11-k)
        a(f"s_waitcnt vmcnt({y})")
        q = ([('w', j) for j in range(5)] + [('h', j) for j in range(4)]) if (k >= 1 and k + 3 < 12) else []
        i = 0
        for tt in range(4):
            for n in range(5):
                d = AC2 + 20*tt + 4*n
                mfma32(d, WB + 20*(k % 4) + 4*n, HB + 16*(k % 4) + 4*tt, d if k else None)
                i += 1
                if i % 2 == 1 and q:
                    t_, j = q.pop(0)
                    (ldW1 if t_ == 'w' else ldH1)(k+3, j)
        if k == 9:
            a(f"""
            s_lshl_b32 s21, s40, 2
            s_add_u32 s21, s21, s{S_WAVE}
            s_mul_i32 s24, s21, 20480
            s_add_u32 s24, s24, {WS_X1}
            s_mul_i32 s27, s21, {16*1280}
            """)
    tst(8)
    for i in range(6): a(f"buffer_load_dwordx2 v[{16+2*i}:{17+2*i}], v{EA+2}, {WS}, s24 offen offset:{i*48} sc1")
    a(f"""
    v_mul_u32_u24 v13, 272, v1
    v_lshl_add_u32 v13, v2, 4, v13
    s_mul_i32 s21, s{S_WAVE}, 21760
    v_add_u32 v13, s21, v13
    s_barrier
    """)
    for j in range(20): a(f"ds_write_b128 v13, v[{AC2+4*j}:{AC2+4*j+3}] offset:{j*4*272}")
    a(f"""
    v_lshlrev_b32 v248, 16, v240
    v_and_b32 v249, 0xffff0000, v240
    v_lshlrev_b32 v250, 16, v241
    v_and_b32 v251, 0xffff0000, v241
    """)
    wsync()
    R = 96
    def rdR(i):
        for w in range(4):
            r = R + 16*i + 4*w
            a(f"ds_read_b128 v[{r}:{r+3}], v{EA} offset:{w*21760 + i*48}")
    rdR(0); rdR(1); rdR(2)
    a("s_waitcnt vmcnt(0)\ns_mov_b32 exec_hi, 0x0fffffff")
    for i in range(6):
        r = R + 16*i
        a(f"s_waitcnt lgkmcnt({4*min(2, 5-i)})")
        if i + 3 < 6: rdR(i+3)
        for h in (0, 2):
            a(f"""
            v_pk_add_f32 v[{r+h}:{r+h+1}], v[{r+h}:{r+h+1}], v[{r+4+h}:{r+5+h}]
            v_pk_add_f32 v[{r+8+h}:{r+9+h}], v[{r+8+h}:{r+9+h}], v[{r+12+h}:{r+13+h}]
            v_lshlrev_b32 v32, 16, v{16+2*i+h//2}
            v_pk_add_f32 v[{r+h}:{r+h+1}], v[{r+h}:{r+h+1}], v[{248+h}:{249+h}]
            v_and_b32 v33, 0xffff0000, v{16+2*i+h//2}
            v_pk_add_f32 v[{r+h}:{r+h+1}], v[{r+h}:{r+h+1}], v[{r+8+h}:{r+9+h}]
            v_pk_fma_f32 v[{r+h}:{r+h+1}], v[{r+h}:{r+h+1}], v[{244+h}:{245+h}], v[32:33]
            """)
        cvt(r, r, r+1); cvt(r+1, r+2, r+3)
        if i == 5: a("s_mov_b64 exec, 0xfffff")
        a(f"buffer_store_dwordx2 v[{r}:{r+1}], v{EA+1}, {SB}, s27 offen{['', ' sc1', ' nt'][cfg.outp]}")
        if i < 5: a(f"s_add_u32 s27, s27, {3*1280}")
    a("s_mov_b64 exec, -1\ns_waitcnt vmcnt(0)")
    tst(9); tst(11, True)
    if cfg.dtrace:
        dst(4)
        a(f"""
        s_waitcnt lgkmcnt(0)
        s_mov_b32 s86, s76
        s_cmp_lg_u32 s{S_X}, 7
        s_cbranch_scc1 LM_end
        s_cmp_lg_u32 s{S_C}, 0
        s_cbranch_scc1 LM_end
        s_cmp_lg_u32 s{S_WAVE}, 0
        s_cbranch_scc1 LM_end
        v_mov_b32 v7, 0
        """)
        for j in range(5):
            a(f"s_sub_u32 s21, s{76+2*j}, s86\nv_mov_b32 v6, s21\nglobal_store_dword v7, v6, s[22:23] offset:{12+4*j}")
        a("s_waitcnt vmcnt(0)")
    if cfg.ptrace:
        pstamp(9)
        for j in range(12): a(f"v_mov_b32 v6, s{62+2*j}\nbuffer_store_dword v6, v7, {WS}, s92 offen offset:{4*(7+j)}")
        a("s_waitcnt vmcnt(0)")
    a("s_endpgm")

    for ls, lb, ins in slow:
        a(ls + ":")
        for i in ins: a(i)
        a(f"s_branch {lb}")
    for o in ool: a.lines += o.lines
    if T2: cfg.trace = 2
    a('LM_codeend:\ns_endpgm')
    return kernel_head(name) + a.text(), kernel_desc(name, 256, 100, 256)
```
